```python
import torch

def _softmax(x, axis=-1):
    return torch.softmax(x, dim=axis)

def _gelu(x):
    return torch.nn.functional.gelu(x, approximate='tanh')

def _silu(x):
    return torch.nn.functional.silu(x)

def _sigmoid(x):
    return torch.sigmoid(x)

def _layernorm(x, axis=-1, eps=1e-05):
    m = x.mean(dim=axis, keepdim=True)
    v = x.var(dim=axis, keepdim=True, unbiased=False)
    return (x - m) / torch.sqrt(v + eps)

def _scatter_add(tgt, idx, src, axis=0):
    return tgt.clone().index_add_(axis, idx, src)

def _segment_sum(src, seg, n):
    out = torch.zeros((n,) + src.shape[1:], dtype=src.dtype)
    return out.index_add_(0, seg, src)

def _pad(x, pw):
    flat = tuple((v for pair in reversed(pw) for v in pair))
    return torch.nn.functional.pad(x, flat)
kernel_name = 'adaLN_cond__gqa_block_cached__dense_activation_silu__decode'

def setup_inputs():

    _w = lambda a: (lambda t: t.to(torch.bfloat16) if t.is_floating_point() else t)(torch.as_tensor(a))

    def _A_setup():
        B, Sq, D = (1, 1, 512)
        Hq, Hkv, Sk, Dh = (32, 8, 65536, 128)
        assert Hq % Hkv == 0, (Hq, Hkv)
        return {'x': _w((lambda *s: torch.randn(*s, dtype=torch.bfloat16) * 0.1)(B, Sq, D)), 'k_cache': _w((lambda *s: torch.randn(*s, dtype=torch.bfloat16) * 0.8)(B, Hkv, Sk, Dh)), 'v_cache': _w((lambda *s: torch.randn(*s, dtype=torch.bfloat16) * 3.2)(B, Hkv, Sk, Dh)), 'wq': _w((lambda *s: torch.randn(*s, dtype=torch.bfloat16) * 0.8)(D, Hq * Dh) * D ** (-0.5)), 'wo': _w((lambda *s: torch.randn(*s, dtype=torch.bfloat16) * 3.2)(Hq * Dh, D) * (Hq * Dh) ** (-0.5))}
    _A_in = _A_setup()

    def _B_setup():
        B, S, D, F = (1, 1, 512, 1792)
        return {'x': _w((lambda *s: torch.randn(*s, dtype=torch.bfloat16) * 0.1)(B, S, D)), 'w1': _w((lambda *s: torch.randn(*s, dtype=torch.bfloat16) * 12.8)(D, F) * D ** (-0.5)), 'w2': _w((lambda *s: torch.randn(*s, dtype=torch.bfloat16) * 12.8)(F, D) * F ** (-0.5))}
    _B_in = _B_setup()
    return {'A_x': _A_in['x'], 'A_k_cache': _A_in['k_cache'], 'A_v_cache': _A_in['v_cache'], 'A_wq': _A_in['wq'], 'A_wo': _A_in['wo'], 'B_x': _B_in['x'], 'B_w1': _B_in['w1'], 'B_w2': _B_in['w2'], 'c': _w((lambda *s: torch.randn(*s, dtype=torch.bfloat16) * 0.2)(1, 512) * 8.0), 'w_mod': _w((lambda *s: torch.randn(*s, dtype=torch.bfloat16) * 0.2)(512, 6 * 512) * 512 ** (-0.5) * 8.0)}

def reference(A_x, A_k_cache, A_v_cache, A_wq, A_wo, B_x, B_w1, B_w2, c, w_mod):

    def _A_ref(x, k_cache, v_cache, wq, wo):
        B, Sq, D = x.shape
        Hq, Dh = (32, 128)
        Hkv = k_cache.shape[1]
        rep = Hq // Hkv
        q = (lambda x, *d: x.permute(*d))((x @ wq).reshape(B, Sq, Hq, Dh), 0, 2, 1, 3)
        k = (lambda x, n, axis: torch.repeat_interleave(x, n, dim=axis))(k_cache, rep, axis=1)
        v = (lambda x, n, axis: torch.repeat_interleave(x, n, dim=axis))(v_cache, rep, axis=1)
        scores = torch.einsum('bhqd,bhkd->bhqk', q, k) * Dh ** (-0.5)
        p = _softmax(scores, axis=-1)
        o = torch.einsum('bhqk,bhkd->bhqd', p, v)
        return (lambda x, *d: x.permute(*d))(o, 0, 2, 1, 3).reshape(B, Sq, Hq * Dh) @ wo

    def _B_ref(x, w1, w2):
        h = torch.einsum('bsd,df->bsf', x, w1)
        h = _silu(h)
        out = torch.einsum('bsf,fd->bsd', h, w2)
        return out
    x = A_x
    mod = (_silu(c) @ w_mod).reshape(c.shape[0], 6, 1, -1)
    sa, ca, ga, sb, cb, gb = (mod[:, 0].clone(), mod[:, 1].clone(), mod[:, 2].clone(), mod[:, 3].clone(), mod[:, 4].clone(), mod[:, 5].clone())
    h = _layernorm(x, axis=-1) * (1 + ca) + sa
    x = x + ga * _A_ref(h, A_k_cache, A_v_cache, A_wq, A_wo)
    h = _layernorm(x, axis=-1) * (1 + cb) + sb
    x = x + gb * _B_ref(h, B_w1, B_w2)
    return x
```

```python
import re

TRANS = ("v_exp_f32", "v_log_f32", "v_rcp_f32", "v_rsq_f32", "v_sqrt_f32", "v_sin_f32", "v_cos_f32", "v_rcp_iflag_f32")

def mfma_info(op):
    if op.endswith("_f32") and op.count("f32") == 2:
        if "32x32x2" in op: return ("S", 16)
        if "16x16x4" in op: return ("S", 8)
        raise ValueError(op)
    if "32x32" in op: return ("X", 8)
    if "16x16" in op: return ("X", 4)
    raise ValueError(op)

def idx(p): return {2: 0, 4: 1, 8: 2, 16: 3}[p]
X_D_VALU = [5, 8, 12, 20]; S_D_VALU = [4, 6, 10, 18]
X_D_AB = [5, 8, 12, 20];   S_D_AB = [4, 6, 10, 18]
X_D_Cov = [4, 6, 10, 18];  S_D_Cov = [2, 4, 8, 16]
X_C_WAR = [1, 3, 7, 15]

_reg = re.compile(r"^(-)?(\|)?(abs\()?([vsa])(\d+|\[(\d+):(\d+)\])\)?\|?$")

def regs_of(tok):
    tok = tok.strip()
    if tok == "vcc": return ("s", {106, 107})
    if tok == "vcc_lo": return ("s", {106})
    if tok == "vcc_hi": return ("s", {107})
    if tok == "exec": return ("s", {126, 127})
    if tok == "exec_lo": return ("s", {126})
    if tok == "exec_hi": return ("s", {127})
    if tok == "m0": return ("s", {124})
    m = _reg.match(tok)
    if not m: return None
    k = m.group(4)
    if m.group(6) is not None:
        r = set(range(int(m.group(6)), int(m.group(7)) + 1))
    else:
        r = {int(m.group(5))}
    if k == "a":
        return ("v", {x + 1000 for x in r})
    return (k, r)

class Rec:
    __slots__ = ("kind", "wv", "ws", "cls", "passes", "srcC", "dst", "trans", "stdata", "age", "wm0")
    def __init__(s):
        s.kind = None; s.wv = set(); s.ws = set(); s.cls = None; s.passes = 0; s.srcC = set(); s.dst = None
        s.trans = False; s.stdata = set(); s.age = 0; s.wm0 = False
    def copy(s):
        r = Rec()
        for f in Rec.__slots__: setattr(r, f, getattr(s, f))
        return r

class Asm:
    def __init__(self):
        self.lines = []
        self.hist = []
        self.snap = {}
        self.seen_labels = set()
        self.maxv = 0; self.maxs = 0
        self.nlabel = 0
        self.count = 0

    def raw(self, t): self.lines.append(t)
    def comment(self, t): self.lines.append("    ; " + t)
    def newlabel(self, base="L"):
        self.nlabel += 1
        return f"{base}_{self.nlabel}"

    def _age(self, n):
        for r in self.hist: r.age += n
        self.hist = [r for r in self.hist if r.age < 24]

    def nop(self, n):
        while n > 0:
            k = min(n, 16)
            self.lines.append(f"    s_nop {k-1}")
            self._age(k); n -= k; self.count += 1

    def flush(self):
        need = 0
        for r in self.hist:
            if r.kind == "mfma":
                t = (X_D_VALU if r.cls == "X" else S_D_VALU)[idx(r.passes)]
            elif r.kind == "valu":
                t = 5 if r.ws else 2
            elif r.kind == "store": t = 2
            elif r.wm0: t = 1
            else: t = 0
            need = max(need, t - r.age)
        self.nop(need)

    def label(self, name):
        for h in self.snap.pop(name, []):
            self.hist += [r.copy() for r in h]
        self.seen_labels.add(name)
        self.lines.append(f"{name}:")

    def __call__(self, text):
        text = text.strip()
        body = text.split(";")[0].strip()
        parts = body.split(None, 1)
        op = parts[0]
        rest = parts[1] if len(parts) > 1 else ""
        ops = [o.strip() for o in rest.split(",")] if rest else []
        mods = ""
        if ops:
            lp = ops[-1].split(None, 1)
            if len(lp) > 1 and not ops[-1].startswith("hwreg"):
                ops[-1] = lp[0]; mods = lp[1]
        R = [regs_of(o) for o in ops]
        for r in R:
            if r:
                if r[0] == "v":
                    m = max(x for x in r[1])
                    if m < 1000: self.maxv = max(self.maxv, m + 1)
                else:
                    m = max(r[1])
                    if m < 102: self.maxs = max(self.maxs, m + 1)
        def V(i): return R[i][1] if (i < len(R) and R[i] and R[i][0] == "v") else set()
        def S(i): return R[i][1] if (i < len(R) and R[i] and R[i][0] == "s") else set()
        rec = Rec()
        rv = set(); rs = set(); wv = set(); ws = set()
        is_dpp = ("row_" in mods or "quad_perm" in mods or "wave_" in mods or op.endswith("_dpp"))
        kind = None
        lanesel = set()
        if op.startswith("v_mfma"):
            kind = "mfma"
            rec.cls, rec.passes = mfma_info(op)
            wv = V(0); A = V(1); B = V(2); C = V(3)
            rec.srcC = C; rec.dst = tuple(sorted(wv))
            rv = A | B | C
        elif op.startswith("v_"):
            kind = "valu"
            if op.startswith("v_cmp"):
                ws = S(0)
                for i in range(1, len(R)): rv |= V(i); rs |= S(i)
            elif op.startswith("v_readlane") or op.startswith("v_readfirstlane"):
                ws = S(0); rv = V(1)
                if len(R) > 2: lanesel = S(2)
            elif op.startswith("v_writelane"):
                wv = V(0); rv = V(0); rs = S(1); lanesel = S(2)
            elif op.startswith("v_permlane") and "swap" in op:
                wv = V(0) | V(1); rv = V(0) | V(1)
            elif op.startswith(("v_add_co", "v_sub_co", "v_addc_co", "v_subb_co", "v_subrev_co", "v_div_scale", "v_mad_u64")):
                wv = V(0); ws = S(1)
                for i in range(2, len(R)): rv |= V(i); rs |= S(i)
            else:
                wv = V(0)
                for i in range(1, len(R)): rv |= V(i); rs |= S(i)
                if op.startswith(("v_fmac", "v_dot2c", "v_pk_fmac")) or is_dpp: rv |= V(0)
                if op.startswith("v_cndmask") and len(R) == 3: rs |= {106, 107}
            rec.trans = op.split("_e")[0] in TRANS or op in TRANS
        elif op.startswith(("buffer_", "global_", "flat_")):
            if op in ("buffer_inv", "buffer_wbl2"):
                kind = "vmem"
            elif "load" in op and not (" lds" in (" " + mods) or "load_lds" in op):
                kind = "vmem"; wv = V(0)
                if "d16" in op: rv |= V(0)
                for i in range(1, len(R)): rv |= V(i); rs |= S(i)
            elif "atomic" in op:
                kind = "vmem"
                for i in range(0, len(R)): rv |= V(i); rs |= S(i)
                if "sc0" in mods: wv = V(0)
            else:
                kind = "store" if "store" in op else "vmem"
                for i in range(0, len(R)): rv |= V(i); rs |= S(i)
                if kind == "store" and ("x4" in op or "x3" in op):
                    rec.stdata = V(0) if op.startswith("buffer") else V(1)
                if kind == "vmem": rs |= {124}
        elif op.startswith("ds_"):
            kind = "ds"
            if op.startswith(("ds_read", "ds_bpermute", "ds_permute", "ds_swizzle")) or "_rtn" in op:
                wv = V(0)
                if "d16" in op: rv |= V(0)
                for i in range(1, len(R)): rv |= V(i)
            else:
                for i in range(0, len(R)): rv |= V(i)
        elif op.startswith("s_"):
            kind = "salu"
            if op == "s_nop":
                n = int(ops[0], 0) + 1
                self.lines.append("    " + text); self._age(n); self.count += 1
                return
            if not op.startswith(("s_cmp", "s_cbranch", "s_branch", "s_waitcnt", "s_barrier", "s_sleep", "s_setprio", "s_endpgm", "s_bitcmp")):
                ws = S(0)
                if 124 in ws: rec.wm0 = True
        else:
            raise ValueError("unknown op " + text)

        need = 0
        for p in self.hist:
            t = 0
            if p.kind == "valu":
                if kind == "mfma" and (p.wv & rv): t = max(t, 2)
                if kind == "valu":
                    if (op.startswith("v_permlane") or is_dpp) and (p.wv & rv): t = max(t, 2)
                    if op.startswith(("v_readlane", "v_readfirstlane")) and (p.wv & rv): t = max(t, 1)
                    if p.trans and not rec.trans and (p.wv & (rv | wv)): t = max(t, 1)
                    if p.trans and rec.trans and (p.wv & rv): t = max(t, 1)
                    if p.ws & rs: t = max(t, 2)
                    if p.ws & lanesel: t = max(t, 4)
                if kind in ("vmem", "store", "ds") and p.trans and (p.wv & rv): t = max(t, 1)
                if kind in ("vmem", "store") and (p.ws & rs): t = max(t, 5)
            elif p.kind == "mfma":
                i = idx(p.passes)
                if kind == "mfma":
                    A_B = rv - rec.srcC | (V(1) | V(2))
                    if p.wv & (V(1) | V(2)): t = max(t, (X_D_AB if p.cls == "X" else S_D_AB)[i])
                    if p.wv & rec.srcC:
                        same = (tuple(sorted(rec.srcC)) == p.dst and rec.passes == p.passes and rec.cls == p.cls)
                        if same: t = max(t, 2 if p.passes == 2 else 0)
                        else: t = max(t, (X_D_Cov if p.cls == "X" else S_D_Cov)[i])
                    elif p.wv & wv:
                        t = max(t, (X_D_Cov if p.cls == "X" else S_D_Cov)[i])
                elif kind in ("valu", "vmem", "store", "ds"):
                    if p.wv & (rv | wv): t = max(t, (X_D_VALU if p.cls == "X" else S_D_VALU)[i])
                    if kind == "valu" and p.cls == "X" and (p.srcC & wv): t = max(t, X_C_WAR[i])
            elif p.kind == "store":
                if p.stdata & wv: t = max(t, 2 if kind == "valu" else 1)
            elif p.kind == "salu":
                if p.wm0 and kind == "vmem" and 124 in rs: t = max(t, 1)
            need = max(need, t - p.age)
        if need > 0: self.nop(need)

        if op.startswith(("s_cbranch", "s_branch")):
            tgt = ops[0]
            if tgt in self.seen_labels:
                self.flush()
            self.lines.append("    " + text); self._age(1); self.count += 1
            if tgt not in self.seen_labels:
                self.snap.setdefault(tgt, []).append([r.copy() for r in self.hist])
            if op == "s_branch": self.hist = []
            return
        self.lines.append("    " + text); self.count += 1
        self._age(1)
        rec.kind = kind; rec.wv = wv; rec.ws = ws if kind == "valu" else set(); rec.age = 0
        if kind == "salu": rec.ws = set()
        self.hist.append(rec)

    def text(self): return "\n".join(self.lines) + "\n"
```

```python
import sys
from dsl import Asm
NAME = "adaLN_cond__gqa_block_cached__dense_activation_silu__decode"

QP = 0
R1 = 0x80000
LSE = 0x100000
YO = 0x101000
ZO = 0x111000
MOD2 = 0x12D000
WS_END = 0x12F000
DBGWS = 0x200000
F_SA, F_Q, F_SP, F_O, F_X1, F_A1 = 0, 4, 8, 12, 16, 20
SAP = 256
QL = 2304
SP = 4096
ML = 12288
OL = 12544
X1L = 12800
A1L = 13824
H2L = 14336
STG = 18432
LDS_USED = STG + 4096
LOG2E = 0x3fb8aa3b
SCALE = 0x3db504f3

def f32bits(x):
    import struct
    return struct.unpack("<I", struct.pack("<f", x))[0]

def gen(cfg):
    a = Asm()
    NT = " nt" if cfg.get("nt", True) else ""
    NTILES = 16
    TMO = cfg.get("timeout", 1 << 17)
    lds_req = cfg.get("lds", 98304)
    stamp = cfg.get("stamp", False)
    a.raw(f"; @launch grid=(256,1,1) block=(512,1,1) lds={lds_req}")
    a.raw('.amdgcn_target "amdgcn-amd-amdhsa--gfx950"')
    a.raw(".text")
    a.raw(f".globl {NAME}_kernel")
    a.raw(".p2align 8")
    a.raw(f".type {NAME}_kernel,@function")
    a.raw(f"{NAME}_kernel:")

    def srd(d, p, size):
        a(f"s_mov_b32 s{d}, s{p}"); a(f"s_mov_b32 s{d+1}, s{p+1}")
        a(f"s_mov_b32 s{d+2}, {size:#x}"); a(f"s_mov_b32 s{d+3}, 0x20000")
    def setexec(lo, hi):
        a(f"s_mov_b32 exec_lo, {lo}"); a(f"s_mov_b32 exec_hi, {hi}")
    def fullexec(): a("s_mov_b64 exec, -1")
    def bf16r(d, s):
        a(f"v_cvt_pk_bf16_f32 v{d}, v{s}, v{s}"); a(f"v_lshlrev_b32 v{d}, 16, v{d}")
    def bf16r2(d0, d1, s0, s1, t):
        a(f"v_cvt_pk_bf16_f32 v{t}, v{s0}, v{s1}")
        a(f"v_lshlrev_b32 v{d0}, 16, v{t}"); a(f"v_and_b32 v{d1}, 0xffff0000, v{t}")
    def unpack(d0, d1, s):
        a(f"v_lshlrev_b32 v{d0}, 16, v{s}"); a(f"v_and_b32 v{d1}, 0xffff0000, v{s}")
    def rowreduce(op, regs, rors):
        for k in rors:
            for r in regs: a(f"{op} v{r}, v{r}, v{r} row_ror:{k}")
    def bfly(op, regs, tmps, width):
        for r, t in zip(regs, tmps): a(f"v_mov_b32 v{t}, v{r}")
        for r, t in zip(regs, tmps): a(f"v_permlane{width}_swap_b32 v{r}, v{t}")
        for r, t in zip(regs, tmps): a(f"{op} v{r}, v{r}, v{t}")
    def lds_signal(flag, vz, vone):
        a("s_waitcnt lgkmcnt(0)")
        setexec(1, 0)
        a(f"ds_add_u32 v{vz}, v{vone} offset:{flag}")
        fullexec()
    def lds_wait(flag, target, vz, vt, st, sleep=1):
        L = a.newlabel("Lw");
        a(f"s_mov_b32 s{st+1}, {TMO*4}")
        a.label(L)
        a(f"ds_read_b32 v{vt}, v{vz} offset:{flag}")
        a(f"s_sub_u32 s{st+1}, s{st+1}, 1")
        a("s_cbranch_scc1 L_end")
        a("s_waitcnt lgkmcnt(0)")
        a(f"v_readfirstlane_b32 s{st}, v{vt}")
        a(f"s_cmp_ge_u32 s{st}, {target}")
        L2 = a.newlabel("Lwd")
        a(f"s_cbranch_scc1 {L2}")
        if sleep: a(f"s_sleep {sleep}")
        a(f"s_branch {L}")
        a.label(L2)
    def stamp_to(slot, sr, vt0, vt1):
        if not stamp: return
        a(f"s_memrealtime s[{sr}:{sr+1}]")
        a("s_waitcnt lgkmcnt(0)")
        a(f"v_mov_b32 v{vt0}, s{sr}")
        a(f"s_lshl_b32 s{sr}, s2, 6")
        a(f"s_add_u32 s{sr}, s{sr}, {DBGWS + slot*4}")
        a(f"v_mov_b32 v{vt1}, s{sr}")
        setexec(1, 0)
        a(f"buffer_store_dword v{vt0}, v{vt1}, s[60:63], 0 offen")
        fullexec()

    a("s_cmp_ge_u32 s2, 256")
    a("s_cbranch_scc1 L_end")
    a("s_load_dwordx16 s[16:31], s[0:1], 0")
    a("s_load_dwordx8 s[32:39], s[0:1], 64")
    a("s_load_dwordx2 s[40:41], s[0:1], 96")
    a("v_lshrrev_b32 v1, 6, v0")
    a("v_and_b32 v0, 63, v0")
    a("v_readfirstlane_b32 s3, v1")
    a("s_and_b32 s4, s2, 7")
    a("s_lshr_b32 s5, s2, 3")
    a("s_cmp_ge_u32 s3, 4")
    a("s_cbranch_scc1 L_T")

    VK, VV, VM, VML, VL, T0, T1, T2 = 0, 1, 2, 3, 4, 5, 6, 7
    D = 8; QF = 16; OA = 32; RING = 64
    a("v_and_b32 v5, 15, v0")
    a("v_lshrrev_b32 v6, 4, v0")
    a("v_lshlrev_b32 v1, 4, v0")
    a("v_and_b32 v7, 3, v0")
    a("v_lshlrev_b32 v7, 8, v7")
    a("v_lshl_add_u32 v7, v6, 4, v7")
    a("v_and_b32 v2, 3, v5")
    a("v_lshrrev_b32 v3, 2, v5")
    a("v_lshl_add_u32 v2, v2, 2, v3")
    a("v_lshlrev_b32 v2, 8, v2")
    a("v_lshl_add_u32 v8, v6, 4, v2")
    a("v_mov_b32 v9, v0")
    a("v_mov_b32 v0, v8")
    mapping = cfg.get("mapping", "wavecontig")
    a("s_lshl_b32 s6, s4, 24")
    a("s_lshl_b32 s7, s5, 19")
    a("s_add_u32 s6, s6, s7")
    if mapping == "wavecontig":
        a("s_lshl_b32 s7, s3, 17")
        STEP = 8192
    else:
        a("s_lshl_b32 s7, s3, 13")
        STEP = 4 * 8192
    a("s_add_u32 s6, s6, s7")
    a("s_add_u32 s7, s6, 4096")
    a("s_mov_b32 s8, 0")
    a("s_mov_b32 s9, 0")
    a(f"s_mov_b32 s10, {LOG2E:#x}")
    a(f"s_mov_b32 s11, {SCALE:#x}")
    a("s_mov_b32 s12, 0x05040100")
    a("s_mov_b32 s13, 0x07060302")
    a("s_waitcnt lgkmcnt(0)")
    srd(44, 18, 0x8000000)
    srd(48, 20, 0x8000000)
    if stamp:
        srd(60, 40, 0x400000)
    def loadK(slot):
        r = RING + 64 * slot
        for T in range(2):
            for j in range(4):
                a(f"buffer_load_dwordx4 v[{r}:{r+3}], v{VK}, s[44:47], {'s6' if T == 0 else 's7'} offen offset:{64*j}{NT}")
                r += 4
    def loadV(slot):
        r = RING + 64 * slot + 32
        for T in range(2):
            for j in range(4):
                a(f"buffer_load_dwordx4 v[{r}:{r+3}], v{VV}, s[48:51], {'s6' if T == 0 else 's7'} offen offset:{1024*j}{NT}")
                r += 4
    def advance():
        a("s_add_u32 s8, s8, 1")
        a(f"s_add_u32 s6, s6, {STEP}")
        a(f"s_cmp_ge_u32 s8, {NTILES}")
        a("s_cselect_b32 s6, 0x10000000, s6")
        a("s_add_u32 s7, s6, 4096")
    if cfg.get("bar_first", True): a("s_barrier")
    pace = cfg.get("pace", 8)
    loadK(0); loadV(0); advance()
    if not cfg.get("bar_first", True): a("s_barrier")
    a(f"v_mov_b32 v{VM}, 0xff800000")
    a(f"v_mov_b32 v{VML}, 0xff800000")
    a(f"v_mov_b32 v{VL}, 0")
    for r in range(OA, OA + 32): a(f"v_mov_b32 v{r}, 0")
    for slot in (1, 2):
        if pace is not None: a(f"s_waitcnt vmcnt({pace})")
        loadK(slot)
        if pace is not None: a(f"s_waitcnt vmcnt({pace})")
        loadV(slot); advance()
    a("v_mov_b32 v5, 0")
    lds_wait(F_Q, 4, 5, 6, 14, sleep=2)
    for j in range(4):
        a(f"ds_read_b128 v[{QF+4*j}:{QF+4*j+3}], v7 offset:{QL + 64*j}")
    a("s_waitcnt lgkmcnt(0)")
    if stamp:
        a("s_cmp_lg_u32 s3, 0"); a("s_cbranch_scc1 L_nost1")
        stamp_to(8, 14, 5, 6)
        a.label("L_nost1")
    a.label("L_Sloop")
    XST = 1 if stamp else 0
    for slot in range(3):
        KB = RING + 64 * slot; VB = KB + 32
        a(f"s_waitcnt vmcnt(40)")
        for j in range(4):
            for T in range(2):
                kr = KB + (T * 4 + j) * 4
                c = "0" if j == 0 else f"v[{D+4*T}:{D+4*T+3}]"
                a(f"v_mfma_f32_16x16x32_bf16 v[{D+4*T}:{D+4*T+3}], v[{kr}:{kr+3}], v[{QF+4*j}:{QF+4*j+3}], {c}")
        for i in range(0, 8, 2):
            t = T0 + (i // 2) % 3
            bf16r2(D + i, D + i + 1, D + i, D + i + 1, t)
        for i in range(8): a(f"v_mul_f32 v{D+i}, s11, v{D+i}")
        for i in range(0, 8, 2):
            t = T0 + (i // 2) % 3
            bf16r2(D + i, D + i + 1, D + i, D + i + 1, t)
        a(f"v_max3_f32 v{T0}, v{D}, v{D+1}, v{D+2}")
        a(f"v_max3_f32 v{T1}, v{D+3}, v{D+4}, v{D+5}")
        a(f"v_max3_f32 v{T0}, v{T0}, v{D+6}, v{D+7}")
        a(f"v_max_f32 v{T0}, v{T0}, v{T1}")
        a(f"v_cmp_gt_f32 vcc, v{T0}, v{VM}")
        Ls = a.newlabel("Lnomax")
        a(f"s_cbranch_vccz {Ls}")
        bfly("v_max_f32", [T0], [T1], 16)
        bfly("v_max_f32", [T0], [T1], 32)
        a(f"v_max_f32 v{VM}, v{VM}, v{T0}")
        a(f"v_mul_f32 v{T0}, s10, v{VM}")
        a(f"v_sub_f32 v{T1}, v{VML}, v{T0}")
        a(f"v_exp_f32 v{T1}, v{T1}")
        a(f"v_mov_b32 v{VML}, v{T0}")
        a(f"v_mul_f32 v{VL}, v{VL}, v{T1}")
        for r in range(OA, OA + 32): a(f"v_mul_f32 v{r}, v{r}, v{T1}")
        a.label(Ls)
        for i in range(8): a(f"v_fma_f32 v{D+i}, v{D+i}, s10, -v{VML}")
        for i in range(8): a(f"v_exp_f32 v{D+i}, v{D+i}")
        a(f"v_add_f32 v{T0}, v{D}, v{D+1}")
        a(f"v_add_f32 v{T1}, v{D+2}, v{D+3}")
        a(f"v_add_f32 v{T2}, v{D+4}, v{D+5}")
        a(f"v_add_f32 v{VL}, v{VL}, v{D+6}")
        a(f"v_add_f32 v{T0}, v{T0}, v{T1}")
        a(f"v_add_f32 v{T2}, v{T2}, v{D+7}")
        a(f"v_add_f32 v{VL}, v{VL}, v{T0}")
        a(f"v_add_f32 v{VL}, v{VL}, v{T2}")
        for q in range(4): a(f"v_cvt_pk_bf16_f32 v{D+q}, v{D+2*q}, v{D+2*q+1}")
        a(f"s_waitcnt vmcnt(32)")
        for t in range(8):
            u = t >> 1; sel = "s12" if (t & 1) == 0 else "s13"
            for q in range(4):
                a(f"v_perm_b32 v{KB+4*t+q}, v{VB+4*(2*q+1)+u}, v{VB+4*(2*q)+u}, {sel}")
            if t >= 1:
                tt = t - 1
                a(f"v_mfma_f32_16x16x32_bf16 v[{OA+4*tt}:{OA+4*tt+3}], v[{KB+4*tt}:{KB+4*tt+3}], v[{D}:{D+3}], v[{OA+4*tt}:{OA+4*tt+3}]")
        tt = 7
        a(f"v_mfma_f32_16x16x32_bf16 v[{OA+4*tt}:{OA+4*tt+3}], v[{KB+4*tt}:{KB+4*tt+3}], v[{D}:{D+3}], v[{OA+4*tt}:{OA+4*tt+3}]")
        loadK(slot); loadV(slot); advance()
        a("s_add_u32 s9, s9, 1")
        a(f"s_cmp_ge_u32 s9, {NTILES}")
        if slot < 2: a("s_cbranch_scc1 L_Sdone")
        else: a("s_cbranch_scc0 L_Sloop")
    a.label("L_Sdone")
    bfly("v_add_f32", [VL], [T0], 16)
    bfly("v_add_f32", [VL], [T0], 32)
    a(f"v_lshrrev_b32 v{T0}, 4, v{VV}")
    a(f"v_and_b32 v{T1}, 15, v{T0}")
    a(f"v_lshrrev_b32 v{T2}, 4, v{T0}")
    a(f"v_lshlrev_b32 v{D}, 9, v{T1}")
    a(f"v_lshl_add_u32 v{D}, v{T2}, 4, v{D}")
    a("s_lshl_b32 s14, s3, 11")
    a(f"v_add_u32 v{D}, s14, v{D}")
    a(f"v_lshlrev_b32 v{D+1}, 5, v{T1}")
    a("s_lshl_b32 s14, s3, 3")
    a(f"v_add_u32 v{D+1}, s14, v{D+1}")
    setexec("0x000f000f", "0x000f000f")
    for t in range(8):
        a(f"ds_write_b128 v{D}, v[{OA+4*t}:{OA+4*t+3}] offset:{SP + 64*t}")
    setexec("0xf", "0")
    a(f"v_mov_b32 v{T1}, v{VL}")
    a(f"v_mov_b32 v6, v{VML}")
    a(f"v_mov_b32 v7, v{VL}")
    a(f"ds_write_b64 v{D+1}, v[6:7] offset:{ML}")
    fullexec()
    a(f"v_mov_b32 v{T0}, 0"); a(f"v_mov_b32 v6, 1")
    lds_signal(F_SP, T0, 6)
    a("s_branch L_end")

    a.label("L_T")
    a(f"s_setprio {cfg.get('tprio', 2)}")
    a("s_sub_u32 s3, s3, 4")
    a("s_and_b32 s6, s5, 3")
    a("s_lshl_b32 s7, s4, 2")
    a("s_add_u32 s6, s6, s7")
    a("s_lshr_b32 s7, s2, 5")
    a("s_lshr_b32 s8, s5, 1")
    a("s_lshl_b32 s8, s8, 3")
    a("s_add_u32 s8, s8, s4")
    a("s_and_b32 s9, s5, 1")
    a("s_lshl_b32 s10, s8, 1")
    a("s_add_u32 s9, s9, s10")
    a("s_cmp_lt_u32 s8, 28")
    a("s_cselect_b32 s8, 1, 0")
    a("s_lshl_b32 s10, s4, 5")
    a("s_add_u32 s10, s10, s5")
    a(f"s_mov_b32 s11, {LOG2E:#x}")
    VZ, VONE = 2, 3
    a("v_mov_b32 v2, 0"); a("v_mov_b32 v3, 1")
    a("v_lshlrev_b32 v1, 4, v0")
    for r in range(4, 8): a(f"v_mov_b32 v{r}, -1")
    a("s_waitcnt lgkmcnt(0)")
    srd(44, 16, 1024)
    srd(48, 32, 1024)
    srd(52, 34, 512 * 6144)
    srd(56, 22, 512 * 8192)
    srd(60, 40, 0x400000 if stamp else WS_END)
    srd(64, 38, 256)
    srd(68, 24, 4096 * 1024)
    srd(72, 28, 512 * 3584)
    srd(76, 30, 1792 * 1024)
    srd(80, 36, 1024)
    a("s_lshl_b32 s84, s7, 5"); a("s_add_u32 s84, s84, s6"); a("s_lshl_b32 s84, s84, 11")
    a("s_lshl_b32 s12, s3, 9"); a("s_add_u32 s84, s84, s12")
    if QP: a(f"s_add_u32 s84, s84, {QP}")
    a("s_lshl_b32 s85, s4, 2"); a("s_add_u32 s85, s85, s3")
    a("s_lshl_b32 s86, s85, 7")
    a("s_lshl_b32 s85, s85, 5"); a("s_add_u32 s85, s85, s5"); a("s_lshl_b32 s85, s85, 9")
    a(f"s_add_u32 s85, s85, {R1}")
    a("s_and_b32 s12, s5, 7"); a("s_lshl_b32 s12, s12, 4"); a("s_add_u32 s86, s86, s12")
    a("s_lshr_b32 s12, s5, 3"); a("s_lshl_b32 s12, s12, 2"); a("s_add_u32 s86, s86, s12")
    a(f"s_add_u32 s86, s86, {LSE}")
    a("s_lshl_b32 s87, s6, 11"); a("s_lshl_b32 s12, s7, 8"); a("s_add_u32 s87, s87, s12")
    a("s_lshl_b32 s12, s3, 6"); a("s_add_u32 s87, s87, s12"); a(f"s_add_u32 s87, s87, {YO}")
    a("s_lshl_b32 s88, s9, 11"); a("s_lshl_b32 s12, s3, 9"); a("s_add_u32 s88, s88, s12"); a(f"s_add_u32 s88, s88, {ZO}")
    a("s_lshl_b32 s89, s10, 5"); a(f"s_add_u32 s89, s89, {MOD2}")
    XA = 8
    CC = 12
    XJ = 16
    WM = 20
    WQ = 52
    a(f"buffer_load_dwordx4 v[{XA}:{XA+3}], v1, s[44:47], 0 offen")
    a("v_lshrrev_b32 v17, 2, v0")
    a("v_lshlrev_b32 v18, 4, v17")
    a("s_lshl_b32 s12, s3, 8")
    a(f"buffer_load_dwordx4 v[{CC}:{CC+3}], v18, s[48:51], s12 offen")
    a("v_mul_u32_u24 v18, 49152, v17")
    a("v_and_b32 v19, 1, v0"); a("v_lshl_add_u32 v18, v19, 4, v18")
    a("v_bfe_u32 v19, v0, 1, 1"); a("v_lshl_add_u32 v18, v19, 10, v18")
    a(f"s_mul_i32 s12, s3, {128*6144}")
    a("s_lshl_b32 s13, s6, 5"); a("s_add_u32 s12, s12, s13")
    for i in range(8):
        a(f"buffer_load_dwordx4 v[{WM+4*i}:{WM+4*i+3}], v18, s[52:55], s12 offen")
        if i < 7: a("s_add_u32 s12, s12, 6144")
    a("v_and_b32 v17, 15, v0"); a("v_lshlrev_b32 v17, 1, v17")
    a("s_lshl_b32 s12, s6, 5")
    a(f"buffer_load_ushort v{XJ}, v17, s[44:47], s12 offen")
    a("v_lshrrev_b32 v18, 4, v0"); a("v_lshlrev_b32 v18, 13, v18")
    a("v_and_b32 v19, 15, v0"); a("v_lshl_add_u32 v18, v19, 4, v18")
    a("s_lshl_b32 s12, s6, 17"); a("s_lshl_b32 s13, s7, 10"); a("s_add_u32 s12, s12, s13")
    a("s_lshl_b32 s13, s3, 8"); a("s_add_u32 s12, s12, s13")
    for i in range(4):
        a(f"buffer_load_dwordx4 v[{WQ+4*i}:{WQ+4*i+3}], v18, s[56:59], s12 offen{NT}")
        if i < 3: a("s_add_u32 s12, s12, 32768")
    setexec(-1, 0)
    a("buffer_store_dwordx4 v[4:7], v1, s[60:63], s84 offen sc1")
    a("buffer_store_dwordx4 v[4:7], v1, s[60:63], s85 offen sc1")
    a("s_cmp_eq_u32 s8, 0"); a("s_cbranch_scc1 L_nz")
    a("buffer_store_dwordx4 v[4:7], v1, s[60:63], s88 offen sc1")
    a.label("L_nz")
    setexec("0xf", 0)
    a("buffer_store_dwordx4 v[4:7], v1, s[60:63], s87 offen sc1")
    setexec(1, 0)
    a("buffer_store_dword v4, v1, s[60:63], s86 offen sc1")
    a("s_cmp_lg_u32 s3, 3"); a("s_cbranch_scc1 L_nm2")
    setexec(3, 0)
    a("buffer_store_dwordx4 v[4:7], v1, s[60:63], s89 offen sc1")
    a.label("L_nm2")
    fullexec()
    a("s_cmp_lg_u32 s3, 0"); a("s_cbranch_scc1 L_nz0")
    a("v_lshlrev_b32 v17, 2, v0")
    a("ds_write_b32 v17, v2")
    a("s_waitcnt lgkmcnt(0)")
    a.label("L_nz0")
    a("s_barrier")
    a("s_waitcnt vmcnt(0)")
    if stamp:
        a("s_cmp_lg_u32 s3, 0"); a("s_cbranch_scc1 L_nost2")
        stamp_to(1, 14, 70, 71)
        a.label("L_nost2")
    def ln_stats(src, xv, s1, s2, t1, t2, spiv):
        for i in range(4): unpack(xv + 2 * i, xv + 2 * i + 1, src + i)
        a(f"v_readfirstlane_b32 s{spiv}, v{xv}")
        a(f"v_subrev_f32 v{t1}, s{spiv}, v{xv}")
        a(f"v_mov_b32 v{s1}, v{t1}"); a(f"v_mul_f32 v{s2}, v{t1}, v{t1}")
        for i in range(1, 8):
            t = t1 if i % 2 == 0 else t2
            a(f"v_subrev_f32 v{t}, s{spiv}, v{xv+i}")
            a(f"v_add_f32 v{s1}, v{s1}, v{t}"); a(f"v_fmac_f32 v{s2}, v{t}, v{t}")
        rowreduce("v_add_f32", [s1, s2], [1, 2, 4, 8])
        bfly("v_add_f32", [s1, s2], [t1, t2], 16)
        bfly("v_add_f32", [s1, s2], [t1, t2], 32)
        a(f"v_mul_f32 v{s1}, {f32bits(1/512):#x}, v{s1}")
        a(f"v_mul_f32 v{s2}, {f32bits(1/512):#x}, v{s2}")
        a(f"v_fma_f32 v{s2}, -v{s1}, v{s1}, v{s2}")
        a(f"v_max_f32 v{s2}, 0, v{s2}")
        a(f"v_add_f32 v{s1}, s{spiv}, v{s1}")
        bf16r2(s1, s2, s1, s2, t1)
        a(f"v_add_f32 v{s2}, {f32bits(1e-5):#x}, v{s2}")
        bf16r(s2, s2)
        a(f"v_sqrt_f32 v{s2}, v{s2}")
        bf16r(s2, s2)
        a(f"v_rcp_f32 v{s2}, v{s2}")
    XV = 70; MEAN = 78; RDEN = 79; TA = 80; TB = 81
    ln_stats(XA, XV, MEAN, RDEN, TA, TB, 14)
    a(f"v_lshlrev_b32 v{XJ}, 16, v{XJ}")
    a(f"v_sub_f32 v{XJ}, v{XJ}, v{MEAN}"); bf16r(XJ, XJ)
    a(f"v_mul_f32 v{XJ}, v{XJ}, v{RDEN}"); bf16r(XJ, XJ)
    def silu8(src, dst, t):
        for i in range(4): unpack(dst + 2 * i, dst + 2 * i + 1, src + i)
        silu_f32(dst, 8, t)
    def silu_f32(dst, n, t):
        for i in range(n): a(f"v_mul_f32 v{t+i}, {f32bits(-1.4426950408889634):#x}, v{dst+i}")
        for i in range(n): a(f"v_exp_f32 v{t+i}, v{t+i}")
        for i in range(n): a(f"v_add_f32 v{t+i}, 1.0, v{t+i}")
        for i in range(n): a(f"v_rcp_f32 v{t+i}, v{t+i}")
        for i in range(n): a(f"v_mul_f32 v{dst+i}, v{dst+i}, v{t+i}")
    SC = 82; TT = 90; ACC = 98
    silu8(CC, SC, TT)
    for i in range(0, 8, 2): bf16r2(SC + i, SC + i + 1, SC + i, SC + i + 1, TT + i // 2)
    def gemv_acc(acc, w0, nloads, coef, t):
        for i in range(nloads):
            for u in range(4):
                ta = t + (2 * u) % 4; tb = ta + 1
                unpack(ta, tb, w0 + 4 * i + u)
                if i == 0:
                    a(f"v_mul_f32 v{acc+2*u}, v{coef+i}, v{ta}"); a(f"v_mul_f32 v{acc+2*u+1}, v{coef+i}, v{tb}")
                else:
                    a(f"v_fmac_f32 v{acc+2*u}, v{coef+i}, v{ta}"); a(f"v_fmac_f32 v{acc+2*u+1}, v{coef+i}, v{tb}")
    ACC = 100
    gemv_acc(ACC, WM, 8, SC, TT)
    rowreduce("v_add_f32", list(range(ACC, ACC + 8)), [4, 8])
    a("v_lshrrev_b32 v17, 4, v0"); a("v_lshlrev_b32 v17, 7, v17")
    a("v_and_b32 v18, 3, v0"); a("v_lshl_add_u32 v17, v18, 5, v17")
    a("s_lshl_b32 s12, s3, 9"); a("v_add_u32 v17, s12, v17")
    setexec("0x000f000f", "0x000f000f")
    a(f"ds_write_b128 v17, v[{ACC}:{ACC+3}] offset:{SAP}")
    a(f"ds_write_b128 v17, v[{ACC+4}:{ACC+7}] offset:{SAP+16}")
    fullexec()
    lds_signal(F_SA, VZ, VONE)
    lds_wait(F_SA, 4, VZ, TA, 14, sleep=0)
    a("s_cmp_lg_u32 s3, 0"); a("s_cbranch_scc1 L_nflag")
    setexec(1, 0)
    a("buffer_store_byte v3, v2, s[64:67], s2 offen sc1")
    fullexec()
    a.label("L_nflag")
    a("v_and_b32 v17, 31, v0"); a("v_lshlrev_b32 v17, 2, v17")
    a("v_lshrrev_b32 v18, 5, v0"); a("v_lshl_add_u32 v17, v18, 10, v17")
    for k in range(8): a(f"ds_read_b32 v{TT+k}, v17 offset:{SAP + 128*k}")
    a("s_waitcnt lgkmcnt(0)")
    for k in (0, 2, 4, 6): a(f"v_add_f32 v{TT+k}, v{TT+k}, v{TT+k+1}")
    a(f"v_add_f32 v{TT}, v{TT}, v{TT+2}"); a(f"v_add_f32 v{TT+4}, v{TT+4}, v{TT+6}")
    a(f"v_add_f32 v{TT}, v{TT}, v{TT+4}")
    bfly("v_add_f32", [TT], [TT + 1], 32)
    bf16r(TT, TT)
    a(f"v_mov_b32 v{TT+1}, v{TT}")
    a(f"v_permlane16_swap_b32 v{TT}, v{TT+1}")
    a(f"v_add_f32 v{TT+1}, 1.0, v{TT+1}"); bf16r(TT + 1, TT + 1)
    a(f"v_mul_f32 v{TT+1}, v{XJ}, v{TT+1}"); bf16r(TT + 1, TT + 1)
    a(f"v_add_f32 v{TT}, v{TT+1}, v{TT}"); bf16r(TT, TT)
    a("v_lshrrev_b32 v17, 4, v0"); a("v_lshlrev_b32 v17, 2, v17")
    for i in range(4): a(f"ds_bpermute_b32 v{SC+i}, v17, v{TT} offset:{16*i}")
    a("s_waitcnt lgkmcnt(0)")
    gemv_acc(ACC, WQ, 4, SC, TT)
    for k in range(4): a(f"v_permlane32_swap_b32 v{ACC+k}, v{ACC+4+k}")
    for k in range(4): a(f"v_add_f32 v{ACC+k}, v{ACC+k}, v{ACC+4+k}")
    bfly("v_add_f32", [ACC, ACC + 1, ACC + 2, ACC + 3], [ACC + 4, ACC + 5, ACC + 6, ACC + 7], 16)
    for k in range(4): a(f"v_min_u32 v{ACC+k}, -2, v{ACC+k}")
    a("v_and_b32 v17, 15, v0"); a("v_lshlrev_b32 v17, 5, v17")
    a("v_lshrrev_b32 v18, 5, v0"); a("v_lshl_add_u32 v17, v18, 4, v17")
    setexec("0xffff", "0xffff")
    a(f"buffer_store_dwordx4 v[{ACC}:{ACC+3}], v17, s[60:63], s84 offen sc1")
    fullexec()
    if stamp:
        a("s_cmp_lg_u32 s3, 0"); a("s_cbranch_scc1 L_nost3")
        stamp_to(2, 14, 70, 71)
        a.label("L_nost3")
    a("v_lshlrev_b32 v17, 2, v0")
    a(f"s_mov_b32 s15, {TMO}")
    a.label("L_flags")
    a("buffer_load_dword v18, v17, s[64:67], 0 offen sc1")
    a("s_sub_u32 s15, s15, 1"); a("s_cbranch_scc1 L_end")
    a("s_waitcnt vmcnt(0)")
    a("v_cmp_ne_u32 vcc, 0x01010101, v18")
    a("s_cbranch_vccz L_flags_ok")
    a("s_sleep 2")
    a("s_branch L_flags")
    a.label("L_flags_ok")
    if stamp:
        a("s_cmp_lg_u32 s3, 0"); a("s_cbranch_scc1 L_nost4")
        stamp_to(3, 14, 70, 71)
        a.label("L_nost4")
    def gather(n, dst, vaddr, sbase_init, stride, chk, extra=None, sleep=1, name="G"):
        L = a.newlabel("L" + name); Lok = a.newlabel("L" + name + "ok")
        a(f"s_mov_b32 s15, {TMO}")
        a.label(L)
        sbase_init()
        for i in range(n):
            off = (i * stride) % 4096 if stride * (n - 1) < 4096 else 0
            if stride * (n - 1) < 4096:
                a(f"buffer_load_dwordx4 v[{dst+4*i}:{dst+4*i+3}], v{vaddr}, s[60:63], s12 offen offset:{i*stride} sc1")
            else:
                a(f"buffer_load_dwordx4 v[{dst+4*i}:{dst+4*i+3}], v{vaddr}, s[60:63], s12 offen sc1")
                if i < n - 1: a(f"s_add_u32 s12, s12, {stride}")
        regs = list(range(dst, dst + 4 * n))
        if extra: regs += extra()
        a("s_sub_u32 s15, s15, 1"); a("s_cbranch_scc1 L_end")
        a("s_waitcnt vmcnt(0)")
        c0, c1 = chk, chk + 1
        a(f"v_max3_u32 v{c0}, v{regs[0]}, v{regs[1]}, v{regs[2]}")
        rest = regs[3:]
        if len(rest) >= 3:
            a(f"v_max3_u32 v{c1}, v{rest[0]}, v{rest[1]}, v{rest[2]}"); rest = rest[3:]
        else:
            a(f"v_mov_b32 v{c1}, v{rest[0]}"); rest = rest[1:]
        k = 0
        while rest:
            c = c0 if k % 2 == 0 else c1
            if len(rest) >= 2:
                a(f"v_max3_u32 v{c}, v{c}, v{rest[0]}, v{rest[1]}"); rest = rest[2:]
            else:
                a(f"v_max_u32 v{c}, v{c}, v{rest[0]}"); rest = rest[1:]
            k += 1
        a(f"v_max_u32 v{c0}, v{c0}, v{c1}")
        a(f"v_cmp_eq_u32 vcc, -1, v{c0}")
        a(f"s_cbranch_vccz {Lok}")
        if sleep: a(f"s_sleep {sleep}")
        a(f"s_branch {L}")
        a.label(Lok)
    def sum_quads(dst, n):
        step = 1
        while step < n:
            for i in range(0, n, 2 * step):
                if i + step < n:
                    for k in range(4): a(f"v_add_f32 v{dst+4*i+k}, v{dst+4*i+k}, v{dst+4*(i+step)+k}")
            step *= 2
    G = 120
    a("v_and_b32 v17, 31, v0"); a("v_lshlrev_b32 v17, 4, v17")
    a("v_lshrrev_b32 v18, 5, v0"); a("v_lshl_add_u32 v17, v18, 11, v17")
    def qinit():
        a("s_lshl_b32 s12, s4, 16"); a("s_lshl_b32 s13, s3, 9"); a("s_add_u32 s12, s12, s13")
        if QP: a(f"s_add_u32 s12, s12, {QP}")
    gather(16, G, 17, qinit, 4096, TA, name="Q")
    sum_quads(G, 16)
    bfly("v_add_f32", [G, G + 1, G + 2, G + 3], [G + 4, G + 5, G + 6, G + 7], 32)
    a(f"v_cvt_pk_bf16_f32 v{G+4}, v{G}, v{G+1}"); a(f"v_cvt_pk_bf16_f32 v{G+5}, v{G+2}, v{G+3}")
    a("v_lshlrev_b32 v18, 3, v0"); a("s_lshl_b32 s12, s3, 8"); a("v_add_u32 v18, s12, v18")
    setexec(-1, 0)
    a(f"ds_write_b64 v18, v[{G+4}:{G+5}] offset:{QL}")
    fullexec()
    lds_signal(F_Q, VZ, VONE)
    if stamp:
        a("s_cmp_lg_u32 s3, 0"); a("s_cbranch_scc1 L_nost5")
        stamp_to(4, 14, 70, 71)
        a.label("L_nost5")
    a(f"s_setprio {cfg.get('tprio2', 0)}")

    a("s_cmp_lg_u32 s3, 3"); a("s_cbranch_scc1 L_nomod2")
    a(f"buffer_load_dwordx4 v[{CC}:{CC+3}], v1, s[48:51], 0 offen")
    a("v_mul_u32_u24 v18, 49152, v0")
    a("s_lshl_b32 s12, s10, 4"); a("s_add_u32 s12, s12, 2048")
    for i in range(8):
        a(f"buffer_load_dwordx4 v[{WM+4*i}:{WM+4*i+3}], v18, s[52:55], s12 offen")
        if i < 7: a("s_add_u32 s12, s12, 6144")
    a("s_waitcnt vmcnt(0)")
    silu8(CC, SC, TT)
    for i in range(0, 8, 2): bf16r2(SC + i, SC + i + 1, SC + i, SC + i + 1, TT + i // 2)
    gemv_acc(ACC, WM, 8, SC, TT)
    rowreduce("v_add_f32", list(range(ACC, ACC + 8)), [1, 2, 4, 8])
    bfly("v_add_f32", list(range(ACC, ACC + 8)), list(range(TT, TT + 8)), 16)
    bfly("v_add_f32", list(range(ACC, ACC + 8)), list(range(TT, TT + 8)), 32)
    for i in range(0, 8, 2): bf16r2(ACC + i, ACC + i + 1, ACC + i, ACC + i + 1, TT + i // 2)
    for k in range(8): a(f"v_min_u32 v{ACC+k}, -2, v{ACC+k}")
    setexec(1, 0)
    a(f"buffer_store_dwordx4 v[{ACC}:{ACC+3}], v2, s[60:63], s89 offen sc1")
    a(f"buffer_store_dwordx4 v[{ACC+4}:{ACC+7}], v2, s[60:63], s89 offen offset:16 sc1")
    fullexec()
    a.label("L_nomod2")

    a("s_lshl_b32 s12, s3, 10")
    a(f"v_add_u32 v19, s12, v1")
    a("v_lshrrev_b32 v17, 4, v0"); a("v_lshlrev_b32 v17, 8, v17")
    a("v_and_b32 v18, 15, v0"); a("v_lshl_add_u32 v17, v18, 1, v17")
    a("v_add_u32 v68, s12, v17")
    def frag_units(n, dst, srdn, vaddr, soff_list, tmpq):
        for u in range(n):
            soff_list(u)
            a(f"buffer_load_dwordx4 v[{tmpq+4*u}:{tmpq+4*u+3}], v{vaddr}, s[{srdn}:{srdn+3}], s12 offen{NT}")
        for u in range(n):
            a(f"s_waitcnt vmcnt({n-1-u})")
            a(f"ds_write_b128 v19, v[{tmpq+4*u}:{tmpq+4*u+3}] offset:{STG}")
            for i in range(8):
                a(f"ds_read_u16 v{70+i}, v68 offset:{STG + 32*i}")
            a("s_waitcnt lgkmcnt(0)")
            for q in range(4):
                a(f"v_lshl_or_b32 v{dst+4*u+q}, v{71+2*q}, 16, v{70+2*q}")
    WOF = 184
    W1F = 120
    WOF = 104; W1F = 184; W2F = 216
    TQ = 20
    a("v_lshrrev_b32 v17, 1, v0")
    a("v_bfe_u32 v18, v17, 3, 1"); a("v_lshlrev_b32 v18, 6, v18")
    a("v_and_b32 v69, 7, v17"); a("v_lshl_add_u32 v18, v69, 3, v18")
    a("v_lshrrev_b32 v69, 4, v17"); a("v_add_u32 v18, v18, v69")
    a("v_lshlrev_b32 v18, 10, v18")
    a("v_and_b32 v69, 1, v0"); a("v_lshl_add_u32 v18, v69, 4, v18")
    def wo_off(u):
        if u == 0:
            a("s_lshl_b32 s12, s6, 17"); a("s_lshl_b32 s13, s7, 7"); a("s_add_u32 s12, s12, s13")
            a("s_lshl_b32 s13, s3, 5"); a("s_add_u32 s12, s12, s13")
        else: a("s_add_u32 s12, s12, 2048")
    frag_units(4, WOF, 68, 18, wo_off, TQ)
    GA = 52; XQ = 56; CB1 = 60; SBV = 248; GB = 92
    a("s_cmp_eq_u32 s8, 0"); a("s_cbranch_scc1 L_notM1")
    a("v_mul_u32_u24 v18, 3584, v17")
    a("v_lshl_add_u32 v18, v69, 4, v18")
    def w1_off(u):
        if u == 0:
            a("s_lshr_b32 s12, s3, 1"); a(f"s_mul_i32 s12, s12, {256*3584}")
            a("s_lshl_b32 s13, s9, 6"); a("s_add_u32 s12, s12, s13")
            a("s_and_b32 s13, s3, 1"); a("s_lshl_b32 s13, s13, 5"); a("s_add_u32 s12, s12, s13")
        else: a(f"s_add_u32 s12, s12, {32*3584}")
    frag_units(8, W1F, 72, 18, w1_off, TQ)
    a("v_lshlrev_b32 v18, 10, v17")
    a("v_lshl_add_u32 v18, v69, 4, v18")
    def w2_off(u):
        if u == 0:
            a("s_lshl_b32 s12, s9, 15"); a("s_lshl_b32 s13, s3, 8"); a("s_add_u32 s12, s12, s13")
        else: a("s_add_u32 s12, s12, 32")
    frag_units(8, W2F, 76, 18, w2_off, TQ)
    a("v_and_b32 v17, 31, v0"); a("v_lshlrev_b32 v17, 4, v17")
    a("s_lshl_b32 s12, s3, 9"); a("v_add_u32 v17, s12, v17")
    a("v_lshlrev_b32 v18, 5, v0")
    a("v_and_b32 v69, 3, v0"); a("v_lshlrev_b32 v69, 4, v69")
    a("s_lshl_b32 s12, s4, 8"); a("s_lshl_b32 s13, s3, 6"); a("s_add_u32 s12, s12, s13")
    a("v_add_u32 v69, s12, v69")
    def m2init(): a(f"s_mov_b32 s12, {MOD2}")
    def m2extra():
        a(f"s_mov_b32 s13, {MOD2 + 2048}")
        a(f"buffer_load_dwordx4 v[{SBV}:{SBV+3}], v18, s[60:63], s13 offen sc1")
        a(f"buffer_load_dwordx4 v[{SBV+4}:{SBV+7}], v18, s[60:63], s13 offen offset:16 sc1")
        a(f"buffer_load_dwordx4 v[{CB1}:{CB1+3}], v18, s[60:63], s13 offen offset:2048 sc1")
        a(f"buffer_load_dwordx4 v[{CB1+4}:{CB1+7}], v18, s[60:63], s13 offen offset:2064 sc1")
        a(f"s_mov_b32 s13, {MOD2 + 6144}")
        a(f"buffer_load_dwordx4 v[{GB}:{GB+3}], v69, s[60:63], s13 offen sc1")
        return list(range(SBV, SBV + 8)) + list(range(CB1, CB1 + 8)) + list(range(GB, GB + 4))
    gather(1, GA, 17, m2init, 0, TA, extra=m2extra, sleep=8, name="M2")
    for i in range(8): a(f"v_add_f32 v{CB1+i}, 1.0, v{CB1+i}")
    for i in range(0, 8, 2): bf16r2(CB1 + i, CB1 + i + 1, CB1 + i, CB1 + i + 1, TA)
    a("v_lshrrev_b32 v17, 1, v17")
    a(f"buffer_load_dwordx2 v[{XQ+2}:{XQ+3}], v17, s[44:47], 0 offen")
    a("s_waitcnt vmcnt(0)")
    unpack(XQ, XQ + 1, XQ + 2); unpack(XQ + 2, XQ + 3, XQ + 3)
    a.label("L_notM1")

    a("v_and_b32 v17, 31, v0"); a("v_lshlrev_b32 v17, 4, v17")
    a("v_lshrrev_b32 v18, 5, v0"); a("v_lshl_add_u32 v18, v18, 11, v17")
    a("s_lshl_b32 s12, s3, 9"); a("v_add_u32 v18, s12, v18")
    a("s_lshl_b32 s12, s3, 5"); a("v_mov_b32 v69, s12")
    a("v_cmp_le_u32 s[90:91], 32, v0")
    a("v_lshrrev_b32 v8, 3, v0"); a("v_lshlrev_b32 v9, 4, v8")
    a("v_lshlrev_b32 v8, 9, v8"); a("v_and_b32 v10, 7, v0"); a("v_lshl_add_u32 v8, v10, 4, v8")
    lds_wait(F_SP, 4, VZ, TA, 14, sleep=1)
    a(f"s_setprio {cfg.get('tprio3', 3)}")
    if stamp:
        a("s_cmp_lg_u32 s3, 0"); a("s_cbranch_scc1 L_nost6")
        stamp_to(5, 14, 70, 71)
        a.label("L_nost6")
    MLR = 20
    OA_ = 28; OB_ = 32
    a(f"ds_read_b128 v[{MLR}:{MLR+3}], v69 offset:{ML}")
    a(f"ds_read_b128 v[{MLR+4}:{MLR+7}], v69 offset:{ML+16}")
    a(f"ds_read_b128 v[{OA_}:{OA_+3}], v18 offset:{SP}")
    a(f"ds_read_b128 v[{OB_}:{OB_+3}], v18 offset:{SP+4096}")
    a("s_waitcnt lgkmcnt(2)")
    a(f"v_max3_f32 v36, v{MLR}, v{MLR+2}, v{MLR+4}"); a(f"v_max_f32 v36, v36, v{MLR+6}")
    for w in range(4): a(f"v_sub_f32 v{MLR+2*w}, v{MLR+2*w}, v36")
    for w in range(4): a(f"v_exp_f32 v{MLR+2*w}, v{MLR+2*w}")
    a(f"v_mul_f32 v37, v{MLR}, v{MLR+1}")
    for w in range(1, 4): a(f"v_fmac_f32 v37, v{MLR+2*w}, v{MLR+2*w+1}")
    a(f"v_cndmask_b32 v38, v{MLR}, v{MLR+2}, s[90:91]")
    a(f"v_cndmask_b32 v39, v{MLR+4}, v{MLR+6}, s[90:91]")
    a("v_rcp_f32 v40, v37"); a("v_log_f32 v41, v37")
    a("s_waitcnt lgkmcnt(0)")
    a("v_mul_f32 v38, v38, v40"); a("v_mul_f32 v39, v39, v40")
    a("v_add_f32 v41, v41, v36")
    for k in range(4): a(f"v_mul_f32 v{OA_+k}, v{OA_+k}, v38")
    for k in range(4): a(f"v_fmac_f32 v{OA_+k}, v{OB_+k}, v39")
    bfly("v_add_f32", [OA_, OA_ + 1, OA_ + 2, OA_ + 3], [OB_, OB_ + 1, OB_ + 2, OB_ + 3], 32)
    for k in range(4): a(f"v_min_u32 v{OA_+k}, -2, v{OA_+k}")
    a("v_min_u32 v41, -2, v41")
    setexec(-1, 0)
    a(f"buffer_store_dwordx4 v[{OA_}:{OA_+3}], v1, s[60:63], s85 offen sc1")
    setexec(1, 0)
    a("buffer_store_dword v41, v2, s[60:63], s86 offen sc1")
    fullexec()

    LS = 44
    def winit():
        a("s_lshl_b32 s12, s6, 14"); a("s_lshl_b32 s13, s3, 7"); a("s_add_u32 s12, s12, s13"); a(f"s_add_u32 s12, s12, {R1}")
    def wextra():
        a("s_lshl_b32 s13, s6, 7"); a(f"s_add_u32 s13, s13, {LSE}")
        a(f"buffer_load_dwordx4 v[{LS}:{LS+3}], v9, s[60:63], s13 offen sc1")
        return [LS, LS + 1, LS + 2, LS + 3]
    gather(4, G, 8, winit, 4096, TA, extra=wextra, sleep=0, name="W")
    if stamp:
        a("s_cmp_lg_u32 s3, 0"); a("s_cbranch_scc1 L_nost7")
        stamp_to(6, 14, 70, 71)
        a.label("L_nost7")
    a(f"v_max3_f32 v36, v{LS}, v{LS+1}, v{LS+2}"); a(f"v_max_f32 v36, v36, v{LS+3}")
    rowreduce("v_max_f32", [36], [8])
    bfly("v_max_f32", [36], [37], 16); bfly("v_max_f32", [36], [37], 32)
    for i in range(4): a(f"v_sub_f32 v{LS+i}, v{LS+i}, v36")
    for i in range(4): a(f"v_exp_f32 v{LS+i}, v{LS+i}")
    for k in range(4): a(f"v_mul_f32 v{G+k}, v{G+k}, v{LS}")
    for i in range(1, 4):
        for k in range(4): a(f"v_fmac_f32 v{G+k}, v{G+4*i+k}, v{LS+i}")
    a(f"v_add_f32 v{G+4}, v{LS}, v{LS+1}"); a(f"v_add_f32 v{G+5}, v{LS+2}, v{LS+3}"); a(f"v_add_f32 v{G+4}, v{G+4}, v{G+5}")
    five = [G, G + 1, G + 2, G + 3, G + 4]; five_t = [G + 8, G + 9, G + 10, G + 11, G + 12]
    rowreduce("v_add_f32", five, [8])
    bfly("v_add_f32", five, five_t, 16); bfly("v_add_f32", five, five_t, 32)
    a(f"v_rcp_f32 v{G+4}, v{G+4}")
    for k in range(4): a(f"v_mul_f32 v{G+k}, v{G+k}, v{G+4}")
    a(f"v_cvt_pk_bf16_f32 v{G+6}, v{G}, v{G+1}"); a(f"v_cvt_pk_bf16_f32 v{G+7}, v{G+2}, v{G+3}")
    a("v_lshlrev_b32 v17, 3, v0"); a("s_lshl_b32 s12, s3, 6"); a("v_add_u32 v17, s12, v17")
    setexec("0xff", 0)
    a(f"ds_write_b64 v17, v[{G+6}:{G+7}] offset:{OL}")
    fullexec()
    lds_signal(F_O, VZ, VONE)
    a("v_lshrrev_b32 v17, 4, v0"); a("v_lshlrev_b32 v17, 4, v17")
    lds_wait(F_O, 4, VZ, TA, 14, sleep=0)
    for j in range(4): a(f"ds_read_b128 v[{G+16+4*j}:{G+19+4*j}], v17 offset:{OL + 64*j}")
    for j in range(4):
        a(f"s_waitcnt lgkmcnt({3-j})")
        c = "0" if j == 0 else f"v[{G}:{G+3}]"
        a(f"v_mfma_f32_16x16x32_bf16 v[{G}:{G+3}], v[{WOF+4*j}:{WOF+4*j+3}], v[{G+16+4*j}:{G+19+4*j}], {c}")
    for k in range(4): a(f"v_min_u32 v{G+k}, -2, v{G+k}")
    setexec("0x00010001", "0x00010001")
    a(f"buffer_store_dwordx4 v[{G}:{G+3}], v17, s[60:63], s87 offen sc1")
    fullexec()
    if stamp:
        a("s_cmp_lg_u32 s3, 0"); a("s_cbranch_scc1 L_nost8")
        stamp_to(7, 14, 70, 71)
        a.label("L_nost8")
    a("s_cmp_eq_u32 s8, 0"); a("s_cbranch_scc1 L_end")

    a("v_and_b32 v18, 31, v0"); a("v_lshlrev_b32 v18, 4, v18")
    a("v_lshrrev_b32 v8, 5, v0"); a("v_lshl_add_u32 v18, v8, 11, v18")
    def yinit():
        a("s_lshl_b32 s12, s3, 9"); a(f"s_add_u32 s12, s12, {YO}")
    gather(16, G, 18, yinit, 4096, TA, sleep=0, name="Y")
    if stamp:
        a("s_cmp_lg_u32 s3, 0"); a("s_cbranch_scc1 L_nost9")
        stamp_to(9, 14, 70, 71)
        a.label("L_nost9")
    sum_quads(G, 16)
    bfly("v_add_f32", [G, G + 1, G + 2, G + 3], [G + 4, G + 5, G + 6, G + 7], 32)
    bf16r2(G, G + 1, G, G + 1, G + 4); bf16r2(G + 2, G + 3, G + 2, G + 3, G + 5)
    for k in range(4): a(f"v_mul_f32 v{G+k}, v{G+k}, v{GA+k}")
    bf16r2(G, G + 1, G, G + 1, G + 4); bf16r2(G + 2, G + 3, G + 2, G + 3, G + 5)
    for k in range(4): a(f"v_add_f32 v{G+k}, v{G+k}, v{XQ+k}")
    a(f"v_cvt_pk_bf16_f32 v{G+4}, v{G}, v{G+1}"); a(f"v_cvt_pk_bf16_f32 v{G+5}, v{G+2}, v{G+3}")
    a("v_lshlrev_b32 v18, 3, v0"); a("s_lshl_b32 s12, s3, 8"); a("v_add_u32 v18, s12, v18")
    setexec(-1, 0)
    a(f"ds_write_b64 v18, v[{G+4}:{G+5}] offset:{X1L}")
    fullexec()
    lds_signal(F_X1, VZ, VONE)
    lds_wait(F_X1, 4, VZ, TA, 14, sleep=0)
    a(f"ds_read_b128 v[{XA}:{XA+3}], v1 offset:{X1L}")
    a("s_waitcnt lgkmcnt(0)")
    ln_stats(XA, XV, MEAN, RDEN, TA, TB, 14)
    for i in range(8): a(f"v_sub_f32 v{XV+i}, v{XV+i}, v{MEAN}")
    for i in range(0, 8, 2): bf16r2(XV + i, XV + i + 1, XV + i, XV + i + 1, G + i // 2)
    for i in range(8): a(f"v_mul_f32 v{XV+i}, v{XV+i}, v{RDEN}")
    for i in range(0, 8, 2): bf16r2(XV + i, XV + i + 1, XV + i, XV + i + 1, G + i // 2)
    for i in range(8): a(f"v_mul_f32 v{XV+i}, v{XV+i}, v{CB1+i}")
    for i in range(0, 8, 2): bf16r2(XV + i, XV + i + 1, XV + i, XV + i + 1, G + i // 2)
    for i in range(8): a(f"v_add_f32 v{XV+i}, v{XV+i}, v{SBV+i}")
    for i in range(4): a(f"v_cvt_pk_bf16_f32 v{G+i}, v{XV+2*i}, v{XV+2*i+1}")
    a(f"ds_write_b128 v19, v[{G}:{G+3}] offset:{H2L}")
    a("s_lshl_b32 s12, s3, 10"); a("s_lshr_b32 s13, s3, 1"); a("s_lshl_b32 s13, s13, 9"); a("s_add_u32 s12, s12, s13")
    a("v_add_u32 v18, s12, v17")
    for u in range(8): a(f"ds_read_b128 v[{G+16+4*u}:{G+19+4*u}], v18 offset:{H2L + 64*u}")
    for u in range(8):
        a(f"s_waitcnt lgkmcnt({7-u})")
        acc = G + 4 + 4 * (u & 1)
        c = "0" if u < 2 else f"v[{acc}:{acc+3}]"
        a(f"v_mfma_f32_16x16x32_bf16 v[{acc}:{acc+3}], v[{W1F+4*u}:{W1F+4*u+3}], v[{G+16+4*u}:{G+19+4*u}], {c}")
    for k in range(4): a(f"v_add_f32 v{G+4+k}, v{G+4+k}, v{G+8+k}")
    a("s_lshr_b32 s12, s3, 1"); a("s_lshl_b32 s12, s12, 7"); a("s_and_b32 s13, s3, 1"); a("s_lshl_b32 s13, s13, 6"); a("s_add_u32 s12, s12, s13")
    a("v_add_u32 v18, s12, v17")
    setexec("0x00010001", "0x00010001")
    a(f"ds_write_b128 v18, v[{G+4}:{G+7}] offset:{A1L}")
    fullexec()
    lds_signal(F_A1, VZ, VONE)
    a("v_lshlrev_b32 v18, 1, v17")
    lds_wait(F_A1, 4, VZ, TA, 14, sleep=0)
    a(f"ds_read_b128 v[{G}:{G+3}], v18 offset:{A1L}")
    a(f"ds_read_b128 v[{G+4}:{G+7}], v18 offset:{A1L+16}")
    a(f"ds_read_b128 v[{G+8}:{G+11}], v18 offset:{A1L+128}")
    a(f"ds_read_b128 v[{G+12}:{G+15}], v18 offset:{A1L+144}")
    a("s_waitcnt lgkmcnt(0)")
    for i in range(8): a(f"v_add_f32 v{G+i}, v{G+i}, v{G+8+i}")
    for i in range(0, 8, 2): bf16r2(G + i, G + i + 1, G + i, G + i + 1, G + 8 + i // 2)
    silu_f32(G, 8, G + 8)
    for i in range(4): a(f"v_cvt_pk_bf16_f32 v{G+16+i}, v{G+2*i}, v{G+2*i+1}")
    ZD = G + 20
    for u in range(8):
        a(f"v_mfma_f32_16x16x32_bf16 v[{ZD+4*u}:{ZD+4*u+3}], v[{W2F+4*u}:{W2F+4*u+3}], v[{G+16}:{G+19}], 0")
    a("v_and_b32 v8, 15, v0"); a("v_lshl_add_u32 v18, v8, 6, v17")
    for u in range(1, 8):
        m = f"{(1 << u) | (1 << (16 + u)):#x}"
        setexec(m, m)
        for k in range(4): a(f"v_mov_b32 v{ZD+k}, v{ZD+4*u+k}")
    setexec("0x00ff00ff", "0x00ff00ff")
    for k in range(4): a(f"v_min_u32 v{ZD+k}, -2, v{ZD+k}")
    a(f"buffer_store_dwordx4 v[{ZD}:{ZD+3}], v18, s[60:63], s88 offen sc1")
    fullexec()
    if stamp:
        a("s_cmp_lg_u32 s3, 0"); a("s_cbranch_scc1 L_nost10")
        stamp_to(10, 14, 70, 71)
        a.label("L_nost10")
    a("s_cmp_ge_u32 s2, 8"); a("s_cbranch_scc1 L_end")

    a("v_lshrrev_b32 v8, 2, v0"); a("v_lshlrev_b32 v18, 11, v8")
    a("v_and_b32 v9, 3, v0"); a("v_lshl_add_u32 v18, v9, 4, v18")
    a("v_and_b32 v8, 7, v8"); a("v_lshlrev_b32 v10, 11, v8"); a("v_lshl_add_u32 v10, v9, 4, v10")
    a("s_lshl_b32 s12, s4, 7"); a("s_lshl_b32 s13, s3, 5"); a("s_add_u32 s14, s12, s13")
    a("v_lshlrev_b32 v9, 3, v9"); a("v_add_u32 v9, s14, v9")
    a(f"ds_read_b64 v[{XQ+2}:{XQ+3}], v9 offset:{X1L}")
    def zinit():
        a("s_lshl_b32 s12, s4, 8"); a("s_lshl_b32 s13, s3, 6"); a("s_add_u32 s12, s12, s13"); a(f"s_add_u32 s12, s12, {ZO}")
    def zextra():
        a("s_add_u32 s12, s12, 32768")
        a(f"buffer_load_dwordx4 v[{G+12}:{G+15}], v10, s[60:63], s12 offen sc1")
        return [G + 12, G + 13, G + 14, G + 15]
    gather(3, G, 18, zinit, 32768, TA, extra=zextra, sleep=0, name="Z")
    setexec(0, -1)
    for k in range(4): a(f"v_mov_b32 v{G+12+k}, 0")
    fullexec()
    sum_quads(G, 4)
    four = [G, G + 1, G + 2, G + 3]; four_t = [G + 4, G + 5, G + 6, G + 7]
    rowreduce("v_add_f32", four, [4, 8])
    bfly("v_add_f32", four, four_t, 16); bfly("v_add_f32", four, four_t, 32)
    a("s_waitcnt lgkmcnt(0)")
    unpack(XQ, XQ + 1, XQ + 2); unpack(XQ + 2, XQ + 3, XQ + 3)
    bf16r2(G, G + 1, G, G + 1, G + 4); bf16r2(G + 2, G + 3, G + 2, G + 3, G + 5)
    for k in range(4): a(f"v_mul_f32 v{G+k}, v{G+k}, v{GB+k}")
    bf16r2(G, G + 1, G, G + 1, G + 4); bf16r2(G + 2, G + 3, G + 2, G + 3, G + 5)
    for k in range(4): a(f"v_add_f32 v{G+k}, v{G+k}, v{XQ+k}")
    a(f"v_cvt_pk_bf16_f32 v{G+4}, v{G}, v{G+1}"); a(f"v_cvt_pk_bf16_f32 v{G+5}, v{G+2}, v{G+3}")
    setexec("0xf", 0)
    a(f"buffer_store_dwordx2 v[{G+4}:{G+5}], v9, s[80:83], 0 offen")
    fullexec()
    if stamp:
        a("s_cmp_lg_u32 s3, 0"); a("s_cbranch_scc1 L_nost11")
        stamp_to(11, 14, 70, 71)
        a.label("L_nost11")
    a.label("L_end")
    a("s_endpgm")
    a.raw('.section .rodata,"a"')
    a.raw(".p2align 6")
    a.raw(f".amdhsa_kernel {NAME}_kernel")
    a.raw("  .amdhsa_next_free_vgpr 256")
    a.raw("  .amdhsa_next_free_sgpr 96")
    a.raw("  .amdhsa_accum_offset 256")
    a.raw("  .amdhsa_group_segment_fixed_size 0")
    a.raw("  .amdhsa_kernarg_size 104")
    a.raw("  .amdhsa_user_sgpr_count 2")
    a.raw("  .amdhsa_user_sgpr_kernarg_segment_ptr 1")
    a.raw("  .amdhsa_system_sgpr_workgroup_id_x 1")
    a.raw(".end_amdhsa_kernel")
    assert a.maxv <= 256 and a.maxs <= 96, (a.maxv, a.maxs)
    return a.text()

if __name__ == "__main__":
    import json
    out = sys.argv[1]
    cfg = json.loads(sys.argv[2]) if len(sys.argv) > 2 else {}
    open(out, "w").write(gen(cfg))
```

```python
import re

TRANS = ("v_exp_f32", "v_log_f32", "v_rcp_f32", "v_rsq_f32", "v_sqrt_f32", "v_sin_f32", "v_cos_f32", "v_rcp_iflag_f32")

def mfma_info(op):
    if op.endswith("_f32") and op.count("f32") == 2:
        if "32x32x2" in op: return ("S", 16)
        if "16x16x4" in op: return ("S", 8)
        raise ValueError(op)
    if "32x32" in op: return ("X", 8)
    if "16x16" in op: return ("X", 4)
    raise ValueError(op)

def idx(p): return {2: 0, 4: 1, 8: 2, 16: 3}[p]
X_D_VALU = [5, 8, 12, 20]; S_D_VALU = [4, 6, 10, 18]
X_D_AB = [5, 8, 12, 20];   S_D_AB = [4, 6, 10, 18]
X_D_Cov = [4, 6, 10, 18];  S_D_Cov = [2, 4, 8, 16]
X_C_WAR = [1, 3, 7, 15]

_reg = re.compile(r"^(-)?(\|)?(abs\()?([vsa])(\d+|\[(\d+):(\d+)\])\)?\|?$")

def regs_of(tok):
    tok = tok.strip()
    if tok == "vcc": return ("s", {106, 107})
    if tok == "vcc_lo": return ("s", {106})
    if tok == "vcc_hi": return ("s", {107})
    if tok == "exec": return ("s", {126, 127})
    if tok == "exec_lo": return ("s", {126})
    if tok == "exec_hi": return ("s", {127})
    if tok == "m0": return ("s", {124})
    m = _reg.match(tok)
    if not m: return None
    k = m.group(4)
    if m.group(6) is not None:
        r = set(range(int(m.group(6)), int(m.group(7)) + 1))
    else:
        r = {int(m.group(5))}
    if k == "a":
        return ("v", {x + 1000 for x in r})
    return (k, r)

class Rec:
    __slots__ = ("kind", "wv", "ws", "cls", "passes", "srcC", "dst", "trans", "stdata", "age", "wm0")
    def __init__(s):
        s.kind = None; s.wv = set(); s.ws = set(); s.cls = None; s.passes = 0; s.srcC = set(); s.dst = None
        s.trans = False; s.stdata = set(); s.age = 0; s.wm0 = False
    def copy(s):
        r = Rec()
        for f in Rec.__slots__: setattr(r, f, getattr(s, f))
        return r

class Asm:
    def __init__(self):
        self.lines = []
        self.hist = []
        self.snap = {}
        self.seen_labels = set()
        self.maxv = 0; self.maxs = 0
        self.nlabel = 0
        self.count = 0

    def raw(self, t): self.lines.append(t)
    def comment(self, t): self.lines.append("    ; " + t)
    def newlabel(self, base="L"):
        self.nlabel += 1
        return f"{base}_{self.nlabel}"

    def _age(self, n):
        for r in self.hist: r.age += n
        self.hist = [r for r in self.hist if r.age < 24]

    def nop(self, n):
        while n > 0:
            k = min(n, 16)
            self.lines.append(f"    s_nop {k-1}")
            self._age(k); n -= k; self.count += 1

    def flush(self):
        need = 0
        for r in self.hist:
            if r.kind == "mfma":
                t = (X_D_VALU if r.cls == "X" else S_D_VALU)[idx(r.passes)]
            elif r.kind == "valu":
                t = 5 if r.ws else (3 if r.cls else 2)
            elif r.kind == "store": t = 2
            elif r.wm0: t = 1
            else: t = 0
            need = max(need, t - r.age)
        self.nop(need)

    def label(self, name):
        for h in self.snap.pop(name, []):
            self.hist += [r.copy() for r in h]
        self.seen_labels.add(name)
        self.lines.append(f"{name}:")

    def __call__(self, text):
        text = text.strip()
        body = text.split(";")[0].strip()
        parts = body.split(None, 1)
        op = parts[0]
        rest = parts[1] if len(parts) > 1 else ""
        ops = [o.strip() for o in rest.split(",")] if rest else []
        mods = ""
        if ops:
            lp = ops[-1].split(None, 1)
            if len(lp) > 1 and not ops[-1].startswith("hwreg"):
                ops[-1] = lp[0]; mods = lp[1]
        R = [regs_of(o) for o in ops]
        for r in R:
            if r:
                if r[0] == "v":
                    m = max(x for x in r[1])
                    if m < 1000: self.maxv = max(self.maxv, m + 1)
                else:
                    m = max(r[1])
                    if m < 102: self.maxs = max(self.maxs, m + 1)
        def V(i): return R[i][1] if (i < len(R) and R[i] and R[i][0] == "v") else set()
        def S(i): return R[i][1] if (i < len(R) and R[i] and R[i][0] == "s") else set()
        rec = Rec()
        rv = set(); rs = set(); wv = set(); ws = set()
        is_dpp = ("row_" in mods or "quad_perm" in mods or "wave_" in mods or op.endswith("_dpp"))
        kind = None
        lanesel = set()
        if op.startswith("v_mfma"):
            kind = "mfma"
            rec.cls, rec.passes = mfma_info(op)
            wv = V(0); A = V(1); B = V(2); C = V(3)
            rec.srcC = C; rec.dst = tuple(sorted(wv))
            rv = A | B | C
        elif op.startswith("v_"):
            kind = "valu"
            if op.startswith("v_cmp"):
                ws = S(0)
                for i in range(1, len(R)): rv |= V(i); rs |= S(i)
            elif op.startswith("v_readlane") or op.startswith("v_readfirstlane"):
                ws = S(0); rv = V(1)
                if len(R) > 2: lanesel = S(2)
            elif op.startswith("v_writelane"):
                wv = V(0); rv = V(0); rs = S(1); lanesel = S(2)
            elif op.startswith("v_permlane") and "swap" in op:
                wv = V(0) | V(1); rv = V(0) | V(1)
            elif op.startswith(("v_add_co", "v_sub_co", "v_addc_co", "v_subb_co", "v_subrev_co", "v_div_scale", "v_mad_u64")):
                wv = V(0); ws = S(1)
                for i in range(2, len(R)): rv |= V(i); rs |= S(i)
            else:
                wv = V(0)
                for i in range(1, len(R)): rv |= V(i); rs |= S(i)
                if op.startswith(("v_fmac", "v_dot2c", "v_pk_fmac")) or is_dpp: rv |= V(0)
                if op.startswith("v_cndmask") and len(R) == 3: rs |= {106, 107}
            rec.trans = op.split("_e")[0] in TRANS or op in TRANS
            if op.startswith("v_dot"): rec.cls = op
        elif op.startswith(("buffer_", "global_", "flat_")):
            if op in ("buffer_inv", "buffer_wbl2"):
                kind = "vmem"
            elif "load" in op and not (" lds" in (" " + mods) or "load_lds" in op):
                kind = "vmem"; wv = V(0)
                if "d16" in op: rv |= V(0)
                for i in range(1, len(R)): rv |= V(i); rs |= S(i)
            elif "atomic" in op:
                kind = "vmem"
                for i in range(0, len(R)): rv |= V(i); rs |= S(i)
                if "sc0" in mods: wv = V(0)
            else:
                kind = "store" if "store" in op else "vmem"
                for i in range(0, len(R)): rv |= V(i); rs |= S(i)
                if kind == "store" and ("x4" in op or "x3" in op):
                    rec.stdata = V(0) if op.startswith("buffer") else V(1)
                if kind == "vmem": rs |= {124}
        elif op.startswith("ds_"):
            kind = "ds"
            if op.startswith(("ds_read", "ds_bpermute", "ds_permute", "ds_swizzle")) or "_rtn" in op:
                wv = V(0)
                if "d16" in op: rv |= V(0)
                for i in range(1, len(R)): rv |= V(i)
            else:
                for i in range(0, len(R)): rv |= V(i)
        elif op.startswith("s_"):
            kind = "salu"
            if op == "s_nop":
                n = int(ops[0], 0) + 1
                self.lines.append("    " + text); self._age(n); self.count += 1
                return
            if not op.startswith(("s_cmp", "s_cbranch", "s_branch", "s_waitcnt", "s_barrier", "s_sleep", "s_setprio", "s_endpgm", "s_bitcmp")):
                ws = S(0)
                if 124 in ws: rec.wm0 = True
        else:
            raise ValueError("unknown op " + text)

        need = 0
        for p in self.hist:
            t = 0
            if p.kind == "valu":
                if p.cls is not None and (p.wv & (rv | wv)):
                    if not (kind == "valu" and op == p.cls and not (p.wv & (V(1) | V(2)))): t = max(t, 3)
                if kind == "mfma" and (p.wv & rv): t = max(t, 2)
                if kind == "valu":
                    if (op.startswith("v_permlane") or is_dpp) and (p.wv & rv): t = max(t, 2)
                    if op.startswith(("v_readlane", "v_readfirstlane")) and (p.wv & rv): t = max(t, 1)
                    if p.trans and not rec.trans and (p.wv & (rv | wv)): t = max(t, 1)
                    if p.trans and rec.trans and (p.wv & rv): t = max(t, 1)
                    if p.ws & rs: t = max(t, 2)
                    if p.ws & lanesel: t = max(t, 4)
                if kind in ("vmem", "store", "ds") and p.trans and (p.wv & rv): t = max(t, 1)
                if kind in ("vmem", "store") and (p.ws & rs): t = max(t, 5)
            elif p.kind == "mfma":
                i = idx(p.passes)
                if kind == "mfma":
                    A_B = rv - rec.srcC | (V(1) | V(2))
                    if p.wv & (V(1) | V(2)): t = max(t, (X_D_AB if p.cls == "X" else S_D_AB)[i])
                    if p.wv & rec.srcC:
                        same = (tuple(sorted(rec.srcC)) == p.dst and rec.passes == p.passes and rec.cls == p.cls)
                        if same: t = max(t, 2 if p.passes == 2 else 0)
                        else: t = max(t, (X_D_Cov if p.cls == "X" else S_D_Cov)[i])
                    elif p.wv & wv:
                        t = max(t, (X_D_Cov if p.cls == "X" else S_D_Cov)[i])
                elif kind in ("valu", "vmem", "store", "ds"):
                    if p.wv & (rv | wv): t = max(t, (X_D_VALU if p.cls == "X" else S_D_VALU)[i])
                    if kind == "valu" and p.cls == "X" and (p.srcC & wv): t = max(t, X_C_WAR[i])
            elif p.kind == "store":
                if p.stdata & wv: t = max(t, 2 if kind == "valu" else 1)
            elif p.kind == "salu":
                if p.wm0 and kind == "vmem" and 124 in rs: t = max(t, 1)
            need = max(need, t - p.age)
        if need > 0: self.nop(need)

        if op.startswith(("s_cbranch", "s_branch")):
            tgt = ops[0]
            if tgt in self.seen_labels:
                self.flush()
            self.lines.append("    " + text); self._age(1); self.count += 1
            if tgt not in self.seen_labels:
                self.snap.setdefault(tgt, []).append([r.copy() for r in self.hist])
            if op == "s_branch": self.hist = []
            return
        self.lines.append("    " + text); self.count += 1
        self._age(1)
        rec.kind = kind; rec.wv = wv; rec.ws = ws if kind == "valu" else set(); rec.age = 0
        if kind == "salu": rec.ws = set()
        self.hist.append(rec)

    def text(self): return "\n".join(self.lines) + "\n"
```

```python
import sys, struct
from dsl import Asm
NAME = "adaLN_cond__gqa_block_cached__dense_activation_silu__decode"

EPOCH = 0
QP = 0x1000
R1 = 0x101000
YO = 0x1A1000
ZO = 0x1B1000
MOD2 = 0x1CD000
WS_END = 0x1CF000
DBGWS = 0x200000
F_SA, F_Q, F_SP, F_O, F_X1, F_A1, F_RST, F_GO, F_SA2, F_TK = 0, 4, 8, 12, 16, 20, 24, 28, 32, 64
SAP = 256
QL = 2304
ML = 3328
OL = 3456
X1L = 3712
STL = 4736
YPL = 4864
A1L = 5888
H2L = 6400
SP = 8192
STG = 16384
KVL = 32768
LOG2E = 0x3fb8aa3b
SCALE = 0x3db504f3
OOB = 0x10000000

def f32bits(x): return struct.unpack("<I", struct.pack("<f", x))[0]

def gen(cfg):
    a = Asm()
    def fl(name, d):
        v = cfg.get(name, d); return (" " + v) if v else ""
    NT = fl("kvflags", "nt"); WT = fl("wflags", "nt"); WMF = fl("wmflags", "")
    NTW = 64
    TMO = cfg.get("timeout", 1 << 15)
    lds_req = cfg.get("lds", 163840)
    stamp = cfg.get("stamp", False)
    Wp = cfg.get("wp", 8)
    a.raw(f"; @launch grid=(256,1,1) block=(512,1,1) lds={lds_req}")
    a.raw('.amdgcn_target "amdgcn-amd-amdhsa--gfx950"')
    a.raw(".text")
    a.raw(f".globl {NAME}_kernel")
    a.raw(".p2align 8")
    a.raw(f".type {NAME}_kernel,@function")
    a.raw(f"{NAME}_kernel:")

    def srd(d, p, size):
        a(f"s_mov_b32 s{d}, s{p}"); a(f"s_mov_b32 s{d+1}, s{p+1}")
        a(f"s_mov_b32 s{d+2}, {size:#x}"); a(f"s_mov_b32 s{d+3}, 0x20000")
    def setexec(lo, hi):
        a(f"s_mov_b32 exec_lo, {lo}"); a(f"s_mov_b32 exec_hi, {hi}")
    def fullexec(): a("s_mov_b64 exec, -1")
    def bf16r(d, s):
        a(f"v_cvt_pk_bf16_f32 v{d}, v{s}, v{s}"); a(f"v_lshlrev_b32 v{d}, 16, v{d}")
    def bf16r2(d0, d1, s0, s1, t):
        a(f"v_cvt_pk_bf16_f32 v{t}, v{s0}, v{s1}")
        a(f"v_lshlrev_b32 v{d0}, 16, v{t}"); a(f"v_and_b32 v{d1}, s83, v{t}")
    def bf16rn(r, n, t):
        for i in range(0, n, 2): a(f"v_cvt_pk_bf16_f32 v{t+i//2}, v{r+i}, v{r+i+1}")
        for i in range(0, n, 2):
            a(f"v_lshlrev_b32 v{r+i}, 16, v{t+i//2}"); a(f"v_and_b32 v{r+i+1}, s83, v{t+i//2}")
    def unpack(d0, d1, s):
        a(f"v_lshlrev_b32 v{d0}, 16, v{s}"); a(f"v_and_b32 v{d1}, s83, v{s}")
    def rowreduce(op, regs, rors):
        for k in rors:
            for r in regs: a(f"{op} v{r}, v{r}, v{r} row_ror:{k}")
    def bfly(op, regs, tmps, width):
        for r, t in zip(regs, tmps): a(f"v_mov_b32 v{t}, v{r}")
        for r, t in zip(regs, tmps): a(f"v_permlane{width}_swap_b32 v{r}, v{t}")
        for r, t in zip(regs, tmps): a(f"{op} v{r}, v{r}, v{t}")
    def lds_signal(flag, vz, vone):
        a("s_waitcnt lgkmcnt(0)")
        setexec(1, 0)
        a(f"ds_add_u32 v{vz}, v{vone} offset:{flag}")
        fullexec()
    def lds_wait(flag, target, vz, vt, st=14, sleep=1):
        L = a.newlabel("Lw"); L2 = a.newlabel("Lwd")
        a(f"s_mov_b32 s{st+1}, {TMO*16}")
        a.label(L)
        a(f"ds_read_b32 v{vt}, v{vz} offset:{flag}")
        a(f"s_sub_u32 s{st+1}, s{st+1}, 1")
        a("s_cbranch_scc1 L_end")
        a("s_waitcnt lgkmcnt(0)")
        a(f"v_readfirstlane_b32 s{st}, v{vt}")
        a(f"s_cmp_ge_u32 s{st}, {target}")
        if sleep:
            a(f"s_cbranch_scc1 {L2}")
            a(f"s_sleep {sleep}")
            a(f"s_branch {L}")
            a.label(L2)
        else:
            a(f"s_cbranch_scc0 {L}")
    def stamp_to(slot, t1=False):
        if not stamp: return
        if slot in (9, 10, 11) and bool(cfg.get("stampT1")) != t1: return
        a(f"s_memrealtime s[92:93]")
        a("s_waitcnt lgkmcnt(0)")
        a(f"s_mov_b32 s{16+slot}, s92")
    def stamp_init():
        if not stamp: return
        for i in range(1, 16): a(f"s_mov_b32 s{16+i}, 0")
        a("s_mov_b32 s16, s95")

    a("s_cmp_ge_u32 s2, 256")
    a("s_cbranch_scc1 L_exit")
    a("v_lshrrev_b32 v1, 6, v0")
    a("v_and_b32 v0, 63, v0")
    a("v_readfirstlane_b32 s82, v1")
    a("v_mov_b32 v2, 0")
    a("s_cmp_lg_u32 s82, 3"); a("s_cbranch_scc1 L_noinit")
    a("v_lshlrev_b32 v1, 2, v0")
    a(f"v_cmp_eq_u32 vcc, {F_TK//4}, v0")
    a(f"v_mov_b32 v3, {20*16}")
    a("v_cndmask_b32 v3, v2, v3, vcc")
    a("ds_write_b32 v1, v3")
    a("s_waitcnt lgkmcnt(0)")
    a.label("L_noinit")
    if stamp:
        a("s_memrealtime s[92:93]"); a("s_waitcnt lgkmcnt(0)"); a("s_mov_b32 s95, s92")
    a("s_load_dwordx16 s[16:31], s[0:1], 0")
    a("s_load_dwordx8 s[32:39], s[0:1], 64")
    a("s_load_dwordx2 s[40:41], s[0:1], 96")
    a("s_barrier")
    a("s_and_b32 s3, s82, 3")
    a("s_and_b32 s4, s2, 7")
    a("s_lshr_b32 s5, s2, 3")
    a("s_mov_b32 s83, 0xffff0000")
    if stamp:
        a("s_lshl_b32 s94, s2, 3"); a("s_add_u32 s94, s94, s82"); a("s_lshl_b32 s94, s94, 6"); a(f"s_add_u32 s94, s94, {DBGWS}")
    a("v_lshlrev_b32 v1, 4, v0")
    a("s_cmp_ge_u32 s82, 4")
    a("s_cbranch_scc1 L_T")

    VK, VV, VTK, VML, VL, T0, T1, T2 = 0, 1, 2, 3, 4, 5, 6, 7
    D = 8; QF = 16; OA = 32; RING = 64
    a(f"s_setprio {cfg.get('sprio0', 3)}")
    a("v_and_b32 v5, 15, v0")
    a("v_lshrrev_b32 v6, 4, v0")
    a("v_and_b32 v7, 3, v0"); a("v_lshlrev_b32 v7, 8, v7"); a("v_lshl_add_u32 v7, v6, 4, v7")
    a("v_and_b32 v2, 3, v5"); a("v_lshrrev_b32 v3, 2, v5"); a("v_lshl_add_u32 v2, v2, 2, v3")
    a("v_lshlrev_b32 v2, 8, v2")
    a("v_lshl_add_u32 v0, v6, 4, v2")
    a("s_lshl_b32 s89, s4, 24"); a("s_lshl_b32 s91, s5, 19"); a("s_add_u32 s89, s89, s91")
    a("s_lshl_b32 s91, s3, 13"); a("s_add_u32 s90, s89, s91")
    a("s_add_u32 s91, s90, 4096")
    a(f"s_mov_b32 s10, {LOG2E:#x}")
    a(f"s_mov_b32 s11, {SCALE:#x}")
    a("s_mov_b32 s12, 0x05040100"); a("s_mov_b32 s13, 0x07060302")
    for r in (6, 7, 8, 9): a(f"s_mov_b32 s{r}, 1")
    a("s_mov_b32 s88, 2")
    a("s_lshl_b32 s87, s3, 15"); a(f"s_add_u32 s87, s87, {KVL}")
    a("v_mov_b32 v5, 0")
    a("s_waitcnt lgkmcnt(0)")
    srd(44, 18, 0x8000000); srd(48, 20, 0x8000000)
    if stamp: srd(60, 40, 0x400000)
    stamp_init()
    stamp_to(3)
    def reg_loads(slot):
        out = []; r = RING + 64 * slot
        for T in range(2):
            for j in range(4):
                out.append([f"buffer_load_dwordx4 v[{r}:{r+3}], v{VK}, s[44:47], {'s90' if T == 0 else 's91'} offen offset:{64*j}{NT}"]); r += 4
        for T in range(2):
            for j in range(4):
                out.append([f"buffer_load_dwordx4 v[{r}:{r+3}], v{VV}, s[48:51], {'s90' if T == 0 else 's91'} offen offset:{1024*j}{NT}"]); r += 4
        return out
    def dma_loads(ls):
        out = []
        for T in range(2):
            for j in range(4):
                m = ls * 16384 + (T * 4 + j) * 1024 - 64 * j
                out.append([f"s_add_u32 m0, s87, {m}", f"buffer_load_dwordx4 v{VK}, s[44:47], {'s90' if T == 0 else 's91'} offen offset:{64*j}{NT} lds"])
        for T in range(2):
            for j in range(4):
                m = ls * 16384 + (8 + 4 * T) * 1024
                out.append([f"s_add_u32 m0, s87, {m}", f"buffer_load_dwordx4 v{VV}, s[48:51], {'s90' if T == 0 else 's91'} offen offset:{1024*j}{NT} lds"])
        return out
    def req_ticket():
        setexec(2, 0)
        a(f"ds_add_rtn_u32 v{VTK}, v{VV}, v{VV} offset:{F_TK-16}")
        fullexec()
    def take_ticket(vflag):
        a("s_waitcnt lgkmcnt(0)")
        a(f"v_readlane_b32 s14, v{VTK}, 1")
        a("s_lshl_b32 s15, s14, 9")
        a("s_add_u32 s90, s89, s15")
        a(f"s_cmp_lt_u32 s14, {NTW*16}")
        a(f"s_cselect_b32 s90, s90, {OOB:#x}")
        a(f"s_cselect_b32 s{vflag}, 1, 0")
        a("s_add_u32 s91, s90, 4096")
        req_ticket()
    seq = []
    for t in range(5):
        l = reg_loads(t) if t < 3 else dma_loads(t - 3)
        if t == 0: l = [l[0], l[8]] + l[1:8] + l[9:]
        if t < 4: l[-1] = l[-1] + ["s_add_u32 s90, s90, 32768", "s_add_u32 s91, s91, 32768"]
        seq += l
    GRP = 4
    for i in range(Wp):
        for ins in seq[i]: a(ins)
        if i == cfg.get("nfirst", 2) - 1:
            a("s_setprio 0"); stamp_to(1)
    a(f"v_mov_b32 v{VML}, 0xff800000"); a(f"v_mov_b32 v{VL}, 0")
    for r in range(OA, OA + 32): a(f"v_mov_b32 v{r}, 0")
    pos = list(range(Wp, 80, GRP))
    for p in pos:
        a(f"ds_read_b32 v6, v5 offset:{F_Q}")
        for i in range(p, min(p + GRP, 80)):
            if (i - p) % 2 == 0: a(f"s_waitcnt vmcnt({Wp-2})")
            for ins in seq[i]: a(ins)
        if p + GRP < 80:
            a("s_waitcnt lgkmcnt(0)")
            a("v_readfirstlane_b32 s14, v6")
            a("s_cmp_ge_u32 s14, 4")
            a(f"s_cbranch_scc1 L_U{p+GRP}")
    a("s_branch L_Pdone")
    for p in pos[1:]:
        a.label(f"L_U{p}")
        for i in range(p, min(p + GRP, 80)):
            for ins in seq[i]: a(ins)
    a.label("L_Pdone")
    stamp_to(12)
    lds_wait(F_Q, 4, 5, 6, 14, sleep=2)
    for j in range(4):
        a(f"ds_read_b128 v[{QF+4*j}:{QF+4*j+3}], v7 offset:{QL + 64*j}")
    req_ticket()
    a("s_waitcnt vmcnt(63)")
    stamp_to(8)
    def proc(slot, kwait, vwait):
        KB = RING + 64 * slot; VB = KB + 32
        if kwait is not None: a(f"s_waitcnt vmcnt({kwait})")
        for j in range(4):
            for T in range(2):
                kr = KB + (T * 4 + j) * 4
                c = "0" if j == 0 else f"v[{D+4*T}:{D+4*T+3}]"
                a(f"v_mfma_f32_16x16x32_bf16 v[{D+4*T}:{D+4*T+3}], v[{kr}:{kr+3}], v[{QF+4*j}:{QF+4*j+3}], {c}")
        for i in range(0, 8, 2): bf16r2(D + i, D + i + 1, D + i, D + i + 1, T0 + (i // 2) % 3)
        for i in range(8): a(f"v_mul_f32 v{D+i}, s11, v{D+i}")
        for i in range(0, 8, 2): bf16r2(D + i, D + i + 1, D + i, D + i + 1, T0 + (i // 2) % 3)
        a(f"v_max3_f32 v{T0}, v{D}, v{D+1}, v{D+2}")
        a(f"v_max3_f32 v{T1}, v{D+3}, v{D+4}, v{D+5}")
        a(f"v_max3_f32 v{T0}, v{T0}, v{D+6}, v{D+7}")
        a(f"v_max_f32 v{T0}, v{T0}, v{T1}")
        a(f"v_mul_f32 v{T0}, s10, v{T0}")
        a(f"v_cmp_gt_f32 vcc, v{T0}, v{VML}")
        Ls = a.newlabel("Lnomax")
        a(f"s_cbranch_vccz {Ls}")
        bfly("v_max_f32", [T0], [T1], 16)
        bfly("v_max_f32", [T0], [T1], 32)
        if cfg.get("intmax", True): a(f"v_ceil_f32 v{T0}, v{T0}")
        a(f"v_max_f32 v{T0}, v{T0}, v{VML}")
        a(f"v_sub_f32 v{T1}, v{VML}, v{T0}")
        a(f"v_exp_f32 v{T1}, v{T1}")
        a(f"v_mov_b32 v{VML}, v{T0}")
        a(f"v_mul_f32 v{VL}, v{VL}, v{T1}")
        for r in range(OA, OA + 32): a(f"v_mul_f32 v{r}, v{r}, v{T1}")
        a.label(Ls)
        for i in range(8): a(f"v_fma_f32 v{D+i}, v{D+i}, s10, -v{VML}")
        for i in range(8): a(f"v_exp_f32 v{D+i}, v{D+i}")
        a(f"v_add_f32 v{T0}, v{D}, v{D+1}"); a(f"v_add_f32 v{T1}, v{D+2}, v{D+3}"); a(f"v_add_f32 v{T2}, v{D+4}, v{D+5}")
        a(f"v_add_f32 v{VL}, v{VL}, v{D+6}"); a(f"v_add_f32 v{T0}, v{T0}, v{T1}"); a(f"v_add_f32 v{T2}, v{T2}, v{D+7}")
        a(f"v_add_f32 v{VL}, v{VL}, v{T0}"); a(f"v_add_f32 v{VL}, v{VL}, v{T2}")
        for q in range(4): a(f"v_cvt_pk_bf16_f32 v{D+q}, v{D+2*q}, v{D+2*q+1}")
        if vwait is not None: a(f"s_waitcnt vmcnt({vwait})")
        for t in range(8):
            u = t >> 1; sel = "s12" if (t & 1) == 0 else "s13"
            for q in range(4):
                a(f"v_perm_b32 v{KB+4*t+q}, v{VB+4*(2*q+1)+u}, v{VB+4*(2*q)+u}, {sel}")
            if t >= 1:
                tt = t - 1
                a(f"v_mfma_f32_16x16x32_bf16 v[{OA+4*tt}:{OA+4*tt+3}], v[{KB+4*tt}:{KB+4*tt+3}], v[{D}:{D+3}], v[{OA+4*tt}:{OA+4*tt+3}]")
        tt = 7
        a(f"v_mfma_f32_16x16x32_bf16 v[{OA+4*tt}:{OA+4*tt+3}], v[{KB+4*tt}:{KB+4*tt+3}], v[{D}:{D+3}], v[{OA+4*tt}:{OA+4*tt+3}]")
    a.label("L_SA")
    for slot in range(2):
        a(f"s_cmp_eq_u32 s{6+slot}, 0"); a("s_cbranch_scc1 L_Sdone")
        take_ticket(6 + slot)
        proc(slot, 56, 48)
        for l in reg_loads(slot):
            for ins in l: a(ins)
    a("s_cmp_eq_u32 s88, 2"); a("s_cbranch_scc0 L_SL0")
    a("s_mov_b32 s88, 0")
    a("s_waitcnt vmcnt(63)")
    a("s_branch L_SC")
    for ls in range(2):
        a.label(f"L_SL{ls}")
        a(f"s_cmp_eq_u32 s{8+ls}, 0"); a("s_cbranch_scc1 L_Sdone")
        a(f"v_add_u32 v{T0}, s87, v{VV}")
        a("s_waitcnt vmcnt(48)")
        CB = RING + 128
        for i in range(16):
            a(f"ds_read_b128 v[{CB+4*i}:{CB+4*i+3}], v{T0} offset:{ls*16384 + 1024*i}")
        take_ticket(8 + ls)
        for l in dma_loads(ls):
            for ins in l: a(ins)
        a(f"s_mov_b32 s88, {1 if ls == 0 else 3}")
        if ls == 0: a("s_branch L_SC")
    a.label("L_SC")
    proc(2, None, None)
    a("s_cmp_eq_u32 s88, 0"); a("s_cbranch_scc1 L_SL0")
    a("s_cmp_eq_u32 s88, 1"); a("s_cbranch_scc1 L_SL1")
    a("s_branch L_SA")
    a.label("L_Sdone")
    stamp_to(5)
    bfly("v_add_f32", [VL], [T0], 16)
    bfly("v_add_f32", [VL], [T0], 32)
    a(f"v_lshrrev_b32 v{T0}, 4, v{VV}")
    a(f"v_and_b32 v{T1}, 15, v{T0}")
    a(f"v_lshrrev_b32 v{T2}, 4, v{T0}")
    a(f"v_lshlrev_b32 v{D}, 9, v{T1}")
    a(f"v_lshl_add_u32 v{D}, v{T2}, 4, v{D}")
    a("s_lshl_b32 s14, s3, 11")
    a(f"v_add_u32 v{D}, s14, v{D}")
    a(f"v_lshlrev_b32 v{D+1}, 5, v{T1}")
    a("s_lshl_b32 s14, s3, 3")
    a(f"v_add_u32 v{D+1}, s14, v{D+1}")
    a(f"v_mov_b32 v6, v{VML}"); a(f"v_mov_b32 v7, v{VL}")
    setexec("0x000f000f", "0x000f000f")
    for t in range(8):
        a(f"ds_write_b128 v{D}, v[{OA+4*t}:{OA+4*t+3}] offset:{SP + 64*t}")
    setexec("0xf", "0")
    a(f"ds_write_b64 v{D+1}, v[6:7] offset:{ML}")
    fullexec()
    a(f"v_mov_b32 v{T0}, 0"); a(f"v_mov_b32 v4, 1")
    lds_signal(F_SP, T0, 4)
    a("s_branch L_end")

    a.label("L_T")
    a(f"s_setprio 2")
    a("s_and_b32 s6, s5, 3"); a("s_lshl_b32 s7, s4, 2"); a("s_add_u32 s6, s6, s7")
    a("s_lshr_b32 s7, s2, 5")
    VZ, VONE = 2, 3
    a("v_mov_b32 v3, 1")
    XA = 8; CC = 12; XJ = 16; WM = 20; WQ = 52
    XV = 70; MEAN = 78; RDEN = 79; TA = 80; TB = 81; SC = 82; SCL = 90; XQR = 98; TAG = 102
    WOF = 104; G = 120; TT = G; W1F = 184; W2F = 216; ACC = 248
    GA = 52; XQ = 56; CB1 = 60; SBV = 64; GB = 48
    a("v_lshrrev_b32 v17, 2, v0")
    a("v_lshlrev_b32 v4, 4, v17")
    a("v_mul_u32_u24 v68, 49152, v17")
    a("v_and_b32 v19, 1, v0"); a("v_lshl_add_u32 v5, v19, 4, v68")
    a("v_bfe_u32 v19, v0, 1, 1"); a("v_lshl_add_u32 v5, v19, 10, v5")
    a("v_and_b32 v6, 15, v0"); a("v_lshlrev_b32 v6, 1, v6")
    a("v_lshrrev_b32 v7, 4, v0"); a("v_lshlrev_b32 v7, 13, v7")
    a("v_and_b32 v19, 15, v0"); a("v_lshl_add_u32 v7, v19, 4, v7")
    a("s_lshl_b32 s12, s3, 8")
    a(f"s_mul_i32 s99, s3, {128*6144}"); a("s_lshl_b32 s14, s6, 5"); a("s_add_u32 s13, s99, s14")
    a("s_lshl_b32 s15, s6, 17"); a("s_lshl_b32 s90, s7, 10"); a("s_add_u32 s15, s15, s90")
    a("s_lshl_b32 s90, s3, 8"); a("s_add_u32 s15, s15, s90")
    a("s_waitcnt lgkmcnt(0)")
    a(f"s_load_dword s42, s[40:41], {EPOCH}")
    srd(48, 32, 1024)
    srd(52, 34, 512 * 6144)
    a(f"buffer_load_dwordx4 v[{CC}:{CC+3}], v4, s[48:51], s12 offen")
    srd(44, 16, 1024)
    a(f"buffer_load_dwordx4 v[{XA}:{XA+3}], v1, s[44:47], 0 offen")
    a(f"buffer_load_ushort v{XJ}, v6, s[44:47], s14 offen")
    for i in range(8):
        a(f"buffer_load_dwordx4 v[{WM+4*i}:{WM+4*i+3}], v5, s[52:55], s13 offen{WMF}")
        if i < 7: a("s_add_u32 s13, s13, 6144")
    srd(56, 22, 512 * 8192)
    for i in range(4):
        a(f"buffer_load_dwordx4 v[{WQ+4*i}:{WQ+4*i+3}], v7, s[56:59], s15 offen{WT}")
        if i < 3: a("s_add_u32 s15, s15, 32768")
    a("s_lshr_b32 s8, s5, 1"); a("s_lshl_b32 s8, s8, 3"); a("s_add_u32 s8, s8, s4")
    a("s_and_b32 s9, s5, 1"); a("s_lshl_b32 s10, s8, 1"); a("s_add_u32 s9, s9, s10")
    a("s_cmp_lt_u32 s8, 28"); a("s_cselect_b32 s8, 1, 0")
    a("s_lshl_b32 s10, s4, 3"); a("s_add_u32 s10, s10, s5"); a("s_sub_u32 s10, s10, 24")
    srd(68, 24, 4096 * 1024)
    srd(72, 28, 512 * 3584)
    srd(76, 30, 1792 * 1024)
    NX = 0
    srd(60, 40, 0x400000 if stamp else WS_END)
    srd(64, 38, 256)
    a("s_mov_b32 s90, s36"); a("s_mov_b32 s91, s37")
    a("s_lshl_b32 s84, s7, 5"); a("s_add_u32 s84, s84, s6"); a("s_lshl_b32 s84, s84, 12")
    a("s_lshl_b32 s12, s3, 10"); a("s_add_u32 s84, s84, s12"); a(f"s_add_u32 s84, s84, {QP}")
    a("s_lshl_b32 s85, s4, 2"); a("s_add_u32 s85, s85, s3")
    a("s_lshl_b32 s85, s85, 5"); a("s_add_u32 s85, s85, s5"); a("s_mul_i32 s85, s85, 640"); a(f"s_add_u32 s85, s85, {R1}")
    a("s_lshl_b32 s87, s6, 11"); a("s_lshl_b32 s13, s7, 8"); a("s_add_u32 s87, s87, s13")
    a("s_lshl_b32 s13, s3, 6"); a("s_add_u32 s87, s87, s13"); a(f"s_add_u32 s87, s87, {YO}")
    a("s_lshl_b32 s88, s9, 11"); a("s_lshl_b32 s12, s3, 9"); a("s_add_u32 s88, s88, s12"); a(f"s_add_u32 s88, s88, {ZO}")
    a("s_lshl_b32 s89, s10, 7"); a(f"s_add_u32 s89, s89, {MOD2}")
    stamp_init()
    stamp_to(12)
    def silu_f32(dst, n, t):
        for i in range(n): a(f"v_mul_f32 v{t+i}, {f32bits(-1.4426950408889634):#x}, v{dst+i}")
        for i in range(n): a(f"v_exp_f32 v{t+i}, v{t+i}")
        for i in range(n): a(f"v_add_f32 v{t+i}, 1.0, v{t+i}")
        for i in range(n): a(f"v_rcp_f32 v{t+i}, v{t+i}")
        for i in range(n): a(f"v_mul_f32 v{dst+i}, v{dst+i}, v{t+i}")
    def gemv_dot(acc, w0, n, sc, scl, wait=None):
        for i in range(n):
            if wait: wait(i)
            for u in range(4):
                if i == 0:
                    a(f"v_dot2_f32_bf16 v{acc+2*u}, v{w0+4*i+u}, v{scl+i}, 0")
                    a(f"v_dot2_f32_bf16 v{acc+2*u+1}, v{w0+4*i+u}, v{sc+i}, 0")
                else:
                    a(f"v_dot2c_f32_bf16 v{acc+2*u}, v{w0+4*i+u}, v{scl+i}")
                    a(f"v_dot2c_f32_bf16 v{acc+2*u+1}, v{w0+4*i+u}, v{sc+i}")
    def ln_finish(s1, s2, t1):
        a(f"v_max_f32 v{s2}, 0, v{s2}")
        bf16r2(s1, s2, s1, s2, t1)
        a(f"v_add_f32 v{s2}, {f32bits(1e-5):#x}, v{s2}")
        bf16r(s2, s2)
        a(f"v_sqrt_f32 v{s2}, v{s2}")
        bf16r(s2, s2)
        a(f"v_rcp_f32 v{s2}, v{s2}")
    a(f"s_waitcnt vmcnt({14+NX})")
    for i in range(4): unpack(SC + 2 * i, SC + 2 * i + 1, CC + i)
    silu_f32(SC, 8, TT)
    for i in range(4): a(f"v_cvt_pk_bf16_f32 v{TT+i}, v{SC+2*i}, v{SC+2*i+1}")
    for i in range(4):
        a(f"v_lshlrev_b32 v{SC+2*i}, 16, v{TT+i}"); a(f"v_and_b32 v{SC+2*i+1}, s83, v{TT+i}")
        a(f"v_and_b32 v{SCL+2*i}, 0xffff, v{TT+i}"); a(f"v_lshrrev_b32 v{SCL+2*i+1}, 16, v{TT+i}")
    a(f"s_waitcnt vmcnt({12+NX})")
    for i in range(4): unpack(XV + 2 * i, XV + 2 * i + 1, XA + i)
    a(f"v_readfirstlane_b32 s14, v{XV}")
    for i in range(8): a(f"v_subrev_f32 v{XV+i}, s14, v{XV+i}")
    a(f"v_add_f32 v{MEAN}, v{XV}, v{XV+1}"); a(f"v_mul_f32 v{RDEN}, v{XV}, v{XV}"); a(f"v_fmac_f32 v{RDEN}, v{XV+1}, v{XV+1}")
    for i in range(2, 8):
        a(f"v_add_f32 v{MEAN}, v{MEAN}, v{XV+i}"); a(f"v_fmac_f32 v{RDEN}, v{XV+i}, v{XV+i}")
    rowreduce("v_add_f32", [MEAN, RDEN], [1, 2, 4, 8])
    bfly("v_add_f32", [MEAN, RDEN], [TA, TB], 16)
    bfly("v_add_f32", [MEAN, RDEN], [TA, TB], 32)
    a(f"v_mul_f32 v{MEAN}, {f32bits(1/512):#x}, v{MEAN}")
    a(f"v_mul_f32 v{RDEN}, {f32bits(1/512):#x}, v{RDEN}")
    a(f"v_fma_f32 v{RDEN}, -v{MEAN}, v{MEAN}, v{RDEN}")
    a(f"v_add_f32 v{MEAN}, s14, v{MEAN}")
    ln_finish(MEAN, RDEN, TA)
    a(f"v_lshlrev_b32 v{XJ}, 16, v{XJ}")
    a(f"v_sub_f32 v{XJ}, v{XJ}, v{MEAN}"); bf16r(XJ, XJ)
    a(f"v_mul_f32 v{XJ}, v{XJ}, v{RDEN}"); bf16r(XJ, XJ)
    a("v_lshrrev_b32 v17, 4, v0"); a("v_lshlrev_b32 v17, 7, v17")
    a("v_and_b32 v18, 3, v0"); a("v_lshl_add_u32 v17, v18, 5, v17")
    a("s_lshl_b32 s12, s3, 9"); a("v_add_u32 v69, s12, v17")
    a("v_and_b32 v4, 31, v0"); a("v_lshlrev_b32 v4, 2, v4")
    a("v_lshrrev_b32 v18, 5, v0"); a("v_lshl_add_u32 v68, v18, 10, v4")
    a("v_lshrrev_b32 v5, 4, v0"); a("v_lshlrev_b32 v5, 2, v5")
    a("v_and_b32 v6, 15, v0"); a("v_lshlrev_b32 v6, 6, v6"); a("v_lshl_add_u32 v6, v5, 2, v6")
    a("v_and_b32 v7, 31, v0"); a("v_lshlrev_b32 v7, 4, v7"); a("v_lshl_add_u32 v7, v18, 11, v7")
    a("v_lshlrev_b32 v19, 12, v0")
    gemv_dot(ACC, WM, 8, SC, SCL, wait=lambda i: a(f"s_waitcnt vmcnt({11-i+NX})"))
    stamp_to(1)
    def sap_publish(flag):
        rowreduce("v_add_f32", list(range(ACC, ACC + 8)), [4, 8])
        setexec("0x000f000f", "0x000f000f")
        a(f"ds_write_b128 v69, v[{ACC}:{ACC+3}] offset:{SAP}")
        a(f"ds_write_b128 v69, v[{ACC+4}:{ACC+7}] offset:{SAP+16}")
        fullexec()
        lds_signal(flag, VZ, VONE)
    def sap_collect():
        for k in range(8): a(f"ds_read_b32 v{TT+k}, v68 offset:{SAP + 128*k}")
        a("s_waitcnt lgkmcnt(0)")
        for k in (0, 2, 4, 6): a(f"v_add_f32 v{TT+k}, v{TT+k}, v{TT+k+1}")
        a(f"v_add_f32 v{TT}, v{TT}, v{TT+2}"); a(f"v_add_f32 v{TT+4}, v{TT+4}, v{TT+6}")
        a(f"v_add_f32 v{TT}, v{TT}, v{TT+4}")
        bfly("v_add_f32", [TT], [TT + 1], 32)
        bf16r(TT, TT)
    sap_publish(F_SA)
    a("s_add_u32 s96, s42, 1")
    a("s_mul_i32 s97, s96, 0x9E3779B1"); a("s_add_u32 s97, s97, 0x7F4A7C15")
    a(f"v_mov_b32 v{TAG}, s96"); a(f"v_mov_b32 v{TAG+1}, s97")
    lds_wait(F_SA, 4, VZ, TA, 14, sleep=0)
    stamp_to(13)
    sap_collect()
    a(f"v_mov_b32 v{TT+1}, v{TT}")
    a(f"v_permlane16_swap_b32 v{TT}, v{TT+1}")
    a(f"v_add_f32 v{TT+1}, 1.0, v{TT+1}"); bf16r(TT + 1, TT + 1)
    a(f"v_mul_f32 v{TT+1}, v{XJ}, v{TT+1}"); bf16r(TT + 1, TT + 1)
    a(f"v_add_f32 v{TT}, v{TT+1}, v{TT}"); bf16r(TT, TT)
    HC = TT + 8; HL = TT + 12
    for i in range(4): a(f"ds_bpermute_b32 v{HC+i}, v5, v{TT} offset:{16*i}")
    a("s_waitcnt lgkmcnt(0)")
    for i in range(4): a(f"v_lshrrev_b32 v{HL+i}, 16, v{HC+i}")
    a(f"s_waitcnt vmcnt({NX})")
    gemv_dot(ACC, WQ, 4, HC, HL)
    for k in range(4): a(f"v_permlane32_swap_b32 v{ACC+k}, v{ACC+4+k}")
    for k in range(4): a(f"v_add_f32 v{ACC+k}, v{ACC+k}, v{ACC+4+k}")
    a(f"v_permlane16_swap_b32 v{ACC}, v{ACC+2}"); a(f"v_permlane16_swap_b32 v{ACC+1}, v{ACC+3}")
    a(f"v_add_f32 v{ACC}, v{ACC}, v{ACC+2}"); a(f"v_add_f32 v{ACC+1}, v{ACC+1}, v{ACC+3}")
    a(f"v_mov_b32 v{ACC+2}, s96"); a(f"v_mov_b32 v{ACC+3}, s97")
    a(f"buffer_store_dwordx4 v[{ACC}:{ACC+3}], v6, s[60:63], s84 offen sc1")
    stamp_to(2)
    a("v_lshrrev_b32 v17, 3, v0")
    a("v_and_b32 v18, 7, v0"); a("v_lshlrev_b32 v18, 4, v18")
    a("v_lshl_add_u32 v4, v17, 13, v18")
    a("v_lshl_add_u32 v6, v17, 10, v18")
    a("s_lshl_b32 s12, s6, 17"); a("s_lshl_b32 s13, s7, 7"); a("s_add_u32 s12, s12, s13")
    a("s_lshl_b32 s13, s3, 11"); a("s_add_u32 s12, s12, s13")
    for i in range(4):
        off = (64 * (i & 1) + (i >> 1)) * 1024
        a(f"s_add_u32 s13, s12, {off}")
        a(f"buffer_load_dwordx4 v[{WOF+4*i}:{WOF+4*i+3}], v4, s[68:71], s13 offen{WT}")
    a("s_cmp_eq_u32 s8, 0"); a("s_cbranch_scc1 L_xnotM")
    a("v_lshrrev_b32 v17, 2, v0"); a("v_mul_u32_u24 v5, 3584, v17")
    a("v_and_b32 v18, 3, v0"); a("v_lshl_add_u32 v5, v18, 4, v5")
    a(f"s_mul_i32 s12, s3, {128*3584}"); a("s_lshl_b32 s13, s9, 6"); a("s_add_u32 s12, s12, s13")
    for i in range(8):
        a(f"buffer_load_dwordx4 v[{W1F+4*i}:{W1F+4*i+3}], v5, s[72:75], s12 offen{WMF}")
        if i < 7: a(f"s_add_u32 s12, s12, {16*3584}")
    a("s_lshl_b32 s12, s9, 15"); a("s_lshl_b32 s13, s3, 8"); a("s_add_u32 s12, s12, s13")
    for hh in range(2):
        for i in range(4):
            a(f"s_add_u32 s13, s12, {8192*i}")
            a(f"buffer_load_dwordx4 v[{W2F+16*hh+4*i}:{W2F+16*hh+4*i+3}], v6, s[76:79], s13 offen offset:{128*hh}{WT}")
    a("v_and_b32 v5, 31, v0"); a("v_lshlrev_b32 v5, 3, v5"); a("s_lshl_b32 s12, s3, 8")
    a(f"buffer_load_dwordx2 v[{XQR}:{XQR+1}], v5, s[44:47], s12 offen")
    a("s_branch L_xdone")
    a.label("L_xnotM")
    a("s_cmp_lt_u32 s2, 192"); a("s_cbranch_scc1 L_xdone")
    a("v_lshrrev_b32 v17, 2, v0"); a("v_mul_u32_u24 v5, 49152, v17")
    a("v_and_b32 v18, 3, v0"); a("v_lshl_add_u32 v5, v18, 4, v5")
    a("s_lshl_b32 s12, s10, 6"); a("s_add_u32 s12, s12, s99"); a("s_add_u32 s12, s12, 2048")
    for i in range(8):
        a(f"buffer_load_dwordx4 v[{W1F+4*i}:{W1F+4*i+3}], v5, s[52:55], s12 offen{WMF}")
        if i < 7: a("s_add_u32 s12, s12, 6144")
    a.label("L_xdone")
    for r in range(8, 12): a(f"v_mov_b32 v{r}, -1")
    setexec(-1, 0)
    a("buffer_store_dwordx4 v[8:11], v1, s[60:63], s85 offen sc1")
    a("s_cmp_eq_u32 s8, 0"); a("s_cbranch_scc1 L_nz")
    a("buffer_store_dwordx4 v[8:11], v1, s[60:63], s88 offen sc1")
    a.label("L_nz")
    setexec("0xf", 0)
    a("buffer_store_dwordx4 v[8:11], v1, s[60:63], s87 offen sc1")
    setexec(1, 0)
    a("buffer_store_dword v8, v1, s[60:63], s85 offen offset:512 sc1")
    fullexec()
    stamp_to(9, True)
    a("s_lshl_b32 s98, s4, 17"); a("s_lshl_b32 s13, s3, 10"); a("s_add_u32 s98, s98, s13"); a(f"s_add_u32 s98, s98, {QP}")
    a("v_lshlrev_b32 v18, 2, v0"); a("s_lshl_b32 s12, s3, 8"); a("v_add_u32 v18, s12, v18")
    if cfg.get("qdelay", 0): a(f"s_sleep {cfg['qdelay']}")
    a(f"s_mov_b32 s15, {TMO}")
    setexec(-1, 0)
    a.label("L_Qp")
    a(f"buffer_load_dwordx2 v[{G}:{G+1}], v19, s[60:63], s98 offen offset:1016 sc1")
    a("s_sub_u32 s15, s15, 1"); a("s_cbranch_scc1 L_end")
    a("s_waitcnt vmcnt(0)")
    a(f"v_cmp_ne_u64 vcc, v[{G}:{G+1}], v[{TAG}:{TAG+1}]")
    a("s_cbranch_vccz L_Qg")
    if cfg.get("qsleep", 2): a(f"s_sleep {cfg.get('qsleep', 2)}")
    a("s_branch L_Qp")
    a.label("L_Qg")
    fullexec()
    stamp_to(14)
    QQ = [G + 4 * i for i in range(16)] + [20 + 4 * i for i in range(12)] + [70, 74, ACC, ACC + 4]
    a.label("L_Q")
    a("s_mov_b32 s12, s98")
    QN = cfg.get("qn", 32)
    for i in range(QN):
        a(f"buffer_load_dwordx4 v[{QQ[i]}:{QQ[i]+3}], v1, s[60:63], s12 offen sc1")
        if i < QN - 1: a("s_add_u32 s12, s12, 4096")
    a("s_sub_u32 s15, s15, 1"); a("s_cbranch_scc1 L_end")
    a("s_mov_b64 s[80:81], 0")
    for i in range(QN):
        a(f"s_waitcnt vmcnt({QN-1-i})")
        a(f"v_cmp_ne_u64 vcc, v[{QQ[i]+2}:{QQ[i]+3}], v[{TAG}:{TAG+1}]")
        if i >= 2:
            j = QQ[i % 2]
            a(f"v_pk_add_f32 v[{j}:{j+1}], v[{j}:{j+1}], v[{QQ[i]}:{QQ[i]+1}]")
        a("s_or_b64 s[80:81], s[80:81], vcc")
    a("s_cmp_lg_u64 s[80:81], 0")
    a("s_cbranch_scc1 L_Q")
    a(f"v_pk_add_f32 v[{G}:{G+1}], v[{G}:{G+1}], v[{G+4}:{G+5}]")
    a(f"v_cvt_pk_bf16_f32 v{G+4}, v{G}, v{G+1}")
    a(f"ds_write_b32 v18, v{G+4} offset:{QL}")
    lds_signal(F_Q, VZ, VONE)
    stamp_to(4)

    a("s_cmp_lt_u32 s2, 192"); a("s_cbranch_scc1 L_nomod2")
    lds_wait(F_Q, 4, VZ, TA, 14, sleep=1)
    a("s_waitcnt vmcnt(0)")
    gemv_dot(ACC, W1F, 8, SC, SCL)
    sap_publish(F_SA2)
    a("s_cmp_lg_u32 s3, 0"); a("s_cbranch_scc1 L_nomod2")
    lds_wait(F_SA2, 4, VZ, TA, 14, sleep=1)
    sap_collect()
    a("v_lshlrev_b32 v4, 2, v0")
    setexec(-1, 0)
    a(f"buffer_store_dword v{TT}, v4, s[60:63], s89 offen sc1")
    fullexec()
    a.label("L_nomod2")
    a("s_lshl_b32 s12, s3, 12")
    a("v_add_u32 v19, s12, v1")
    a("v_lshrrev_b32 v17, 4, v0"); a("v_and_b32 v18, 15, v0"); a("v_lshl_add_u32 v18, v18, 1, s12")
    a("v_lshl_add_u32 v4, v17, 10, v18")
    a("v_lshl_add_u32 v5, v17, 9, v18")
    a("v_lshlrev_b32 v17, 4, v17")
    def transpose4(dst, rb):
        for q in range(4): a(f"ds_write_b128 v19, v[{dst+4*q}:{dst+4*q+3}] offset:{STG + 1024*q}")
        for f in range(4):
            for e in range(8):
                if rb == 128: off = e * 128 + f * 32; vb = 4
                else: off = (f >> 1) * 2048 + e * 64 + (f & 1) * 32; vb = 5
                a(f"ds_read_u16 v{G+8*f+e}, v{vb} offset:{STG + off}")
            if f == 1: a("s_waitcnt lgkmcnt(4)")
        a("s_waitcnt lgkmcnt(0)")
        for f in range(4):
            for q in range(4): a(f"v_lshl_or_b32 v{dst+4*f+q}, v{G+8*f+2*q+1}, 16, v{G+8*f+2*q}")
    a("s_waitcnt vmcnt(0)")
    stamp_to(10, True)
    setexec(1, 0)
    a(f"ds_add_rtn_u32 v{TA}, v{VZ}, v{VONE} offset:{F_RST}")
    a("s_waitcnt lgkmcnt(0)")
    a(f"v_readfirstlane_b32 s14, v{TA}")
    a("s_cmp_lg_u32 s14, 3"); a("s_cbranch_scc1 L_narr")
    a(f"v_mov_b32 v{TA}, 1")
    a(f"buffer_atomic_add v{TA}, v{VZ}, s[64:67], 0 offen sc0 sc1")
    a("s_waitcnt vmcnt(0)")
    a(f"v_readfirstlane_b32 s14, v{TA}")
    a("s_cmp_lg_u32 s14, 255"); a("s_cbranch_scc1 L_narr")
    a(f"buffer_store_dword v{VONE}, v{VZ}, s[64:67], 0 offen offset:128 sc1")
    a.label("L_narr")
    fullexec()
    stamp_to(11, True)
    transpose4(WOF, 128)
    a("s_cmp_eq_u32 s8, 0"); a("s_cbranch_scc1 L_notM05")
    transpose4(W1F, 64); transpose4(W1F + 16, 64)
    transpose4(W2F, 128); transpose4(W2F + 16, 128)
    a.label("L_notM05")
    a("s_cmp_lg_u32 s3, 0"); a("s_cbranch_scc1 L_gow")
    a(f"s_mov_b32 s15, {TMO}")
    setexec(1, 0)
    a.label("L_go")
    a(f"s_sleep {cfg.get('gosleep', 32)}")
    a(f"buffer_load_dword v{TA}, v{VZ}, s[64:67], 0 offen offset:128 sc1")
    a("s_sub_u32 s15, s15, 1"); a("s_cbranch_scc1 L_end")
    a("s_waitcnt vmcnt(0)")
    a(f"v_readfirstlane_b32 s14, v{TA}")
    a("s_cmp_eq_u32 s14, 0"); a("s_cbranch_scc1 L_go")
    a(f"ds_add_u32 v{VZ}, v{VONE} offset:{F_GO}")
    fullexec()
    a.label("L_gow")
    lds_wait(F_GO, 1, VZ, TA, 14, sleep=8)
    stamp_to(3)
    a("s_cmp_eq_u32 s8, 0"); a("s_cbranch_scc1 L_notM1")
    unpack(XQ, XQ + 1, XQR); unpack(XQ + 2, XQ + 3, XQR + 1)
    a("v_and_b32 v4, 31, v0"); a("v_lshlrev_b32 v4, 4, v4"); a("s_lshl_b32 s12, s3, 9"); a("v_add_u32 v4, s12, v4")
    a("v_and_b32 v6, 3, v0"); a("v_lshlrev_b32 v6, 4, v6")
    a("s_lshl_b32 s12, s4, 8"); a("s_lshl_b32 s13, s3, 6"); a("s_add_u32 s12, s12, s13"); a("v_add_u32 v6, s12, v6")
    a(f"s_mov_b32 s12, {MOD2}"); a(f"s_mov_b32 s13, {MOD2 + 4096}")
    a(f"buffer_load_dwordx4 v[{GA}:{GA+3}], v4, s[60:63], s12 offen sc1")
    a(f"buffer_load_dwordx4 v[{SBV}:{SBV+3}], v4, s[60:63], s12 offen offset:2048 sc1")
    a(f"buffer_load_dwordx4 v[{CB1}:{CB1+3}], v4, s[60:63], s13 offen sc1")
    a(f"buffer_load_dwordx4 v[{GB}:{GB+3}], v6, s[60:63], s13 offen offset:2048 sc1")
    a("s_waitcnt vmcnt(0)")
    for i in range(4): a(f"v_add_f32 v{CB1+i}, 1.0, v{CB1+i}")
    bf16rn(CB1, 4, TA)
    a.label("L_notM1")
    stamp_to(8)

    def pk_sum_quads(dst, n):
        step = 1
        while step < n:
            for i in range(0, n, 2 * step):
                if i + step < n:
                    for k in (0, 2):
                        a(f"v_pk_add_f32 v[{dst+4*i+k}:{dst+4*i+k+1}], v[{dst+4*i+k}:{dst+4*i+k+1}], v[{dst+4*(i+step)+k}:{dst+4*(i+step)+k+1}]")
            step *= 2
    def gather_sum(n, dst, vaddr, sbase, stride, chk, extra=None, fix=None, nq=None, sleep=0, name="G"):
        L = a.newlabel("L" + name); Lok = a.newlabel("L" + name + "ok")
        a(f"s_mov_b32 s15, {TMO}")
        a.label(L)
        a(f"s_mov_b32 s12, s{sbase}")
        for i in range(n):
            a(f"buffer_load_dwordx4 v[{dst+4*i}:{dst+4*i+3}], v{vaddr}, s[60:63], s12 offen sc1")
            if i < n - 1: a(f"s_add_u32 s12, s12, {stride}")
        if extra: extra()
        a("s_waitcnt vmcnt(0)")
        if fix: fix()
        pk_sum_quads(dst, nq or n)
        a(f"v_pk_add_f32 v[{chk}:{chk+1}], v[{dst}:{dst+1}], v[{dst+2}:{dst+3}]")
        a("s_sub_u32 s15, s15, 1")
        a(f"v_cmp_u_f32 vcc, v{chk}, v{chk+1}")
        a(f"s_cbranch_scc1 {Lok}")
        if sleep:
            a(f"s_cbranch_vccz {Lok}"); a(f"s_sleep {sleep}"); a(f"s_branch {L}")
        else:
            a(f"s_cbranch_vccnz {L}")
        a.label(Lok)
    def gather_chk(loads, regs, chk, sleep=0, name="C"):
        L = a.newlabel("L" + name); Lok = a.newlabel("L" + name + "ok")
        a(f"s_mov_b32 s15, {TMO}")
        a.label(L)
        loads()
        a("s_sub_u32 s15, s15, 1"); a("s_cbranch_scc1 L_end")
        a("s_waitcnt vmcnt(0)")
        c0, c1 = chk, chk + 1
        a(f"v_max3_u32 v{c0}, v{regs[0]}, v{regs[1]}, v{regs[2]}")
        a(f"v_max3_u32 v{c1}, v{regs[3]}, v{regs[4]}, v{regs[5]}")
        rest = regs[6:]; k = 0
        while rest:
            c = c0 if k % 2 == 0 else c1
            if len(rest) >= 2:
                a(f"v_max3_u32 v{c}, v{c}, v{rest[0]}, v{rest[1]}"); rest = rest[2:]
            else:
                a(f"v_max_u32 v{c}, v{c}, v{rest[0]}"); rest = rest[1:]
            k += 1
        a(f"v_max_u32 v{c0}, v{c0}, v{c1}")
        a(f"v_cmp_eq_u32 vcc, -1, v{c0}")
        if sleep:
            a(f"s_cbranch_vccz {Lok}"); a(f"s_sleep {sleep}"); a(f"s_branch {L}")
        else:
            a(f"s_cbranch_vccnz {L}")
        a.label(Lok)

    a("s_lshl_b32 s12, s3, 9"); a("v_add_u32 v18, s12, v7")
    a("s_lshl_b32 s12, s3, 5"); a("v_mov_b32 v69, s12")
    a("v_cmp_le_u32 s[80:81], 32, v0")
    a("v_lshrrev_b32 v8, 3, v0"); a("v_mul_u32_u24 v9, 640, v8")
    a("v_and_b32 v10, 7, v0"); a("v_lshl_add_u32 v8, v10, 4, v9")
    a("s_lshl_b32 s13, s3, 7"); a("v_add_u32 v8, s13, v8")
    a("s_lshl_b32 s12, s3, 6"); a("v_lshl_add_u32 v10, v0, 3, s12")
    a("v_add_u32 v11, s12, v17")
    a("s_lshl_b32 s12, s3, 8"); a("v_add_u32 v12, s12, v17")
    a("s_lshl_b32 s12, s3, 6"); a("v_add_u32 v13, s12, v1")
    a(f"s_mul_i32 s52, s6, {32*640}"); a(f"s_add_u32 s52, s52, {R1}")
    a(f"s_add_u32 s53, s52, {8*640}"); a(f"s_add_u32 s54, s52, {16*640}"); a(f"s_add_u32 s55, s52, {24*640}")
    a("s_lshl_b32 s56, s3, 9"); a(f"s_add_u32 s56, s56, {YO}")
    a("s_lshl_b32 s57, s4, 8"); a("s_lshl_b32 s13, s3, 6"); a("s_add_u32 s57, s57, s13"); a(f"s_add_u32 s57, s57, {ZO}")
    a("s_lshl_b32 s12, s3, 8"); a("v_lshl_add_u32 v14, v0, 3, s12")
    a("s_lshl_b32 s12, s3, 3"); a("v_mov_b32 v15, s12")
    a("s_lshl_b32 s12, s3, 7"); a("v_add_u32 v16, s12, v17")
    a("v_lshlrev_b32 v4, 1, v17")
    lds_wait(F_SP, 4, VZ, TA, 14, sleep=cfg.get("spsleep", 1))
    a("s_setprio 3")
    stamp_to(5)
    MLR = 20; OA_ = 28; OB_ = 32
    a(f"ds_read_b128 v[{MLR}:{MLR+3}], v69 offset:{ML}")
    a(f"ds_read_b128 v[{MLR+4}:{MLR+7}], v69 offset:{ML+16}")
    a(f"ds_read_b128 v[{OA_}:{OA_+3}], v18 offset:{SP}")
    a(f"ds_read_b128 v[{OB_}:{OB_+3}], v18 offset:{SP+4096}")
    a("s_waitcnt lgkmcnt(2)")
    a(f"v_max3_f32 v36, v{MLR}, v{MLR+2}, v{MLR+4}"); a(f"v_max_f32 v36, v36, v{MLR+6}")
    for w in range(4): a(f"v_sub_f32 v{MLR+2*w}, v{MLR+2*w}, v36")
    for w in range(4): a(f"v_exp_f32 v{MLR+2*w}, v{MLR+2*w}")
    a(f"v_mul_f32 v37, v{MLR}, v{MLR+1}")
    for w in range(1, 4): a(f"v_fmac_f32 v37, v{MLR+2*w}, v{MLR+2*w+1}")
    a(f"v_cndmask_b32 v38, v{MLR}, v{MLR+2}, s[80:81]")
    a(f"v_cndmask_b32 v39, v{MLR+4}, v{MLR+6}, s[80:81]")
    a("v_rcp_f32 v40, v37"); a("v_log_f32 v41, v37")
    a("s_waitcnt lgkmcnt(0)")
    a("v_mul_f32 v38, v38, v40"); a("v_mul_f32 v39, v39, v40")
    a("v_add_f32 v41, v41, v36")
    for k in range(4): a(f"v_mul_f32 v{OA_+k}, v{OA_+k}, v38")
    for k in range(4): a(f"v_fmac_f32 v{OA_+k}, v{OB_+k}, v39")
    bfly("v_add_f32", [OA_, OA_ + 1, OA_ + 2, OA_ + 3], [OB_, OB_ + 1, OB_ + 2, OB_ + 3], 32)
    setexec(-1, 0)
    a(f"buffer_store_dwordx4 v[{OA_}:{OA_+3}], v1, s[60:63], s85 offen sc1")
    setexec(1, 0)
    a("buffer_store_dword v41, v2, s[60:63], s85 offen offset:512 sc1")
    fullexec()

    LS = 44
    def wloads():
        for i in range(4):
            a(f"buffer_load_dwordx4 v[{G+4*i}:{G+4*i+3}], v8, s[60:63], s{52+i} offen sc1")
        for i in range(4):
            a(f"buffer_load_dword v{LS+i}, v9, s[60:63], s{52+i} offen offset:512 sc1")
    gather_chk(wloads, list(range(G, G + 16)) + [LS, LS + 1, LS + 2, LS + 3], TA, sleep=cfg.get("wsleep", 0), name="W")
    stamp_to(6)
    a(f"v_max3_f32 v36, v{LS}, v{LS+1}, v{LS+2}"); a(f"v_max_f32 v36, v36, v{LS+3}")
    rowreduce("v_max_f32", [36], [8])
    bfly("v_max_f32", [36], [37], 16); bfly("v_max_f32", [36], [37], 32)
    for i in range(4): a(f"v_sub_f32 v{LS+i}, v{LS+i}, v36")
    for i in range(4): a(f"v_exp_f32 v{LS+i}, v{LS+i}")
    for k in range(4): a(f"v_mul_f32 v{G+k}, v{G+k}, v{LS}")
    for i in range(1, 4):
        for k in range(4): a(f"v_fmac_f32 v{G+k}, v{G+4*i+k}, v{LS+i}")
    a(f"v_add_f32 v{G+4}, v{LS}, v{LS+1}"); a(f"v_add_f32 v{G+5}, v{LS+2}, v{LS+3}"); a(f"v_add_f32 v{G+4}, v{G+4}, v{G+5}")
    five = [G, G + 1, G + 2, G + 3, G + 4]; five_t = [G + 8, G + 9, G + 10, G + 11, G + 12]
    rowreduce("v_add_f32", five, [8])
    bfly("v_add_f32", five, five_t, 16); bfly("v_add_f32", five, five_t, 32)
    a(f"v_rcp_f32 v{G+4}, v{G+4}")
    for k in range(4): a(f"v_mul_f32 v{G+k}, v{G+k}, v{G+4}")
    a(f"v_cvt_pk_bf16_f32 v{G+6}, v{G}, v{G+1}"); a(f"v_cvt_pk_bf16_f32 v{G+7}, v{G+2}, v{G+3}")
    setexec("0xff", 0)
    a(f"ds_write_b64 v10, v[{G+6}:{G+7}] offset:{OL}")
    fullexec()
    a(f"ds_read_b128 v[{G+16}:{G+19}], v11 offset:{OL}")
    a("s_waitcnt lgkmcnt(0)")
    for ct in range(4):
        a(f"v_mfma_f32_16x16x32_bf16 v[{G+4*ct}:{G+4*ct+3}], v[{WOF+4*ct}:{WOF+4*ct+3}], v[{G+16}:{G+19}], 0")
    setexec("0x00010001", "0x00010001")
    for ct in range(4): a(f"ds_write_b128 v12, v[{G+4*ct}:{G+4*ct+3}] offset:{YPL + 64*ct}")
    lds_signal(F_O, VZ, VONE)
    lds_wait(F_O, 4, VZ, TA, 14, sleep=0)
    setexec("0xf", 0)
    for w in range(4): a(f"ds_read_b128 v[{G+4*w}:{G+4*w+3}], v13 offset:{YPL + 256*w}")
    a("s_waitcnt lgkmcnt(0)")
    pk_sum_quads(G, 4)
    a(f"buffer_store_dwordx4 v[{G}:{G+3}], v1, s[60:63], s87 offen sc1")
    fullexec()
    stamp_to(7)
    a("s_cmp_eq_u32 s8, 0"); a("s_cbranch_scc1 L_end")

    gather_sum(16, G, 7, 56, 4096, TA, sleep=cfg.get("ysleep", 0), name="Y")
    stamp_to(9)
    bfly("v_add_f32", [G, G + 1, G + 2, G + 3], [G + 4, G + 5, G + 6, G + 7], 32)
    bf16rn(G, 4, G + 4)
    for k in range(4): a(f"v_mul_f32 v{G+k}, v{G+k}, v{GA+k}")
    bf16rn(G, 4, G + 4)
    for k in range(4): a(f"v_add_f32 v{G+k}, v{G+k}, v{XQ+k}")
    a(f"v_cvt_pk_bf16_f32 v{G+4}, v{G}, v{G+1}"); a(f"v_cvt_pk_bf16_f32 v{G+5}, v{G+2}, v{G+3}")
    unpack(XV, XV + 1, G + 4); unpack(XV + 2, XV + 3, G + 5)
    setexec(-1, 0)
    a(f"ds_write_b64 v14, v[{G+4}:{G+5}] offset:{X1L}")
    fullexec()
    a(f"v_readfirstlane_b32 s14, v{XV}")
    for k in range(4): a(f"v_subrev_f32 v{G+k}, s14, v{XV+k}")
    S1 = G + 6; S2 = G + 7
    a(f"v_add_f32 v{S1}, v{G}, v{G+1}"); a(f"v_mul_f32 v{S2}, v{G}, v{G}"); a(f"v_fmac_f32 v{S2}, v{G+1}, v{G+1}")
    a(f"v_add_f32 v{S1}, v{S1}, v{G+2}"); a(f"v_fmac_f32 v{S2}, v{G+2}, v{G+2}")
    a(f"v_add_f32 v{S1}, v{S1}, v{G+3}"); a(f"v_fmac_f32 v{S2}, v{G+3}, v{G+3}")
    rowreduce("v_add_f32", [S1, S2], [1, 2, 4, 8])
    bfly("v_add_f32", [S1, S2], [G + 8, G + 9], 16)
    a(f"v_mul_f32 v{G+8}, {f32bits(1/128):#x}, v{S1}")
    a(f"v_fma_f32 v{S2}, -v{G+8}, v{S1}, v{S2}")
    a(f"v_add_f32 v{S1}, s14, v{G+8}")
    setexec(1, 0)
    a(f"ds_write_b64 v15, v[{S1}:{S2}] offset:{STL}")
    a("s_waitcnt lgkmcnt(0)")
    a(f"ds_add_u32 v{VZ}, v{VONE} offset:{F_X1}")
    fullexec()
    lds_wait(F_X1, 4, VZ, TA, 14, sleep=0)
    a(f"ds_read_b128 v[{G}:{G+3}], v{VZ} offset:{STL}")
    a(f"ds_read_b128 v[{G+4}:{G+7}], v{VZ} offset:{STL+16}")
    a("s_waitcnt lgkmcnt(0)")
    a(f"v_add_f32 v{MEAN}, v{G}, v{G+2}"); a(f"v_add_f32 v{TA}, v{G+4}, v{G+6}")
    a(f"v_add_f32 v{RDEN}, v{G+1}, v{G+3}"); a(f"v_add_f32 v{TB}, v{G+5}, v{G+7}")
    a(f"v_add_f32 v{MEAN}, v{MEAN}, v{TA}"); a(f"v_add_f32 v{RDEN}, v{RDEN}, v{TB}")
    a(f"v_mul_f32 v{MEAN}, {f32bits(0.25):#x}, v{MEAN}")
    for w in range(4): a(f"v_sub_f32 v{G+2*w}, v{G+2*w}, v{MEAN}")
    a(f"v_mul_f32 v{TA}, v{G}, v{G}"); a(f"v_mul_f32 v{TB}, v{G+2}, v{G+2}")
    a(f"v_fmac_f32 v{TA}, v{G+4}, v{G+4}"); a(f"v_fmac_f32 v{TB}, v{G+6}, v{G+6}")
    a(f"v_add_f32 v{TA}, v{TA}, v{TB}")
    a(f"v_mul_f32 v{RDEN}, {f32bits(1/512):#x}, v{RDEN}")
    a(f"v_fmac_f32 v{RDEN}, {f32bits(0.25):#x}, v{TA}")
    ln_finish(MEAN, RDEN, TA)
    for i in range(4): a(f"v_sub_f32 v{XV+i}, v{XV+i}, v{MEAN}")
    bf16rn(XV, 4, G)
    for i in range(4): a(f"v_mul_f32 v{XV+i}, v{XV+i}, v{RDEN}")
    bf16rn(XV, 4, G)
    for i in range(4): a(f"v_mul_f32 v{XV+i}, v{XV+i}, v{CB1+i}")
    bf16rn(XV, 4, G)
    for i in range(4): a(f"v_add_f32 v{XV+i}, v{XV+i}, v{SBV+i}")
    a(f"v_cvt_pk_bf16_f32 v{G}, v{XV}, v{XV+1}"); a(f"v_cvt_pk_bf16_f32 v{G+1}, v{XV+2}, v{XV+3}")
    setexec(-1, 0)
    a(f"ds_write_b64 v14, v[{G}:{G+1}] offset:{H2L}")
    fullexec()
    for ks in range(4): a(f"ds_read_b128 v[{G+16+4*ks}:{G+19+4*ks}], v12 offset:{H2L + 64*ks}")
    for ks in range(4):
        a(f"s_waitcnt lgkmcnt({3-ks})")
        for ct in range(2):
            acc = G + 4 + 4 * ct
            c = "0" if ks == 0 else f"v[{acc}:{acc+3}]"
            f = W1F + 4 * (2 * ks + ct)
            a(f"v_mfma_f32_16x16x32_bf16 v[{acc}:{acc+3}], v[{f}:{f+3}], v[{G+16+4*ks}:{G+19+4*ks}], {c}")
    setexec("0x00010001", "0x00010001")
    a(f"ds_write_b128 v16, v[{G+4}:{G+7}] offset:{A1L}")
    a(f"ds_write_b128 v16, v[{G+8}:{G+11}] offset:{A1L+64}")
    lds_signal(F_A1, VZ, VONE)
    lds_wait(F_A1, 4, VZ, TA, 14, sleep=0)
    for w in range(4):
        a(f"ds_read_b128 v[{G+8*w}:{G+8*w+3}], v4 offset:{A1L + 128*w}")
        a(f"ds_read_b128 v[{G+8*w+4}:{G+8*w+7}], v4 offset:{A1L + 128*w + 16}")
    a("s_waitcnt lgkmcnt(4)")
    for i in range(0, 8, 2): a(f"v_pk_add_f32 v[{G+i}:{G+i+1}], v[{G+i}:{G+i+1}], v[{G+8+i}:{G+9+i}]")
    a("s_waitcnt lgkmcnt(0)")
    for i in range(0, 8, 2): a(f"v_pk_add_f32 v[{G+16+i}:{G+17+i}], v[{G+16+i}:{G+17+i}], v[{G+24+i}:{G+25+i}]")
    for i in range(0, 8, 2): a(f"v_pk_add_f32 v[{G+i}:{G+i+1}], v[{G+i}:{G+i+1}], v[{G+16+i}:{G+17+i}]")
    bf16rn(G, 8, G + 8)
    silu_f32(G, 8, G + 8)
    for i in range(4): a(f"v_cvt_pk_bf16_f32 v{G+16+i}, v{G+2*i}, v{G+2*i+1}")
    ZD = G + 20
    for u in range(8):
        a(f"v_mfma_f32_16x16x32_bf16 v[{ZD+4*u}:{ZD+4*u+3}], v[{W2F+4*u}:{W2F+4*u+3}], v[{G+16}:{G+19}], 0")
    setexec("0x00010001", "0x00010001")
    for u in range(8):
        a(f"buffer_store_dwordx4 v[{ZD+4*u}:{ZD+4*u+3}], v17, s[60:63], s88 offen offset:{64*u} sc1")
    fullexec()
    stamp_to(10)
    a("s_cmp_ge_u32 s2, 8"); a("s_cbranch_scc1 L_end")

    a("v_lshrrev_b32 v8, 2, v0"); a("v_lshlrev_b32 v18, 11, v8")
    a("v_and_b32 v9, 3, v0"); a("v_lshl_add_u32 v18, v9, 4, v18")
    a("v_and_b32 v8, 7, v8"); a("v_lshlrev_b32 v10, 11, v8"); a("v_lshl_add_u32 v10, v9, 4, v10")
    a("s_lshl_b32 s12, s4, 7"); a("s_lshl_b32 s13, s3, 5"); a("s_add_u32 s14, s12, s13")
    a("v_lshlrev_b32 v9, 3, v9"); a("v_add_u32 v9, s14, v9")
    a(f"ds_read_b64 v[{XQ+2}:{XQ+3}], v9 offset:{X1L}")
    srd(44, 90, 1024)
    def zextra():
        a("s_add_u32 s12, s12, 32768")
        a(f"buffer_load_dwordx4 v[{G+12}:{G+15}], v10, s[60:63], s12 offen sc1")
    def zfix():
        setexec(0, -1)
        for k in range(4): a(f"v_mov_b32 v{G+12+k}, 0")
        fullexec()
    gather_sum(3, G, 18, 57, 32768, TA, extra=zextra, fix=zfix, nq=4, name="Z")
    four = [G, G + 1, G + 2, G + 3]; four_t = [G + 4, G + 5, G + 6, G + 7]
    rowreduce("v_add_f32", four, [4, 8])
    bfly("v_add_f32", four, four_t, 16); bfly("v_add_f32", four, four_t, 32)
    a("s_waitcnt lgkmcnt(0)")
    unpack(XQ, XQ + 1, XQ + 2); unpack(XQ + 2, XQ + 3, XQ + 3)
    bf16rn(G, 4, G + 4)
    for k in range(4): a(f"v_mul_f32 v{G+k}, v{G+k}, v{GB+k}")
    bf16rn(G, 4, G + 4)
    for k in range(4): a(f"v_add_f32 v{G+k}, v{G+k}, v{XQ+k}")
    a(f"v_cvt_pk_bf16_f32 v{G+4}, v{G}, v{G+1}"); a(f"v_cvt_pk_bf16_f32 v{G+5}, v{G+2}, v{G+3}")
    setexec("0xf", 0)
    a(f"buffer_store_dwordx2 v[{G+4}:{G+5}], v9, s[44:47], 0 offen")
    a("s_or_b32 s12, s2, s3"); a("s_cmp_lg_u32 s12, 0"); a("s_cbranch_scc1 L_noep")
    setexec(1, 0)
    a(f"buffer_store_dword v{TAG}, v{VZ}, s[60:63], 0 offen offset:{EPOCH} sc1")
    a.label("L_noep")
    fullexec()
    stamp_to(11)
    a.label("L_end")
    if stamp:
        fullexec()
        stamp_to(15)
        for i in range(16): a(f"v_writelane_b32 v2, s{16+i}, {i}")
        a("v_mbcnt_lo_u32_b32 v3, -1, 0"); a("v_lshlrev_b32 v3, 2, v3")
        setexec("0xffff", 0)
        a("buffer_store_dword v2, v3, s[60:63], s94 offen")
    a.label("L_exit")
    a("s_endpgm")
    a.raw('.section .rodata,"a"')
    a.raw(".p2align 6")
    a.raw(f".amdhsa_kernel {NAME}_kernel")
    a.raw("  .amdhsa_next_free_vgpr 256")
    a.raw("  .amdhsa_next_free_sgpr 100")
    a.raw("  .amdhsa_accum_offset 256")
    a.raw("  .amdhsa_group_segment_fixed_size 0")
    a.raw("  .amdhsa_kernarg_size 104")
    a.raw("  .amdhsa_user_sgpr_count 2")
    a.raw("  .amdhsa_user_sgpr_kernarg_segment_ptr 1")
    a.raw("  .amdhsa_system_sgpr_workgroup_id_x 1")
    a.raw(".end_amdhsa_kernel")
    assert a.maxv <= 256 and a.maxs <= 100, (a.maxv, a.maxs)
    return a.text()

if __name__ == "__main__":
    import json
    out = sys.argv[1]
    cfg = json.loads(sys.argv[2]) if len(sys.argv) > 2 else {}
    open(out, "w").write(gen(cfg))
```

```python
import sys, struct
from dsl import Asm
NAME = "adaLN_cond__gqa_block_cached__dense_activation_silu__decode"

EPOCH = 0
QP = 0x1000
R1 = 0x101000
YO = 0x1A1000
ZO = 0x1B1000
MOD2 = 0x1CD000
WS_END = 0x1CF000
DBGWS = 0x200000
F_SA, F_Q, F_SP, F_O, F_X1, F_A1, F_RST, F_GO, F_SA2, F_TK = 0, 4, 8, 12, 16, 20, 24, 28, 32, 64
SAP = 256
QL = 2304
ML = 3328
OL = 3456
X1L = 3712
STL = 4736
YPL = 4864
A1L = 5888
H2L = 6400
SP = 8192
STG = 16384
KVL = 32768
LOG2E = 0x3fb8aa3b
SCALE = 0x3db504f3
OOB = 0x10000000

def f32bits(x): return struct.unpack("<I", struct.pack("<f", x))[0]

def gen(cfg):
    a = Asm()
    def fl(name, d):
        v = cfg.get(name, d); return (" " + v) if v else ""
    KF = fl("kflags", "nt"); VF = fl("vflags", "nt"); WT = fl("wflags", "nt"); WMF = fl("wmflags", "")
    NTW = 64
    TMO = cfg.get("timeout", 1 << 15)
    lds_req = cfg.get("lds", 163840)
    stamp = cfg.get("stamp", False)
    Wp = cfg.get("wp", 8)
    a.raw(f"; @launch grid=(256,1,1) block=(512,1,1) lds={lds_req}")
    a.raw('.amdgcn_target "amdgcn-amd-amdhsa--gfx950"')
    a.raw(".text")
    a.raw(f".globl {NAME}_kernel")
    a.raw(".p2align 8")
    a.raw(f".type {NAME}_kernel,@function")
    a.raw(f"{NAME}_kernel:")

    def srd(d, p, size):
        a(f"s_mov_b32 s{d}, s{p}"); a(f"s_mov_b32 s{d+1}, s{p+1}")
        a(f"s_mov_b32 s{d+2}, {size:#x}"); a(f"s_mov_b32 s{d+3}, 0x20000")
    def setexec(lo, hi):
        a(f"s_mov_b32 exec_lo, {lo}"); a(f"s_mov_b32 exec_hi, {hi}")
    def fullexec(): a("s_mov_b64 exec, -1")
    def bf16r(d, s):
        a(f"v_cvt_pk_bf16_f32 v{d}, v{s}, v{s}"); a(f"v_lshlrev_b32 v{d}, 16, v{d}")
    def bf16r2(d0, d1, s0, s1, t):
        a(f"v_cvt_pk_bf16_f32 v{t}, v{s0}, v{s1}")
        a(f"v_lshlrev_b32 v{d0}, 16, v{t}"); a(f"v_and_b32 v{d1}, s83, v{t}")
    def bf16rn(r, n, t):
        for i in range(0, n, 2): a(f"v_cvt_pk_bf16_f32 v{t+i//2}, v{r+i}, v{r+i+1}")
        for i in range(0, n, 2):
            a(f"v_lshlrev_b32 v{r+i}, 16, v{t+i//2}"); a(f"v_and_b32 v{r+i+1}, s83, v{t+i//2}")
    def unpack(d0, d1, s):
        a(f"v_lshlrev_b32 v{d0}, 16, v{s}"); a(f"v_and_b32 v{d1}, s83, v{s}")
    def rowreduce(op, regs, rors):
        for k in rors:
            for r in regs: a(f"{op} v{r}, v{r}, v{r} row_ror:{k}")
    def bfly(op, regs, tmps, width):
        for r, t in zip(regs, tmps): a(f"v_mov_b32 v{t}, v{r}")
        for r, t in zip(regs, tmps): a(f"v_permlane{width}_swap_b32 v{r}, v{t}")
        for r, t in zip(regs, tmps): a(f"{op} v{r}, v{r}, v{t}")
    def lds_signal(flag, vz, vone):
        a("s_waitcnt lgkmcnt(0)")
        setexec(1, 0)
        a(f"ds_add_u32 v{vz}, v{vone} offset:{flag}")
        fullexec()
    def lds_wait(flag, target, vz, vt, st=14, sleep=1):
        L = a.newlabel("Lw"); L2 = a.newlabel("Lwd")
        a(f"s_mov_b32 s{st+1}, {TMO*16}")
        a.label(L)
        a(f"ds_read_b32 v{vt}, v{vz} offset:{flag}")
        a(f"s_sub_u32 s{st+1}, s{st+1}, 1")
        a("s_cbranch_scc1 L_end")
        a("s_waitcnt lgkmcnt(0)")
        a(f"v_readfirstlane_b32 s{st}, v{vt}")
        a(f"s_cmp_ge_u32 s{st}, {target}")
        if sleep:
            a(f"s_cbranch_scc1 {L2}")
            a(f"s_sleep {sleep}")
            a(f"s_branch {L}")
            a.label(L2)
        else:
            a(f"s_cbranch_scc0 {L}")
    def stamp_to(slot, t1=False):
        if not stamp: return
        if slot in (9, 10, 11) and bool(cfg.get("stampT1")) != t1: return
        a(f"s_memrealtime s[92:93]")
        a("s_waitcnt lgkmcnt(0)")
        a(f"s_mov_b32 s{16+slot}, s92")
    def stamp_init():
        if not stamp: return
        for i in range(1, 16): a(f"s_mov_b32 s{16+i}, 0")
        a("s_mov_b32 s16, s95")

    a("s_cmp_ge_u32 s2, 256")
    a("s_cbranch_scc1 L_exit")
    a("v_lshrrev_b32 v1, 6, v0")
    a("v_and_b32 v0, 63, v0")
    a("v_readfirstlane_b32 s82, v1")
    a("v_mov_b32 v2, 0")
    a("s_cmp_lg_u32 s82, 3"); a("s_cbranch_scc1 L_noinit")
    a("v_lshlrev_b32 v1, 2, v0")
    a(f"v_cmp_eq_u32 vcc, {F_TK//4}, v0")
    a(f"v_mov_b32 v3, {20*16}")
    a("v_cndmask_b32 v3, v2, v3, vcc")
    a("ds_write_b32 v1, v3")
    a("s_waitcnt lgkmcnt(0)")
    a.label("L_noinit")
    if stamp:
        a("s_memrealtime s[92:93]"); a("s_waitcnt lgkmcnt(0)"); a("s_mov_b32 s95, s92")
    a("s_load_dwordx16 s[16:31], s[0:1], 0")
    a("s_load_dwordx8 s[32:39], s[0:1], 64")
    a("s_load_dwordx2 s[40:41], s[0:1], 96")
    a("s_barrier")
    a("s_and_b32 s3, s82, 3")
    a("s_and_b32 s4, s2, 7")
    a("s_lshr_b32 s5, s2, 3")
    a("s_mov_b32 s83, 0xffff0000")
    if stamp:
        a("s_lshl_b32 s94, s2, 3"); a("s_add_u32 s94, s94, s82"); a("s_lshl_b32 s94, s94, 6"); a(f"s_add_u32 s94, s94, {DBGWS}")
    a("v_lshlrev_b32 v1, 4, v0")
    a("s_cmp_ge_u32 s82, 4")
    a("s_cbranch_scc1 L_T")

    VK, VV, VTK, VML, VL, T0, T1, T2 = 0, 1, 2, 3, 4, 5, 6, 7
    D = 8; QF = 16; OA = 32; RING = 64
    a(f"s_setprio {cfg.get('sprio0', 3)}")
    a("v_and_b32 v5, 15, v0")
    a("v_lshrrev_b32 v6, 4, v0")
    a("v_and_b32 v7, 3, v0"); a("v_lshlrev_b32 v7, 8, v7"); a("v_lshl_add_u32 v7, v6, 4, v7")
    a("v_and_b32 v2, 3, v5"); a("v_lshrrev_b32 v3, 2, v5"); a("v_lshl_add_u32 v2, v2, 2, v3")
    a("v_lshlrev_b32 v2, 8, v2")
    a("v_lshl_add_u32 v0, v6, 4, v2")
    a("s_lshl_b32 s89, s4, 24"); a("s_lshl_b32 s91, s5, 19"); a("s_add_u32 s89, s89, s91")
    a("s_lshl_b32 s91, s3, 13"); a("s_add_u32 s90, s89, s91")
    a("s_add_u32 s91, s90, 4096")
    a(f"s_mov_b32 s10, {LOG2E:#x}")
    a(f"s_mov_b32 s11, {SCALE:#x}")
    a("s_mov_b32 s12, 0x05040100"); a("s_mov_b32 s13, 0x07060302")
    for r in (6, 7, 8, 9): a(f"s_mov_b32 s{r}, 1")
    a("s_mov_b32 s88, 2")
    a("s_lshl_b32 s87, s3, 15"); a(f"s_add_u32 s87, s87, {KVL}")
    a("v_mov_b32 v5, 0")
    a("s_waitcnt lgkmcnt(0)")
    srd(44, 18, 0x8000000); srd(48, 20, 0x8000000)
    if stamp: srd(60, 40, 0x400000)
    stamp_init()
    stamp_to(3)
    def reg_loads(slot):
        out = []; r = RING + 64 * slot
        for T in range(2):
            for j in range(4):
                out.append([f"buffer_load_dwordx4 v[{r}:{r+3}], v{VK}, s[44:47], {'s90' if T == 0 else 's91'} offen offset:{64*j}{KF}"]); r += 4
        for T in range(2):
            for j in range(4):
                out.append([f"buffer_load_dwordx4 v[{r}:{r+3}], v{VV}, s[48:51], {'s90' if T == 0 else 's91'} offen offset:{1024*j}{VF}"]); r += 4
        return out
    def dma_loads(ls):
        out = []
        for T in range(2):
            for j in range(4):
                m = ls * 16384 + (T * 4 + j) * 1024 - 64 * j
                out.append([f"s_add_u32 m0, s87, {m}", f"buffer_load_dwordx4 v{VK}, s[44:47], {'s90' if T == 0 else 's91'} offen offset:{64*j}{KF} lds"])
        for T in range(2):
            for j in range(4):
                m = ls * 16384 + (8 + 4 * T) * 1024
                out.append([f"s_add_u32 m0, s87, {m}", f"buffer_load_dwordx4 v{VV}, s[48:51], {'s90' if T == 0 else 's91'} offen offset:{1024*j}{VF} lds"])
        return out
    def req_ticket():
        setexec(2, 0)
        a(f"ds_add_rtn_u32 v{VTK}, v{VV}, v{VV} offset:{F_TK-16}")
        fullexec()
    def take_ticket(vflag):
        a("s_waitcnt lgkmcnt(0)")
        a(f"v_readlane_b32 s14, v{VTK}, 1")
        a("s_lshl_b32 s15, s14, 9")
        a("s_add_u32 s90, s89, s15")
        a(f"s_cmp_lt_u32 s14, {NTW*16}")
        a(f"s_cselect_b32 s90, s90, {OOB:#x}")
        a(f"s_cselect_b32 s{vflag}, 1, 0")
        a("s_add_u32 s91, s90, 4096")
        req_ticket()
    seq = []
    for t in range(5):
        l = reg_loads(t) if t < 3 else dma_loads(t - 3)
        if t == 0: l = [l[0], l[8]] + l[1:8] + l[9:]
        if t < 4: l[-1] = l[-1] + ["s_add_u32 s90, s90, 32768", "s_add_u32 s91, s91, 32768"]
        seq += l
    GRP = 4
    for i in range(Wp):
        for ins in seq[i]: a(ins)
        if i == cfg.get("nfirst", 2) - 1:
            a("s_setprio 0"); stamp_to(1)
    a(f"v_mov_b32 v{VML}, 0xff800000"); a(f"v_mov_b32 v{VL}, 0")
    for r in range(OA, OA + 32): a(f"v_mov_b32 v{r}, 0")
    pos = list(range(Wp, 80, GRP))
    for p in pos:
        a(f"ds_read_b32 v6, v5 offset:{F_Q}")
        for i in range(p, min(p + GRP, 80)):
            if (i - p) % 2 == 0: a(f"s_waitcnt vmcnt({Wp-2})")
            for ins in seq[i]: a(ins)
        if p + GRP < 80:
            a("s_waitcnt lgkmcnt(0)")
            a("v_readfirstlane_b32 s14, v6")
            a("s_cmp_ge_u32 s14, 4")
            a(f"s_cbranch_scc1 L_U{p+GRP}")
    a("s_branch L_Pdone")
    for p in pos[1:]:
        a.label(f"L_U{p}")
        for i in range(p, min(p + GRP, 80)):
            for ins in seq[i]: a(ins)
    a.label("L_Pdone")
    stamp_to(12)
    lds_wait(F_Q, 4, 5, 6, 14, sleep=2)
    for j in range(4):
        a(f"ds_read_b128 v[{QF+4*j}:{QF+4*j+3}], v7 offset:{QL + 64*j}")
    req_ticket()
    a("s_waitcnt vmcnt(63)")
    stamp_to(8)
    def proc(slot, kwait, vwait):
        KB = RING + 64 * slot; VB = KB + 32
        if kwait is not None: a(f"s_waitcnt vmcnt({kwait})")
        for j in range(4):
            for T in range(2):
                kr = KB + (T * 4 + j) * 4
                c = "0" if j == 0 else f"v[{D+4*T}:{D+4*T+3}]"
                a(f"v_mfma_f32_16x16x32_bf16 v[{D+4*T}:{D+4*T+3}], v[{kr}:{kr+3}], v[{QF+4*j}:{QF+4*j+3}], {c}")
        for i in range(0, 8, 2): bf16r2(D + i, D + i + 1, D + i, D + i + 1, T0 + (i // 2) % 3)
        for i in range(8): a(f"v_mul_f32 v{D+i}, s11, v{D+i}")
        for i in range(0, 8, 2): bf16r2(D + i, D + i + 1, D + i, D + i + 1, T0 + (i // 2) % 3)
        a(f"v_max3_f32 v{T0}, v{D}, v{D+1}, v{D+2}")
        a(f"v_max3_f32 v{T1}, v{D+3}, v{D+4}, v{D+5}")
        a(f"v_max3_f32 v{T0}, v{T0}, v{D+6}, v{D+7}")
        a(f"v_max_f32 v{T0}, v{T0}, v{T1}")
        a(f"v_mul_f32 v{T0}, s10, v{T0}")
        a(f"v_cmp_gt_f32 vcc, v{T0}, v{VML}")
        Ls = a.newlabel("Lnomax")
        a(f"s_cbranch_vccz {Ls}")
        bfly("v_max_f32", [T0], [T1], 16)
        bfly("v_max_f32", [T0], [T1], 32)
        if cfg.get("intmax", True): a(f"v_ceil_f32 v{T0}, v{T0}")
        a(f"v_max_f32 v{T0}, v{T0}, v{VML}")
        a(f"v_sub_f32 v{T1}, v{VML}, v{T0}")
        a(f"v_exp_f32 v{T1}, v{T1}")
        a(f"v_mov_b32 v{VML}, v{T0}")
        a(f"v_mul_f32 v{VL}, v{VL}, v{T1}")
        for r in range(OA, OA + 32): a(f"v_mul_f32 v{r}, v{r}, v{T1}")
        a.label(Ls)
        for i in range(8): a(f"v_fma_f32 v{D+i}, v{D+i}, s10, -v{VML}")
        for i in range(8): a(f"v_exp_f32 v{D+i}, v{D+i}")
        a(f"v_add_f32 v{T0}, v{D}, v{D+1}"); a(f"v_add_f32 v{T1}, v{D+2}, v{D+3}"); a(f"v_add_f32 v{T2}, v{D+4}, v{D+5}")
        a(f"v_add_f32 v{VL}, v{VL}, v{D+6}"); a(f"v_add_f32 v{T0}, v{T0}, v{T1}"); a(f"v_add_f32 v{T2}, v{T2}, v{D+7}")
        a(f"v_add_f32 v{VL}, v{VL}, v{T0}"); a(f"v_add_f32 v{VL}, v{VL}, v{T2}")
        for q in range(4): a(f"v_cvt_pk_bf16_f32 v{D+q}, v{D+2*q}, v{D+2*q+1}")
        if vwait is not None: a(f"s_waitcnt vmcnt({vwait})")
        for t in range(8):
            u = t >> 1; sel = "s12" if (t & 1) == 0 else "s13"
            for q in range(4):
                a(f"v_perm_b32 v{KB+4*t+q}, v{VB+4*(2*q+1)+u}, v{VB+4*(2*q)+u}, {sel}")
            if t >= 1:
                tt = t - 1
                a(f"v_mfma_f32_16x16x32_bf16 v[{OA+4*tt}:{OA+4*tt+3}], v[{KB+4*tt}:{KB+4*tt+3}], v[{D}:{D+3}], v[{OA+4*tt}:{OA+4*tt+3}]")
        tt = 7
        a(f"v_mfma_f32_16x16x32_bf16 v[{OA+4*tt}:{OA+4*tt+3}], v[{KB+4*tt}:{KB+4*tt+3}], v[{D}:{D+3}], v[{OA+4*tt}:{OA+4*tt+3}]")
    a.label("L_SA")
    for slot in range(2):
        a(f"s_cmp_eq_u32 s{6+slot}, 0"); a("s_cbranch_scc1 L_Sdone")
        take_ticket(6 + slot)
        proc(slot, 56, 48)
        for l in reg_loads(slot):
            for ins in l: a(ins)
    a("s_cmp_eq_u32 s88, 2"); a("s_cbranch_scc0 L_SL0")
    a("s_mov_b32 s88, 0")
    a("s_waitcnt vmcnt(63)")
    a("s_branch L_SC")
    for ls in range(2):
        a.label(f"L_SL{ls}")
        a(f"s_cmp_eq_u32 s{8+ls}, 0"); a("s_cbranch_scc1 L_Sdone")
        a(f"v_add_u32 v{T0}, s87, v{VV}")
        a("s_waitcnt vmcnt(48)")
        CB = RING + 128
        for i in range(16):
            a(f"ds_read_b128 v[{CB+4*i}:{CB+4*i+3}], v{T0} offset:{ls*16384 + 1024*i}")
        take_ticket(8 + ls)
        for l in dma_loads(ls):
            for ins in l: a(ins)
        a(f"s_mov_b32 s88, {1 if ls == 0 else 3}")
        if ls == 0: a("s_branch L_SC")
    a.label("L_SC")
    proc(2, None, None)
    a("s_cmp_eq_u32 s88, 0"); a("s_cbranch_scc1 L_SL0")
    a("s_cmp_eq_u32 s88, 1"); a("s_cbranch_scc1 L_SL1")
    a("s_branch L_SA")
    a.label("L_Sdone")
    stamp_to(5)
    bfly("v_add_f32", [VL], [T0], 16)
    bfly("v_add_f32", [VL], [T0], 32)
    a(f"v_lshrrev_b32 v{T0}, 4, v{VV}")
    a(f"v_and_b32 v{T1}, 15, v{T0}")
    a(f"v_lshrrev_b32 v{T2}, 4, v{T0}")
    a(f"v_lshlrev_b32 v{D}, 9, v{T1}")
    a(f"v_lshl_add_u32 v{D}, v{T2}, 4, v{D}")
    a("s_lshl_b32 s14, s3, 11")
    a(f"v_add_u32 v{D}, s14, v{D}")
    a(f"v_lshlrev_b32 v{D+1}, 5, v{T1}")
    a("s_lshl_b32 s14, s3, 3")
    a(f"v_add_u32 v{D+1}, s14, v{D+1}")
    a(f"v_mov_b32 v6, v{VML}"); a(f"v_mov_b32 v7, v{VL}")
    setexec("0x000f000f", "0x000f000f")
    for t in range(8):
        a(f"ds_write_b128 v{D}, v[{OA+4*t}:{OA+4*t+3}] offset:{SP + 64*t}")
    setexec("0xf", "0")
    a(f"ds_write_b64 v{D+1}, v[6:7] offset:{ML}")
    fullexec()
    a(f"v_mov_b32 v{T0}, 0"); a(f"v_mov_b32 v4, 1")
    lds_signal(F_SP, T0, 4)
    a("s_branch L_end")

    a.label("L_T")
    a(f"s_setprio 2")
    if cfg.get("tdummy"):
        a("v_mov_b32 v3, 1")
        a("v_lshlrev_b32 v4, 2, v0"); a("s_lshl_b32 s12, s3, 8"); a("v_add_u32 v4, s12, v4")
        a("v_mov_b32 v5, 0x3c003c00")
        if cfg.get("tdelay"):
            for _ in range(cfg["tdelay"]): a("s_sleep 32")
        a(f"ds_write_b32 v4, v5 offset:{QL}")
        lds_signal(F_Q, 2, 3)
        a("s_branch L_exit")
    a("s_and_b32 s6, s5, 3"); a("s_lshl_b32 s7, s4, 2"); a("s_add_u32 s6, s6, s7")
    a("s_lshr_b32 s7, s2, 5")
    VZ, VONE = 2, 3
    a("v_mov_b32 v3, 1")
    XA = 8; CC = 12; XJ = 16; WM = 20; WQ = 52
    XV = 70; MEAN = 78; RDEN = 79; TA = 80; TB = 81; SC = 82; SCL = 90; XQR = 98; TAG = 102
    WOF = 104; G = 120; TT = G; W1F = 184; W2F = 216; ACC = 248
    GA = 52; XQ = 56; CB1 = 60; SBV = 64; GB = 48
    a("v_lshrrev_b32 v17, 2, v0")
    a("v_lshlrev_b32 v4, 4, v17")
    a("v_mul_u32_u24 v68, 49152, v17")
    a("v_and_b32 v19, 1, v0"); a("v_lshl_add_u32 v5, v19, 4, v68")
    a("v_bfe_u32 v19, v0, 1, 1"); a("v_lshl_add_u32 v5, v19, 10, v5")
    a("v_and_b32 v6, 15, v0"); a("v_lshlrev_b32 v6, 1, v6")
    a("v_lshrrev_b32 v7, 4, v0"); a("v_lshlrev_b32 v7, 13, v7")
    a("v_and_b32 v19, 15, v0"); a("v_lshl_add_u32 v7, v19, 4, v7")
    a("s_lshl_b32 s12, s3, 8")
    a(f"s_mul_i32 s99, s3, {128*6144}"); a("s_lshl_b32 s14, s6, 5"); a("s_add_u32 s13, s99, s14")
    a("s_lshl_b32 s15, s6, 17"); a("s_lshl_b32 s90, s7, 10"); a("s_add_u32 s15, s15, s90")
    a("s_lshl_b32 s90, s3, 8"); a("s_add_u32 s15, s15, s90")
    a("s_waitcnt lgkmcnt(0)")
    a(f"s_load_dword s42, s[40:41], {EPOCH}")
    srd(48, 32, 1024)
    srd(52, 34, 512 * 6144)
    a(f"buffer_load_dwordx4 v[{CC}:{CC+3}], v4, s[48:51], s12 offen")
    srd(44, 16, 1024)
    a(f"buffer_load_dwordx4 v[{XA}:{XA+3}], v1, s[44:47], 0 offen")
    a(f"buffer_load_ushort v{XJ}, v6, s[44:47], s14 offen")
    for i in range(8):
        a(f"buffer_load_dwordx4 v[{WM+4*i}:{WM+4*i+3}], v5, s[52:55], s13 offen{WMF}")
        if i < 7: a("s_add_u32 s13, s13, 6144")
    srd(56, 22, 512 * 8192)
    for i in range(4):
        a(f"buffer_load_dwordx4 v[{WQ+4*i}:{WQ+4*i+3}], v7, s[56:59], s15 offen{WT}")
        if i < 3: a("s_add_u32 s15, s15, 32768")
    a("s_lshr_b32 s8, s5, 1"); a("s_lshl_b32 s8, s8, 3"); a("s_add_u32 s8, s8, s4")
    a("s_and_b32 s9, s5, 1"); a("s_lshl_b32 s10, s8, 1"); a("s_add_u32 s9, s9, s10")
    a("s_cmp_lt_u32 s8, 28"); a("s_cselect_b32 s8, 1, 0")
    a("s_lshl_b32 s10, s4, 3"); a("s_add_u32 s10, s10, s5"); a("s_sub_u32 s10, s10, 24")
    srd(68, 24, 4096 * 1024)
    srd(72, 28, 512 * 3584)
    srd(76, 30, 1792 * 1024)
    NX = 0
    srd(60, 40, 0x400000 if stamp else WS_END)
    srd(64, 38, 256)
    a("s_mov_b32 s90, s36"); a("s_mov_b32 s91, s37")
    a("s_lshl_b32 s84, s7, 5"); a("s_add_u32 s84, s84, s6"); a("s_lshl_b32 s84, s84, 12")
    a("s_lshl_b32 s12, s3, 10"); a("s_add_u32 s84, s84, s12"); a(f"s_add_u32 s84, s84, {QP}")
    a("s_lshl_b32 s85, s4, 2"); a("s_add_u32 s85, s85, s3")
    a("s_lshl_b32 s85, s85, 5"); a("s_add_u32 s85, s85, s5"); a("s_mul_i32 s85, s85, 640"); a(f"s_add_u32 s85, s85, {R1}")
    a("s_lshl_b32 s87, s6, 11"); a("s_lshl_b32 s13, s7, 8"); a("s_add_u32 s87, s87, s13")
    a("s_lshl_b32 s13, s3, 6"); a("s_add_u32 s87, s87, s13"); a(f"s_add_u32 s87, s87, {YO}")
    a("s_lshl_b32 s88, s9, 11"); a("s_lshl_b32 s12, s3, 9"); a("s_add_u32 s88, s88, s12"); a(f"s_add_u32 s88, s88, {ZO}")
    a("s_lshl_b32 s89, s10, 7"); a(f"s_add_u32 s89, s89, {MOD2}")
    stamp_init()
    stamp_to(12)
    def silu_f32(dst, n, t):
        for i in range(n): a(f"v_mul_f32 v{t+i}, {f32bits(-1.4426950408889634):#x}, v{dst+i}")
        for i in range(n): a(f"v_exp_f32 v{t+i}, v{t+i}")
        for i in range(n): a(f"v_add_f32 v{t+i}, 1.0, v{t+i}")
        for i in range(n): a(f"v_rcp_f32 v{t+i}, v{t+i}")
        for i in range(n): a(f"v_mul_f32 v{dst+i}, v{dst+i}, v{t+i}")
    def gemv_dot(acc, w0, n, sc, scl, wait=None):
        for i in range(n):
            if wait: wait(i)
            for u in range(4):
                if i == 0:
                    a(f"v_dot2_f32_bf16 v{acc+2*u}, v{w0+4*i+u}, v{scl+i}, 0")
                    a(f"v_dot2_f32_bf16 v{acc+2*u+1}, v{w0+4*i+u}, v{sc+i}, 0")
                else:
                    a(f"v_dot2c_f32_bf16 v{acc+2*u}, v{w0+4*i+u}, v{scl+i}")
                    a(f"v_dot2c_f32_bf16 v{acc+2*u+1}, v{w0+4*i+u}, v{sc+i}")
    def ln_finish(s1, s2, t1):
        a(f"v_max_f32 v{s2}, 0, v{s2}")
        bf16r2(s1, s2, s1, s2, t1)
        a(f"v_add_f32 v{s2}, {f32bits(1e-5):#x}, v{s2}")
        bf16r(s2, s2)
        a(f"v_sqrt_f32 v{s2}, v{s2}")
        bf16r(s2, s2)
        a(f"v_rcp_f32 v{s2}, v{s2}")
    a(f"s_waitcnt vmcnt({14+NX})")
    for i in range(4): unpack(SC + 2 * i, SC + 2 * i + 1, CC + i)
    silu_f32(SC, 8, TT)
    for i in range(4): a(f"v_cvt_pk_bf16_f32 v{TT+i}, v{SC+2*i}, v{SC+2*i+1}")
    for i in range(4):
        a(f"v_lshlrev_b32 v{SC+2*i}, 16, v{TT+i}"); a(f"v_and_b32 v{SC+2*i+1}, s83, v{TT+i}")
        a(f"v_and_b32 v{SCL+2*i}, 0xffff, v{TT+i}"); a(f"v_lshrrev_b32 v{SCL+2*i+1}, 16, v{TT+i}")
    a(f"s_waitcnt vmcnt({12+NX})")
    for i in range(4): unpack(XV + 2 * i, XV + 2 * i + 1, XA + i)
    a(f"v_readfirstlane_b32 s14, v{XV}")
    for i in range(8): a(f"v_subrev_f32 v{XV+i}, s14, v{XV+i}")
    a(f"v_add_f32 v{MEAN}, v{XV}, v{XV+1}"); a(f"v_mul_f32 v{RDEN}, v{XV}, v{XV}"); a(f"v_fmac_f32 v{RDEN}, v{XV+1}, v{XV+1}")
    for i in range(2, 8):
        a(f"v_add_f32 v{MEAN}, v{MEAN}, v{XV+i}"); a(f"v_fmac_f32 v{RDEN}, v{XV+i}, v{XV+i}")
    rowreduce("v_add_f32", [MEAN, RDEN], [1, 2, 4, 8])
    bfly("v_add_f32", [MEAN, RDEN], [TA, TB], 16)
    bfly("v_add_f32", [MEAN, RDEN], [TA, TB], 32)
    a(f"v_mul_f32 v{MEAN}, {f32bits(1/512):#x}, v{MEAN}")
    a(f"v_mul_f32 v{RDEN}, {f32bits(1/512):#x}, v{RDEN}")
    a(f"v_fma_f32 v{RDEN}, -v{MEAN}, v{MEAN}, v{RDEN}")
    a(f"v_add_f32 v{MEAN}, s14, v{MEAN}")
    ln_finish(MEAN, RDEN, TA)
    a(f"v_lshlrev_b32 v{XJ}, 16, v{XJ}")
    a(f"v_sub_f32 v{XJ}, v{XJ}, v{MEAN}"); bf16r(XJ, XJ)
    a(f"v_mul_f32 v{XJ}, v{XJ}, v{RDEN}"); bf16r(XJ, XJ)
    a("v_lshrrev_b32 v17, 4, v0"); a("v_lshlrev_b32 v17, 7, v17")
    a("v_and_b32 v18, 3, v0"); a("v_lshl_add_u32 v17, v18, 5, v17")
    a("s_lshl_b32 s12, s3, 9"); a("v_add_u32 v69, s12, v17")
    a("v_and_b32 v4, 31, v0"); a("v_lshlrev_b32 v4, 2, v4")
    a("v_lshrrev_b32 v18, 5, v0"); a("v_lshl_add_u32 v68, v18, 10, v4")
    a("v_lshrrev_b32 v5, 4, v0"); a("v_lshlrev_b32 v5, 2, v5")
    a("v_and_b32 v6, 15, v0"); a("v_lshlrev_b32 v6, 6, v6"); a("v_lshl_add_u32 v6, v5, 2, v6")
    a("v_and_b32 v7, 31, v0"); a("v_lshlrev_b32 v7, 4, v7"); a("v_lshl_add_u32 v7, v18, 11, v7")
    a("v_lshlrev_b32 v19, 12, v0")
    gemv_dot(ACC, WM, 8, SC, SCL, wait=lambda i: a(f"s_waitcnt vmcnt({11-i+NX})"))
    stamp_to(1)
    def sap_publish(flag):
        rowreduce("v_add_f32", list(range(ACC, ACC + 8)), [4, 8])
        setexec("0x000f000f", "0x000f000f")
        a(f"ds_write_b128 v69, v[{ACC}:{ACC+3}] offset:{SAP}")
        a(f"ds_write_b128 v69, v[{ACC+4}:{ACC+7}] offset:{SAP+16}")
        fullexec()
        lds_signal(flag, VZ, VONE)
    def sap_collect():
        for k in range(8): a(f"ds_read_b32 v{TT+k}, v68 offset:{SAP + 128*k}")
        a("s_waitcnt lgkmcnt(0)")
        for k in (0, 2, 4, 6): a(f"v_add_f32 v{TT+k}, v{TT+k}, v{TT+k+1}")
        a(f"v_add_f32 v{TT}, v{TT}, v{TT+2}"); a(f"v_add_f32 v{TT+4}, v{TT+4}, v{TT+6}")
        a(f"v_add_f32 v{TT}, v{TT}, v{TT+4}")
        bfly("v_add_f32", [TT], [TT + 1], 32)
        bf16r(TT, TT)
    sap_publish(F_SA)
    a("s_add_u32 s96, s42, 1")
    a("s_mul_i32 s97, s96, 0x9E3779B1"); a("s_add_u32 s97, s97, 0x7F4A7C15")
    a(f"v_mov_b32 v{TAG}, s96"); a(f"v_mov_b32 v{TAG+1}, s97")
    lds_wait(F_SA, 4, VZ, TA, 14, sleep=0)
    stamp_to(13)
    sap_collect()
    a(f"v_mov_b32 v{TT+1}, v{TT}")
    a(f"v_permlane16_swap_b32 v{TT}, v{TT+1}")
    a(f"v_add_f32 v{TT+1}, 1.0, v{TT+1}"); bf16r(TT + 1, TT + 1)
    a(f"v_mul_f32 v{TT+1}, v{XJ}, v{TT+1}"); bf16r(TT + 1, TT + 1)
    a(f"v_add_f32 v{TT}, v{TT+1}, v{TT}"); bf16r(TT, TT)
    HC = TT + 8; HL = TT + 12
    for i in range(4): a(f"ds_bpermute_b32 v{HC+i}, v5, v{TT} offset:{16*i}")
    a("s_waitcnt lgkmcnt(0)")
    for i in range(4): a(f"v_lshrrev_b32 v{HL+i}, 16, v{HC+i}")
    a(f"s_waitcnt vmcnt({NX})")
    gemv_dot(ACC, WQ, 4, HC, HL)
    for k in range(4): a(f"v_permlane32_swap_b32 v{ACC+k}, v{ACC+4+k}")
    for k in range(4): a(f"v_add_f32 v{ACC+k}, v{ACC+k}, v{ACC+4+k}")
    a(f"v_permlane16_swap_b32 v{ACC}, v{ACC+2}"); a(f"v_permlane16_swap_b32 v{ACC+1}, v{ACC+3}")
    a(f"v_add_f32 v{ACC}, v{ACC}, v{ACC+2}"); a(f"v_add_f32 v{ACC+1}, v{ACC+1}, v{ACC+3}")
    a(f"v_mov_b32 v{ACC+2}, s96"); a(f"v_mov_b32 v{ACC+3}, s97")
    a(f"buffer_store_dwordx4 v[{ACC}:{ACC+3}], v6, s[60:63], s84 offen sc1")
    stamp_to(2)
    if cfg.get("stop") == "qp":
        a("v_lshlrev_b32 v4, 2, v0"); a("s_lshl_b32 s12, s3, 8"); a("v_add_u32 v4, s12, v4")
        a("v_mov_b32 v5, 0x3c003c00")
        a(f"ds_write_b32 v4, v5 offset:{QL}")
        lds_signal(F_Q, 2, 3)
        a("s_branch L_exit")
    if cfg.get("skipx"): a("s_branch L_skipx")
    a("v_lshrrev_b32 v17, 3, v0")
    a("v_and_b32 v18, 7, v0"); a("v_lshlrev_b32 v18, 4, v18")
    a("v_lshl_add_u32 v4, v17, 13, v18")
    a("v_lshl_add_u32 v6, v17, 10, v18")
    a("s_lshl_b32 s12, s6, 17"); a("s_lshl_b32 s13, s7, 7"); a("s_add_u32 s12, s12, s13")
    a("s_lshl_b32 s13, s3, 11"); a("s_add_u32 s12, s12, s13")
    for i in range(4):
        off = (64 * (i & 1) + (i >> 1)) * 1024
        a(f"s_add_u32 s13, s12, {off}")
        a(f"buffer_load_dwordx4 v[{WOF+4*i}:{WOF+4*i+3}], v4, s[68:71], s13 offen{WT}")
    a("s_cmp_eq_u32 s8, 0"); a("s_cbranch_scc1 L_xnotM")
    a("v_lshrrev_b32 v17, 2, v0"); a("v_mul_u32_u24 v5, 3584, v17")
    a("v_and_b32 v18, 3, v0"); a("v_lshl_add_u32 v5, v18, 4, v5")
    a(f"s_mul_i32 s12, s3, {128*3584}"); a("s_lshl_b32 s13, s9, 6"); a("s_add_u32 s12, s12, s13")
    for i in range(8):
        a(f"buffer_load_dwordx4 v[{W1F+4*i}:{W1F+4*i+3}], v5, s[72:75], s12 offen{WMF}")
        if i < 7: a(f"s_add_u32 s12, s12, {16*3584}")
    a("s_lshl_b32 s12, s9, 15"); a("s_lshl_b32 s13, s3, 8"); a("s_add_u32 s12, s12, s13")
    for hh in range(2):
        for i in range(4):
            a(f"s_add_u32 s13, s12, {8192*i}")
            a(f"buffer_load_dwordx4 v[{W2F+16*hh+4*i}:{W2F+16*hh+4*i+3}], v6, s[76:79], s13 offen offset:{128*hh}{WT}")
    a("v_and_b32 v5, 31, v0"); a("v_lshlrev_b32 v5, 3, v5"); a("s_lshl_b32 s12, s3, 8")
    a(f"buffer_load_dwordx2 v[{XQR}:{XQR+1}], v5, s[44:47], s12 offen")
    a("s_branch L_xdone")
    a.label("L_xnotM")
    a("s_cmp_lt_u32 s2, 192"); a("s_cbranch_scc1 L_xdone")
    a("v_lshrrev_b32 v17, 2, v0"); a("v_mul_u32_u24 v5, 49152, v17")
    a("v_and_b32 v18, 3, v0"); a("v_lshl_add_u32 v5, v18, 4, v5")
    a("s_lshl_b32 s12, s10, 6"); a("s_add_u32 s12, s12, s99"); a("s_add_u32 s12, s12, 2048")
    for i in range(8):
        a(f"buffer_load_dwordx4 v[{W1F+4*i}:{W1F+4*i+3}], v5, s[52:55], s12 offen{WMF}")
        if i < 7: a("s_add_u32 s12, s12, 6144")
    a.label("L_xdone")
    for r in range(8, 12): a(f"v_mov_b32 v{r}, -1")
    setexec(-1, 0)
    a("buffer_store_dwordx4 v[8:11], v1, s[60:63], s85 offen sc1")
    a("s_cmp_eq_u32 s8, 0"); a("s_cbranch_scc1 L_nz")
    a("buffer_store_dwordx4 v[8:11], v1, s[60:63], s88 offen sc1")
    a.label("L_nz")
    setexec("0xf", 0)
    a("buffer_store_dwordx4 v[8:11], v1, s[60:63], s87 offen sc1")
    setexec(1, 0)
    a("buffer_store_dword v8, v1, s[60:63], s85 offen offset:512 sc1")
    fullexec()
    a.label("L_skipx")
    stamp_to(9, True)
    a("s_lshl_b32 s98, s4, 17"); a("s_lshl_b32 s13, s3, 10"); a("s_add_u32 s98, s98, s13"); a(f"s_add_u32 s98, s98, {QP}")
    a("v_lshlrev_b32 v18, 2, v0"); a("s_lshl_b32 s12, s3, 8"); a("v_add_u32 v18, s12, v18")
    if cfg.get("qdelay", 0): a(f"s_sleep {cfg['qdelay']}")
    a(f"s_mov_b32 s15, {TMO}")
    setexec(-1, 0)
    a.label("L_Qp")
    a(f"buffer_load_dwordx2 v[{G}:{G+1}], v19, s[60:63], s98 offen offset:1016 sc1")
    a("s_sub_u32 s15, s15, 1"); a("s_cbranch_scc1 L_end")
    a("s_waitcnt vmcnt(0)")
    a(f"v_cmp_ne_u64 vcc, v[{G}:{G+1}], v[{TAG}:{TAG+1}]")
    a("s_cbranch_vccz L_Qg")
    if cfg.get("qsleep", 2): a(f"s_sleep {cfg.get('qsleep', 2)}")
    a("s_branch L_Qp")
    a.label("L_Qg")
    fullexec()
    stamp_to(14)
    QQ = [G + 4 * i for i in range(16)] + [20 + 4 * i for i in range(12)] + [70, 74, ACC, ACC + 4]
    a.label("L_Q")
    a("s_mov_b32 s12, s98")
    QN = cfg.get("qn", 32)
    for i in range(QN):
        a(f"buffer_load_dwordx4 v[{QQ[i]}:{QQ[i]+3}], v1, s[60:63], s12 offen sc1")
        if i < QN - 1: a("s_add_u32 s12, s12, 4096")
    a("s_sub_u32 s15, s15, 1"); a("s_cbranch_scc1 L_end")
    a("s_mov_b64 s[80:81], 0")
    for i in range(QN):
        a(f"s_waitcnt vmcnt({QN-1-i})")
        a(f"v_cmp_ne_u64 vcc, v[{QQ[i]+2}:{QQ[i]+3}], v[{TAG}:{TAG+1}]")
        if i >= 2:
            j = QQ[i % 2]
            a(f"v_pk_add_f32 v[{j}:{j+1}], v[{j}:{j+1}], v[{QQ[i]}:{QQ[i]+1}]")
        a("s_or_b64 s[80:81], s[80:81], vcc")
    a("s_cmp_lg_u64 s[80:81], 0")
    a("s_cbranch_scc1 L_Q")
    a(f"v_pk_add_f32 v[{G}:{G+1}], v[{G}:{G+1}], v[{G+4}:{G+5}]")
    a(f"v_cvt_pk_bf16_f32 v{G+4}, v{G}, v{G+1}")
    a(f"ds_write_b32 v18, v{G+4} offset:{QL}")
    lds_signal(F_Q, VZ, VONE)
    stamp_to(4)
    if cfg.get("stop") == "q": a("s_branch L_exit")

    a("s_cmp_lt_u32 s2, 192"); a("s_cbranch_scc1 L_nomod2")
    lds_wait(F_Q, 4, VZ, TA, 14, sleep=1)
    a("s_waitcnt vmcnt(0)")
    gemv_dot(ACC, W1F, 8, SC, SCL)
    sap_publish(F_SA2)
    a("s_cmp_lg_u32 s3, 0"); a("s_cbranch_scc1 L_nomod2")
    lds_wait(F_SA2, 4, VZ, TA, 14, sleep=1)
    sap_collect()
    a("v_lshlrev_b32 v4, 2, v0")
    setexec(-1, 0)
    a(f"buffer_store_dword v{TT}, v4, s[60:63], s89 offen sc1")
    fullexec()
    a.label("L_nomod2")
    a("s_lshl_b32 s12, s3, 12")
    a("v_add_u32 v19, s12, v1")
    a("v_lshrrev_b32 v17, 4, v0"); a("v_and_b32 v18, 15, v0"); a("v_lshl_add_u32 v18, v18, 1, s12")
    a("v_lshl_add_u32 v4, v17, 10, v18")
    a("v_lshl_add_u32 v5, v17, 9, v18")
    a("v_lshlrev_b32 v17, 4, v17")
    def transpose4(dst, rb):
        for q in range(4): a(f"ds_write_b128 v19, v[{dst+4*q}:{dst+4*q+3}] offset:{STG + 1024*q}")
        for f in range(4):
            for e in range(8):
                if rb == 128: off = e * 128 + f * 32; vb = 4
                else: off = (f >> 1) * 2048 + e * 64 + (f & 1) * 32; vb = 5
                a(f"ds_read_u16 v{G+8*f+e}, v{vb} offset:{STG + off}")
            if f == 1: a("s_waitcnt lgkmcnt(4)")
        a("s_waitcnt lgkmcnt(0)")
        for f in range(4):
            for q in range(4): a(f"v_lshl_or_b32 v{dst+4*f+q}, v{G+8*f+2*q+1}, 16, v{G+8*f+2*q}")
    a("s_waitcnt vmcnt(0)")
    stamp_to(10, True)
    setexec(1, 0)
    a(f"ds_add_rtn_u32 v{TA}, v{VZ}, v{VONE} offset:{F_RST}")
    a("s_waitcnt lgkmcnt(0)")
    a(f"v_readfirstlane_b32 s14, v{TA}")
    a("s_cmp_lg_u32 s14, 3"); a("s_cbranch_scc1 L_narr")
    a(f"v_mov_b32 v{TA}, 1")
    a(f"buffer_atomic_add v{TA}, v{VZ}, s[64:67], 0 offen sc0 sc1")
    a("s_waitcnt vmcnt(0)")
    a(f"v_readfirstlane_b32 s14, v{TA}")
    a("s_cmp_lg_u32 s14, 255"); a("s_cbranch_scc1 L_narr")
    a(f"buffer_store_dword v{VONE}, v{VZ}, s[64:67], 0 offen offset:128 sc1")
    a.label("L_narr")
    fullexec()
    stamp_to(11, True)
    transpose4(WOF, 128)
    a("s_cmp_eq_u32 s8, 0"); a("s_cbranch_scc1 L_notM05")
    transpose4(W1F, 64); transpose4(W1F + 16, 64)
    transpose4(W2F, 128); transpose4(W2F + 16, 128)
    a.label("L_notM05")
    a("s_cmp_lg_u32 s3, 0"); a("s_cbranch_scc1 L_gow")
    a(f"s_mov_b32 s15, {TMO}")
    setexec(1, 0)
    a.label("L_go")
    a(f"s_sleep {cfg.get('gosleep', 32)}")
    a(f"buffer_load_dword v{TA}, v{VZ}, s[64:67], 0 offen offset:128 sc1")
    a("s_sub_u32 s15, s15, 1"); a("s_cbranch_scc1 L_end")
    a("s_waitcnt vmcnt(0)")
    a(f"v_readfirstlane_b32 s14, v{TA}")
    a("s_cmp_eq_u32 s14, 0"); a("s_cbranch_scc1 L_go")
    a(f"ds_add_u32 v{VZ}, v{VONE} offset:{F_GO}")
    fullexec()
    a.label("L_gow")
    lds_wait(F_GO, 1, VZ, TA, 14, sleep=8)
    stamp_to(3)
    a("s_cmp_eq_u32 s8, 0"); a("s_cbranch_scc1 L_notM1")
    unpack(XQ, XQ + 1, XQR); unpack(XQ + 2, XQ + 3, XQR + 1)
    a("v_and_b32 v4, 31, v0"); a("v_lshlrev_b32 v4, 4, v4"); a("s_lshl_b32 s12, s3, 9"); a("v_add_u32 v4, s12, v4")
    a("v_and_b32 v6, 3, v0"); a("v_lshlrev_b32 v6, 4, v6")
    a("s_lshl_b32 s12, s4, 8"); a("s_lshl_b32 s13, s3, 6"); a("s_add_u32 s12, s12, s13"); a("v_add_u32 v6, s12, v6")
    a(f"s_mov_b32 s12, {MOD2}"); a(f"s_mov_b32 s13, {MOD2 + 4096}")
    a(f"buffer_load_dwordx4 v[{GA}:{GA+3}], v4, s[60:63], s12 offen sc1")
    a(f"buffer_load_dwordx4 v[{SBV}:{SBV+3}], v4, s[60:63], s12 offen offset:2048 sc1")
    a(f"buffer_load_dwordx4 v[{CB1}:{CB1+3}], v4, s[60:63], s13 offen sc1")
    a(f"buffer_load_dwordx4 v[{GB}:{GB+3}], v6, s[60:63], s13 offen offset:2048 sc1")
    a("s_waitcnt vmcnt(0)")
    for i in range(4): a(f"v_add_f32 v{CB1+i}, 1.0, v{CB1+i}")
    bf16rn(CB1, 4, TA)
    a.label("L_notM1")
    stamp_to(8)
    if cfg.get("stop") == "t1": a("s_branch L_exit")

    def pk_sum_quads(dst, n):
        step = 1
        while step < n:
            for i in range(0, n, 2 * step):
                if i + step < n:
                    for k in (0, 2):
                        a(f"v_pk_add_f32 v[{dst+4*i+k}:{dst+4*i+k+1}], v[{dst+4*i+k}:{dst+4*i+k+1}], v[{dst+4*(i+step)+k}:{dst+4*(i+step)+k+1}]")
            step *= 2
    def gather_sum(n, dst, vaddr, sbase, stride, chk, extra=None, fix=None, nq=None, sleep=0, name="G"):
        L = a.newlabel("L" + name); Lok = a.newlabel("L" + name + "ok")
        a(f"s_mov_b32 s15, {TMO}")
        a.label(L)
        a(f"s_mov_b32 s12, s{sbase}")
        for i in range(n):
            a(f"buffer_load_dwordx4 v[{dst+4*i}:{dst+4*i+3}], v{vaddr}, s[60:63], s12 offen sc1")
            if i < n - 1: a(f"s_add_u32 s12, s12, {stride}")
        if extra: extra()
        a("s_waitcnt vmcnt(0)")
        if fix: fix()
        pk_sum_quads(dst, nq or n)
        a(f"v_pk_add_f32 v[{chk}:{chk+1}], v[{dst}:{dst+1}], v[{dst+2}:{dst+3}]")
        a("s_sub_u32 s15, s15, 1")
        a(f"v_cmp_u_f32 vcc, v{chk}, v{chk+1}")
        a(f"s_cbranch_scc1 {Lok}")
        if sleep:
            a(f"s_cbranch_vccz {Lok}"); a(f"s_sleep {sleep}"); a(f"s_branch {L}")
        else:
            a(f"s_cbranch_vccnz {L}")
        a.label(Lok)
    def gather_chk(loads, regs, chk, sleep=0, name="C"):
        L = a.newlabel("L" + name); Lok = a.newlabel("L" + name + "ok")
        a(f"s_mov_b32 s15, {TMO}")
        a.label(L)
        loads()
        a("s_sub_u32 s15, s15, 1"); a("s_cbranch_scc1 L_end")
        a("s_waitcnt vmcnt(0)")
        c0, c1 = chk, chk + 1
        a(f"v_max3_u32 v{c0}, v{regs[0]}, v{regs[1]}, v{regs[2]}")
        a(f"v_max3_u32 v{c1}, v{regs[3]}, v{regs[4]}, v{regs[5]}")
        rest = regs[6:]; k = 0
        while rest:
            c = c0 if k % 2 == 0 else c1
            if len(rest) >= 2:
                a(f"v_max3_u32 v{c}, v{c}, v{rest[0]}, v{rest[1]}"); rest = rest[2:]
            else:
                a(f"v_max_u32 v{c}, v{c}, v{rest[0]}"); rest = rest[1:]
            k += 1
        a(f"v_max_u32 v{c0}, v{c0}, v{c1}")
        a(f"v_cmp_eq_u32 vcc, -1, v{c0}")
        if sleep:
            a(f"s_cbranch_vccz {Lok}"); a(f"s_sleep {sleep}"); a(f"s_branch {L}")
        else:
            a(f"s_cbranch_vccnz {L}")
        a.label(Lok)

    a("s_lshl_b32 s12, s3, 9"); a("v_add_u32 v18, s12, v7")
    a("s_lshl_b32 s12, s3, 5"); a("v_mov_b32 v69, s12")
    a("v_cmp_le_u32 s[80:81], 32, v0")
    a("v_lshrrev_b32 v8, 3, v0"); a("v_mul_u32_u24 v9, 640, v8")
    a("v_and_b32 v10, 7, v0"); a("v_lshl_add_u32 v8, v10, 4, v9")
    a("s_lshl_b32 s13, s3, 7"); a("v_add_u32 v8, s13, v8")
    a("s_lshl_b32 s12, s3, 6"); a("v_lshl_add_u32 v10, v0, 3, s12")
    a("v_add_u32 v11, s12, v17")
    a("s_lshl_b32 s12, s3, 8"); a("v_add_u32 v12, s12, v17")
    a("s_lshl_b32 s12, s3, 6"); a("v_add_u32 v13, s12, v1")
    a(f"s_mul_i32 s52, s6, {32*640}"); a(f"s_add_u32 s52, s52, {R1}")
    a(f"s_add_u32 s53, s52, {8*640}"); a(f"s_add_u32 s54, s52, {16*640}"); a(f"s_add_u32 s55, s52, {24*640}")
    a("s_lshl_b32 s56, s3, 9"); a(f"s_add_u32 s56, s56, {YO}")
    a("s_lshl_b32 s57, s4, 8"); a("s_lshl_b32 s13, s3, 6"); a("s_add_u32 s57, s57, s13"); a(f"s_add_u32 s57, s57, {ZO}")
    a("s_lshl_b32 s12, s3, 8"); a("v_lshl_add_u32 v14, v0, 3, s12")
    a("s_lshl_b32 s12, s3, 3"); a("v_mov_b32 v15, s12")
    a("s_lshl_b32 s12, s3, 7"); a("v_add_u32 v16, s12, v17")
    a("v_lshlrev_b32 v4, 1, v17")
    lds_wait(F_SP, 4, VZ, TA, 14, sleep=cfg.get("spsleep", 1))
    a("s_setprio 3")
    stamp_to(5)
    MLR = 20; OA_ = 28; OB_ = 32
    a(f"ds_read_b128 v[{MLR}:{MLR+3}], v69 offset:{ML}")
    a(f"ds_read_b128 v[{MLR+4}:{MLR+7}], v69 offset:{ML+16}")
    a(f"ds_read_b128 v[{OA_}:{OA_+3}], v18 offset:{SP}")
    a(f"ds_read_b128 v[{OB_}:{OB_+3}], v18 offset:{SP+4096}")
    a("s_waitcnt lgkmcnt(2)")
    a(f"v_max3_f32 v36, v{MLR}, v{MLR+2}, v{MLR+4}"); a(f"v_max_f32 v36, v36, v{MLR+6}")
    for w in range(4): a(f"v_sub_f32 v{MLR+2*w}, v{MLR+2*w}, v36")
    for w in range(4): a(f"v_exp_f32 v{MLR+2*w}, v{MLR+2*w}")
    a(f"v_mul_f32 v37, v{MLR}, v{MLR+1}")
    for w in range(1, 4): a(f"v_fmac_f32 v37, v{MLR+2*w}, v{MLR+2*w+1}")
    a(f"v_cndmask_b32 v38, v{MLR}, v{MLR+2}, s[80:81]")
    a(f"v_cndmask_b32 v39, v{MLR+4}, v{MLR+6}, s[80:81]")
    a("v_rcp_f32 v40, v37"); a("v_log_f32 v41, v37")
    a("s_waitcnt lgkmcnt(0)")
    a("v_mul_f32 v38, v38, v40"); a("v_mul_f32 v39, v39, v40")
    a("v_add_f32 v41, v41, v36")
    for k in range(4): a(f"v_mul_f32 v{OA_+k}, v{OA_+k}, v38")
    for k in range(4): a(f"v_fmac_f32 v{OA_+k}, v{OB_+k}, v39")
    bfly("v_add_f32", [OA_, OA_ + 1, OA_ + 2, OA_ + 3], [OB_, OB_ + 1, OB_ + 2, OB_ + 3], 32)
    setexec(-1, 0)
    a(f"buffer_store_dwordx4 v[{OA_}:{OA_+3}], v1, s[60:63], s85 offen sc1")
    setexec(1, 0)
    a("buffer_store_dword v41, v2, s[60:63], s85 offen offset:512 sc1")
    fullexec()

    LS = 44
    def wloads():
        for i in range(4):
            a(f"buffer_load_dwordx4 v[{G+4*i}:{G+4*i+3}], v8, s[60:63], s{52+i} offen sc1")
        for i in range(4):
            a(f"buffer_load_dword v{LS+i}, v9, s[60:63], s{52+i} offen offset:512 sc1")
    gather_chk(wloads, list(range(G, G + 16)) + [LS, LS + 1, LS + 2, LS + 3], TA, sleep=cfg.get("wsleep", 0), name="W")
    stamp_to(6)
    a(f"v_max3_f32 v36, v{LS}, v{LS+1}, v{LS+2}"); a(f"v_max_f32 v36, v36, v{LS+3}")
    rowreduce("v_max_f32", [36], [8])
    bfly("v_max_f32", [36], [37], 16); bfly("v_max_f32", [36], [37], 32)
    for i in range(4): a(f"v_sub_f32 v{LS+i}, v{LS+i}, v36")
    for i in range(4): a(f"v_exp_f32 v{LS+i}, v{LS+i}")
    for k in range(4): a(f"v_mul_f32 v{G+k}, v{G+k}, v{LS}")
    for i in range(1, 4):
        for k in range(4): a(f"v_fmac_f32 v{G+k}, v{G+4*i+k}, v{LS+i}")
    a(f"v_add_f32 v{G+4}, v{LS}, v{LS+1}"); a(f"v_add_f32 v{G+5}, v{LS+2}, v{LS+3}"); a(f"v_add_f32 v{G+4}, v{G+4}, v{G+5}")
    five = [G, G + 1, G + 2, G + 3, G + 4]; five_t = [G + 8, G + 9, G + 10, G + 11, G + 12]
    rowreduce("v_add_f32", five, [8])
    bfly("v_add_f32", five, five_t, 16); bfly("v_add_f32", five, five_t, 32)
    a(f"v_rcp_f32 v{G+4}, v{G+4}")
    for k in range(4): a(f"v_mul_f32 v{G+k}, v{G+k}, v{G+4}")
    a(f"v_cvt_pk_bf16_f32 v{G+6}, v{G}, v{G+1}"); a(f"v_cvt_pk_bf16_f32 v{G+7}, v{G+2}, v{G+3}")
    setexec("0xff", 0)
    a(f"ds_write_b64 v10, v[{G+6}:{G+7}] offset:{OL}")
    fullexec()
    a(f"ds_read_b128 v[{G+16}:{G+19}], v11 offset:{OL}")
    a("s_waitcnt lgkmcnt(0)")
    for ct in range(4):
        a(f"v_mfma_f32_16x16x32_bf16 v[{G+4*ct}:{G+4*ct+3}], v[{WOF+4*ct}:{WOF+4*ct+3}], v[{G+16}:{G+19}], 0")
    setexec("0x00010001", "0x00010001")
    for ct in range(4): a(f"ds_write_b128 v12, v[{G+4*ct}:{G+4*ct+3}] offset:{YPL + 64*ct}")
    lds_signal(F_O, VZ, VONE)
    lds_wait(F_O, 4, VZ, TA, 14, sleep=0)
    setexec("0xf", 0)
    for w in range(4): a(f"ds_read_b128 v[{G+4*w}:{G+4*w+3}], v13 offset:{YPL + 256*w}")
    a("s_waitcnt lgkmcnt(0)")
    pk_sum_quads(G, 4)
    a(f"buffer_store_dwordx4 v[{G}:{G+3}], v1, s[60:63], s87 offen sc1")
    fullexec()
    stamp_to(7)
    a("s_cmp_eq_u32 s8, 0"); a("s_cbranch_scc1 L_end")

    gather_sum(16, G, 7, 56, 4096, TA, sleep=cfg.get("ysleep", 0), name="Y")
    stamp_to(9)
    bfly("v_add_f32", [G, G + 1, G + 2, G + 3], [G + 4, G + 5, G + 6, G + 7], 32)
    bf16rn(G, 4, G + 4)
    for k in range(4): a(f"v_mul_f32 v{G+k}, v{G+k}, v{GA+k}")
    bf16rn(G, 4, G + 4)
    for k in range(4): a(f"v_add_f32 v{G+k}, v{G+k}, v{XQ+k}")
    a(f"v_cvt_pk_bf16_f32 v{G+4}, v{G}, v{G+1}"); a(f"v_cvt_pk_bf16_f32 v{G+5}, v{G+2}, v{G+3}")
    unpack(XV, XV + 1, G + 4); unpack(XV + 2, XV + 3, G + 5)
    setexec(-1, 0)
    a(f"ds_write_b64 v14, v[{G+4}:{G+5}] offset:{X1L}")
    fullexec()
    a(f"v_readfirstlane_b32 s14, v{XV}")
    for k in range(4): a(f"v_subrev_f32 v{G+k}, s14, v{XV+k}")
    S1 = G + 6; S2 = G + 7
    a(f"v_add_f32 v{S1}, v{G}, v{G+1}"); a(f"v_mul_f32 v{S2}, v{G}, v{G}"); a(f"v_fmac_f32 v{S2}, v{G+1}, v{G+1}")
    a(f"v_add_f32 v{S1}, v{S1}, v{G+2}"); a(f"v_fmac_f32 v{S2}, v{G+2}, v{G+2}")
    a(f"v_add_f32 v{S1}, v{S1}, v{G+3}"); a(f"v_fmac_f32 v{S2}, v{G+3}, v{G+3}")
    rowreduce("v_add_f32", [S1, S2], [1, 2, 4, 8])
    bfly("v_add_f32", [S1, S2], [G + 8, G + 9], 16)
    a(f"v_mul_f32 v{G+8}, {f32bits(1/128):#x}, v{S1}")
    a(f"v_fma_f32 v{S2}, -v{G+8}, v{S1}, v{S2}")
    a(f"v_add_f32 v{S1}, s14, v{G+8}")
    setexec(1, 0)
    a(f"ds_write_b64 v15, v[{S1}:{S2}] offset:{STL}")
    a("s_waitcnt lgkmcnt(0)")
    a(f"ds_add_u32 v{VZ}, v{VONE} offset:{F_X1}")
    fullexec()
    lds_wait(F_X1, 4, VZ, TA, 14, sleep=0)
    a(f"ds_read_b128 v[{G}:{G+3}], v{VZ} offset:{STL}")
    a(f"ds_read_b128 v[{G+4}:{G+7}], v{VZ} offset:{STL+16}")
    a("s_waitcnt lgkmcnt(0)")
    a(f"v_add_f32 v{MEAN}, v{G}, v{G+2}"); a(f"v_add_f32 v{TA}, v{G+4}, v{G+6}")
    a(f"v_add_f32 v{RDEN}, v{G+1}, v{G+3}"); a(f"v_add_f32 v{TB}, v{G+5}, v{G+7}")
    a(f"v_add_f32 v{MEAN}, v{MEAN}, v{TA}"); a(f"v_add_f32 v{RDEN}, v{RDEN}, v{TB}")
    a(f"v_mul_f32 v{MEAN}, {f32bits(0.25):#x}, v{MEAN}")
    for w in range(4): a(f"v_sub_f32 v{G+2*w}, v{G+2*w}, v{MEAN}")
    a(f"v_mul_f32 v{TA}, v{G}, v{G}"); a(f"v_mul_f32 v{TB}, v{G+2}, v{G+2}")
    a(f"v_fmac_f32 v{TA}, v{G+4}, v{G+4}"); a(f"v_fmac_f32 v{TB}, v{G+6}, v{G+6}")
    a(f"v_add_f32 v{TA}, v{TA}, v{TB}")
    a(f"v_mul_f32 v{RDEN}, {f32bits(1/512):#x}, v{RDEN}")
    a(f"v_fmac_f32 v{RDEN}, {f32bits(0.25):#x}, v{TA}")
    ln_finish(MEAN, RDEN, TA)
    for i in range(4): a(f"v_sub_f32 v{XV+i}, v{XV+i}, v{MEAN}")
    bf16rn(XV, 4, G)
    for i in range(4): a(f"v_mul_f32 v{XV+i}, v{XV+i}, v{RDEN}")
    bf16rn(XV, 4, G)
    for i in range(4): a(f"v_mul_f32 v{XV+i}, v{XV+i}, v{CB1+i}")
    bf16rn(XV, 4, G)
    for i in range(4): a(f"v_add_f32 v{XV+i}, v{XV+i}, v{SBV+i}")
    a(f"v_cvt_pk_bf16_f32 v{G}, v{XV}, v{XV+1}"); a(f"v_cvt_pk_bf16_f32 v{G+1}, v{XV+2}, v{XV+3}")
    setexec(-1, 0)
    a(f"ds_write_b64 v14, v[{G}:{G+1}] offset:{H2L}")
    fullexec()
    for ks in range(4): a(f"ds_read_b128 v[{G+16+4*ks}:{G+19+4*ks}], v12 offset:{H2L + 64*ks}")
    for ks in range(4):
        a(f"s_waitcnt lgkmcnt({3-ks})")
        for ct in range(2):
            acc = G + 4 + 4 * ct
            c = "0" if ks == 0 else f"v[{acc}:{acc+3}]"
            f = W1F + 4 * (2 * ks + ct)
            a(f"v_mfma_f32_16x16x32_bf16 v[{acc}:{acc+3}], v[{f}:{f+3}], v[{G+16+4*ks}:{G+19+4*ks}], {c}")
    setexec("0x00010001", "0x00010001")
    a(f"ds_write_b128 v16, v[{G+4}:{G+7}] offset:{A1L}")
    a(f"ds_write_b128 v16, v[{G+8}:{G+11}] offset:{A1L+64}")
    lds_signal(F_A1, VZ, VONE)
    lds_wait(F_A1, 4, VZ, TA, 14, sleep=0)
    for w in range(4):
        a(f"ds_read_b128 v[{G+8*w}:{G+8*w+3}], v4 offset:{A1L + 128*w}")
        a(f"ds_read_b128 v[{G+8*w+4}:{G+8*w+7}], v4 offset:{A1L + 128*w + 16}")
    a("s_waitcnt lgkmcnt(4)")
    for i in range(0, 8, 2): a(f"v_pk_add_f32 v[{G+i}:{G+i+1}], v[{G+i}:{G+i+1}], v[{G+8+i}:{G+9+i}]")
    a("s_waitcnt lgkmcnt(0)")
    for i in range(0, 8, 2): a(f"v_pk_add_f32 v[{G+16+i}:{G+17+i}], v[{G+16+i}:{G+17+i}], v[{G+24+i}:{G+25+i}]")
    for i in range(0, 8, 2): a(f"v_pk_add_f32 v[{G+i}:{G+i+1}], v[{G+i}:{G+i+1}], v[{G+16+i}:{G+17+i}]")
    bf16rn(G, 8, G + 8)
    silu_f32(G, 8, G + 8)
    for i in range(4): a(f"v_cvt_pk_bf16_f32 v{G+16+i}, v{G+2*i}, v{G+2*i+1}")
    ZD = G + 20
    for u in range(8):
        a(f"v_mfma_f32_16x16x32_bf16 v[{ZD+4*u}:{ZD+4*u+3}], v[{W2F+4*u}:{W2F+4*u+3}], v[{G+16}:{G+19}], 0")
    setexec("0x00010001", "0x00010001")
    for u in range(8):
        a(f"buffer_store_dwordx4 v[{ZD+4*u}:{ZD+4*u+3}], v17, s[60:63], s88 offen offset:{64*u} sc1")
    fullexec()
    stamp_to(10)
    a("s_cmp_ge_u32 s2, 8"); a("s_cbranch_scc1 L_end")

    a("v_lshrrev_b32 v8, 2, v0"); a("v_lshlrev_b32 v18, 11, v8")
    a("v_and_b32 v9, 3, v0"); a("v_lshl_add_u32 v18, v9, 4, v18")
    a("v_and_b32 v8, 7, v8"); a("v_lshlrev_b32 v10, 11, v8"); a("v_lshl_add_u32 v10, v9, 4, v10")
    a("s_lshl_b32 s12, s4, 7"); a("s_lshl_b32 s13, s3, 5"); a("s_add_u32 s14, s12, s13")
    a("v_lshlrev_b32 v9, 3, v9"); a("v_add_u32 v9, s14, v9")
    a(f"ds_read_b64 v[{XQ+2}:{XQ+3}], v9 offset:{X1L}")
    srd(44, 90, 1024)
    def zextra():
        a("s_add_u32 s12, s12, 32768")
        a(f"buffer_load_dwordx4 v[{G+12}:{G+15}], v10, s[60:63], s12 offen sc1")
    def zfix():
        setexec(0, -1)
        for k in range(4): a(f"v_mov_b32 v{G+12+k}, 0")
        fullexec()
    gather_sum(3, G, 18, 57, 32768, TA, extra=zextra, fix=zfix, nq=4, name="Z")
    four = [G, G + 1, G + 2, G + 3]; four_t = [G + 4, G + 5, G + 6, G + 7]
    rowreduce("v_add_f32", four, [4, 8])
    bfly("v_add_f32", four, four_t, 16); bfly("v_add_f32", four, four_t, 32)
    a("s_waitcnt lgkmcnt(0)")
    unpack(XQ, XQ + 1, XQ + 2); unpack(XQ + 2, XQ + 3, XQ + 3)
    bf16rn(G, 4, G + 4)
    for k in range(4): a(f"v_mul_f32 v{G+k}, v{G+k}, v{GB+k}")
    bf16rn(G, 4, G + 4)
    for k in range(4): a(f"v_add_f32 v{G+k}, v{G+k}, v{XQ+k}")
    a(f"v_cvt_pk_bf16_f32 v{G+4}, v{G}, v{G+1}"); a(f"v_cvt_pk_bf16_f32 v{G+5}, v{G+2}, v{G+3}")
    setexec("0xf", 0)
    a(f"buffer_store_dwordx2 v[{G+4}:{G+5}], v9, s[44:47], 0 offen")
    a("s_or_b32 s12, s2, s3"); a("s_cmp_lg_u32 s12, 0"); a("s_cbranch_scc1 L_noep")
    setexec(1, 0)
    a(f"buffer_store_dword v{TAG}, v{VZ}, s[60:63], 0 offen offset:{EPOCH} sc1")
    a.label("L_noep")
    fullexec()
    stamp_to(11)
    a.label("L_end")
    if stamp:
        fullexec()
        stamp_to(15)
        for i in range(16): a(f"v_writelane_b32 v2, s{16+i}, {i}")
        a("v_mbcnt_lo_u32_b32 v3, -1, 0"); a("v_lshlrev_b32 v3, 2, v3")
        setexec("0xffff", 0)
        a("buffer_store_dword v2, v3, s[60:63], s94 offen")
    a.label("L_exit")
    a("s_endpgm")
    a.raw('.section .rodata,"a"')
    a.raw(".p2align 6")
    a.raw(f".amdhsa_kernel {NAME}_kernel")
    a.raw("  .amdhsa_next_free_vgpr 256")
    a.raw("  .amdhsa_next_free_sgpr 100")
    a.raw("  .amdhsa_accum_offset 256")
    a.raw("  .amdhsa_group_segment_fixed_size 0")
    a.raw("  .amdhsa_kernarg_size 104")
    a.raw("  .amdhsa_user_sgpr_count 2")
    a.raw("  .amdhsa_user_sgpr_kernarg_segment_ptr 1")
    a.raw("  .amdhsa_system_sgpr_workgroup_id_x 1")
    a.raw(".end_amdhsa_kernel")
    assert a.maxv <= 256 and a.maxs <= 100, (a.maxv, a.maxs)
    return a.text()

if __name__ == "__main__":
    import json
    out = sys.argv[1]
    cfg = json.loads(sys.argv[2]) if len(sys.argv) > 2 else {}
    open(out, "w").write(gen(cfg))
```

```python
import sys, struct
from dsl import Asm
NAME = "adaLN_cond__gqa_block_cached__dense_activation_silu__decode"

EPOCH = 0
QP = 0x1000
QS = 1152
MODF = 0x50000
R1 = 0x110000
YO = 0x1B0000
ZO = 0x1C0000
MODP = 0x1E0000
BS = 8320
CNT = 0x242000
WS_END = 0x243000
DBGWS = 0x300000
F_H, F_Q, F_SP, F_O, F_X1, F_A1, F_RST, F_GO, F_AV, F_END, F_QR, F_TK = 0, 4, 8, 12, 16, 20, 24, 28, 32, 36, 40, 64
TQ = 256
HLD = 1280
QL = 1536
ML = 2560
OL = 2688
X1L = 2944
STL = 3968
YPL = 4096
A1L = 5120
H2L = 5632
QR = 8192
SP = 8192
STG = 16384
KVL = 32768
LOG2E = 0x3fb8aa3b
SCALE = 0x3db504f3
OOB = 0x10000000

def f32bits(x): return struct.unpack("<I", struct.pack("<f", x))[0]

def gen(cfg):
    a = Asm()
    def fl(name, d):
        v = cfg.get(name, d); return (" " + v) if v else ""
    KF = fl("kflags", "nt"); VF = fl("vflags", "nt"); WT = fl("wflags", "nt"); WMF = fl("wmflags", "nt")
    NTW = 64
    NS = cfg.get("ns", 64)
    RD = NTW - NS
    CH = cfg.get("ch", 4); LW = cfg.get("lw", 6)
    TOTAL = 32 * RD
    TMO = cfg.get("timeout", 1 << 15)
    lds_req = cfg.get("lds", 163840)
    stamp = cfg.get("stamp", False)
    Wp = cfg.get("wp", 8)
    a.raw(f"; @launch grid=(256,1,1) block=(512,1,1) lds={lds_req}")
    a.raw('.amdgcn_target "amdgcn-amd-amdhsa--gfx950"')
    a.raw(".text")
    a.raw(f".globl {NAME}_kernel")
    a.raw(".p2align 8")
    a.raw(f".type {NAME}_kernel,@function")
    a.raw(f"{NAME}_kernel:")

    def srd(d, p, size):
        a(f"s_mov_b32 s{d}, s{p}"); a(f"s_mov_b32 s{d+1}, s{p+1}")
        a(f"s_mov_b32 s{d+2}, {size:#x}"); a(f"s_mov_b32 s{d+3}, 0x20000")
    def setexec(lo, hi):
        a(f"s_mov_b32 exec_lo, {lo}"); a(f"s_mov_b32 exec_hi, {hi}")
    def fullexec(): a("s_mov_b64 exec, -1")
    def bf16r(d, s):
        a(f"v_cvt_pk_bf16_f32 v{d}, v{s}, v{s}"); a(f"v_lshlrev_b32 v{d}, 16, v{d}")
    def bf16r2(d0, d1, s0, s1, t):
        a(f"v_cvt_pk_bf16_f32 v{t}, v{s0}, v{s1}")
        a(f"v_lshlrev_b32 v{d0}, 16, v{t}"); a(f"v_and_b32 v{d1}, s83, v{t}")
    def bf16rn(r, n, t):
        for i in range(0, n, 2): a(f"v_cvt_pk_bf16_f32 v{t+i//2}, v{r+i}, v{r+i+1}")
        for i in range(0, n, 2):
            a(f"v_lshlrev_b32 v{r+i}, 16, v{t+i//2}"); a(f"v_and_b32 v{r+i+1}, s83, v{t+i//2}")
    def unpack(d0, d1, s):
        a(f"v_lshlrev_b32 v{d0}, 16, v{s}"); a(f"v_and_b32 v{d1}, s83, v{s}")
    def rowreduce(op, regs, rors):
        for k in rors:
            for r in regs: a(f"{op} v{r}, v{r}, v{r} row_ror:{k}")
    def bfly(op, regs, tmps, width):
        for r, t in zip(regs, tmps): a(f"v_mov_b32 v{t}, v{r}")
        for r, t in zip(regs, tmps): a(f"v_permlane{width}_swap_b32 v{r}, v{t}")
        for r, t in zip(regs, tmps): a(f"{op} v{r}, v{r}, v{t}")
    def lds_signal(flag, vz, vone):
        a("s_waitcnt lgkmcnt(0)")
        setexec(1, 0)
        a(f"ds_add_u32 v{vz}, v{vone} offset:{flag}")
        fullexec()
    def lds_wait(flag, target, vz, vt, st=14, sleep=1):
        L = a.newlabel("Lw"); L2 = a.newlabel("Lwd")
        a(f"s_mov_b32 s{st+1}, {TMO*16}")
        a.label(L)
        a(f"ds_read_b32 v{vt}, v{vz} offset:{flag}")
        a(f"s_sub_u32 s{st+1}, s{st+1}, 1")
        a("s_cbranch_scc1 L_end")
        a("s_waitcnt lgkmcnt(0)")
        a(f"v_readfirstlane_b32 s{st}, v{vt}")
        a(f"s_cmp_ge_u32 s{st}, {target}")
        if sleep:
            a(f"s_cbranch_scc1 {L2}")
            a(f"s_sleep {sleep}")
            a(f"s_branch {L}")
            a.label(L2)
        else:
            a(f"s_cbranch_scc0 {L}")
    def stamp_to(slot, t1=False):
        if not stamp: return
        if slot in (9, 10, 11) and bool(cfg.get("stampT1")) != t1: return
        a(f"s_memrealtime s[92:93]")
        a("s_waitcnt lgkmcnt(0)")
        a(f"s_mov_b32 s{16+slot}, s92")
    def stamp_init():
        if not stamp: return
        for i in range(1, 16): a(f"s_mov_b32 s{16+i}, 0")
        a("s_mov_b32 s16, s95")

    a("s_cmp_ge_u32 s2, 256")
    a("s_cbranch_scc1 L_exit")
    a("v_lshrrev_b32 v1, 6, v0")
    a("v_and_b32 v0, 63, v0")
    a("v_readfirstlane_b32 s82, v1")
    a("v_mov_b32 v2, 0")
    a("s_cmp_lg_u32 s82, 3"); a("s_cbranch_scc1 L_noinit")
    a("v_lshlrev_b32 v1, 2, v0")
    a(f"v_cmp_eq_u32 vcc, {F_TK//4}, v0")
    a(f"v_mov_b32 v3, {20*16}")
    a("v_cndmask_b32 v3, v2, v3, vcc")
    a("ds_write_b32 v1, v3")
    a("s_waitcnt lgkmcnt(0)")
    a.label("L_noinit")
    if stamp:
        a("s_memrealtime s[92:93]"); a("s_waitcnt lgkmcnt(0)"); a("s_mov_b32 s95, s92")
    a("s_load_dwordx16 s[16:31], s[0:1], 0")
    a("s_load_dwordx8 s[32:39], s[0:1], 64")
    a("s_load_dwordx2 s[40:41], s[0:1], 96")
    a("s_barrier")
    a("s_and_b32 s3, s82, 3")
    if cfg.get("hrot"):
        a(f"s_add_u32 s4, s2, {cfg['hrot']}"); a("s_and_b32 s4, s4, 7")
    else:
        a("s_and_b32 s4, s2, 7")
    a("s_lshr_b32 s5, s2, 3")
    a("s_mov_b32 s83, 0xffff0000")
    if stamp:
        a("s_lshl_b32 s94, s2, 3"); a("s_add_u32 s94, s94, s82"); a("s_lshl_b32 s94, s94, 6"); a(f"s_add_u32 s94, s94, {DBGWS}")
    a("v_lshlrev_b32 v1, 4, v0")
    a("s_cmp_ge_u32 s82, 4")
    a("s_cbranch_scc1 L_T")

    VK, VV, VTK, VML, VL, T0, T1, T2 = 0, 1, 2, 3, 4, 5, 6, 7
    D = 8; QF = 16; OA = 32; RING = 64
    a(f"s_setprio {cfg.get('sprio0', 3)}")
    a("v_and_b32 v5, 15, v0")
    a("v_lshrrev_b32 v6, 4, v0")
    a("v_and_b32 v7, 3, v0"); a("v_lshlrev_b32 v7, 8, v7"); a("v_lshl_add_u32 v7, v6, 4, v7")
    a("v_and_b32 v2, 3, v5"); a("v_lshrrev_b32 v3, 2, v5"); a("v_lshl_add_u32 v2, v2, 2, v3")
    a("v_lshlrev_b32 v2, 8, v2")
    a("v_lshl_add_u32 v0, v6, 4, v2")
    DM = cfg.get("dm", 0)
    if DM:
        assert NS == 64
        A_ = 64 - DM; R_ = 2048 - 7 * A_; M_ = -(-R_ * 65536 // 25)
        for k in range(26): assert (k * M_) >> 16 == k * R_ // 25
        def start(dst, sp):
            a(f"s_mul_i32 {dst}, {sp}, {A_}")
            a(f"s_sub_u32 s15, {sp}, 7"); a(f"s_mul_i32 s15, s15, {M_}"); a("s_lshr_b32 s15, s15, 16"); a(f"s_add_u32 s15, s15, {7*A_}")
            a(f"s_cmp_gt_u32 {sp}, 7"); a(f"s_cselect_b32 {dst}, s15, {dst}")
        start("s89", "s5")
        a("s_add_u32 s14, s5, 1"); start("s9", "s14")
        a("s_sub_u32 s81, s9, s89"); a("s_lshl_b32 s81, s81, 4")
        a("s_lshl_b32 s89, s89, 13"); a("s_lshl_b32 s91, s4, 24"); a("s_add_u32 s89, s89, s91")
    else:
        a(f"s_mov_b32 s81, {NS*16}")
        a("s_lshl_b32 s89, s4, 24"); a("s_lshl_b32 s91, s5, 19"); a("s_add_u32 s89, s89, s91")
    a("s_lshl_b32 s91, s3, 13"); a("s_add_u32 s90, s89, s91")
    a("s_add_u32 s91, s90, 4096")
    a(f"s_mov_b32 s10, {LOG2E:#x}")
    a(f"s_mov_b32 s11, {SCALE:#x}")
    a("s_mov_b32 s12, 0x05040100"); a("s_mov_b32 s13, 0x07060302")
    for r in (6, 7, 8, 9): a(f"s_mov_b32 s{r}, 1")
    a("s_mov_b32 s88, 2")
    a("s_lshl_b32 s87, s3, 15"); a(f"s_add_u32 s87, s87, {KVL}")
    a("v_mov_b32 v5, 0")
    a("s_waitcnt lgkmcnt(0)")
    srd(44, 18, 0x8000000); srd(48, 20, 0x8000000)
    if stamp: srd(60, 40, 0x400000)
    stamp_init()
    stamp_to(3)
    def reg_loads(slot):
        out = []; r = RING + 64 * slot
        for T in range(2):
            for j in range(4):
                out.append([f"buffer_load_dwordx4 v[{r}:{r+3}], v{VK}, s[44:47], {'s90' if T == 0 else 's91'} offen offset:{64*j}{KF}"]); r += 4
        for T in range(2):
            for j in range(4):
                out.append([f"buffer_load_dwordx4 v[{r}:{r+3}], v{VV}, s[48:51], {'s90' if T == 0 else 's91'} offen offset:{1024*j}{VF}"]); r += 4
        return out
    def dma_loads(ls):
        out = []
        for T in range(2):
            for j in range(4):
                m = ls * 16384 + (T * 4 + j) * 1024 - 64 * j
                out.append([f"s_add_u32 m0, s87, {m}", f"buffer_load_dwordx4 v{VK}, s[44:47], {'s90' if T == 0 else 's91'} offen offset:{64*j}{KF} lds"])
        for T in range(2):
            for j in range(4):
                m = ls * 16384 + (8 + 4 * T) * 1024
                out.append([f"s_add_u32 m0, s87, {m}", f"buffer_load_dwordx4 v{VV}, s[48:51], {'s90' if T == 0 else 's91'} offen offset:{1024*j}{VF} lds"])
        return out
    def req_ticket():
        setexec(2, 0)
        a(f"ds_add_rtn_u32 v{VTK}, v{VV}, v{VV} offset:{F_TK-16}")
        fullexec()
    def take_ticket(vflag):
        Ld = a.newlabel("Ldyn"); Lk = a.newlabel("Ltk"); Lp = a.newlabel("Ltp"); Li = a.newlabel("Lti")
        a("s_waitcnt lgkmcnt(0)")
        a(f"v_readlane_b32 s14, v{VTK}, 1")
        a(f"s_cmp_lt_u32 s14, s81")
        a(f"s_cbranch_scc0 {Ld}")
        a("s_lshl_b32 s15, s14, 9")
        a("s_add_u32 s90, s89, s15")
        a(f"s_branch {Lk}")
        a.label(Ld)
        if NS < NTW:
            a("s_lshr_b32 s14, s14, 4"); a(f"s_sub_u32 s14, s14, {NS}")
            a("s_lshl_b32 s15, s14, 2"); a(f"s_min_u32 s15, s15, 1020")
            a(f"v_mov_b32 v{T0}, 0"); a(f"v_mov_b32 v{D}, s15")
            a(f"s_mov_b32 s85, {TMO*16}")
            a.label(Lp)
            a(f"ds_read_b64 v[{T1}:{T2}], v{T0} offset:{F_AV}")
            a(f"ds_read_b32 v{D+1}, v{D} offset:{TQ}")
            a("s_sub_u32 s85, s85, 1"); a(f"s_cbranch_scc1 {Li}")
            a("s_waitcnt lgkmcnt(0)")
            a(f"v_readfirstlane_b32 s15, v{T1}")
            a(f"v_readfirstlane_b32 s84, v{T2}")
            a(f"v_readfirstlane_b32 s90, v{D+1}")
            a("s_lshl_b32 s90, s90, 13"); a("s_add_u32 s90, s90, s86")
            a("s_cmp_lt_u32 s14, s15"); a(f"s_cbranch_scc1 {Lk}")
            a("s_cmp_lg_u32 s84, 0"); a(f"s_cbranch_scc1 {Li}")
            a("s_sleep 1")
            a(f"s_branch {Lp}")
        a.label(Li)
        a(f"s_mov_b32 s90, {OOB:#x}")
        a(f"s_mov_b32 s{vflag}, 0")
        a.label(Lk)
        a("s_add_u32 s91, s90, 4096")
        req_ticket()
    a("s_lshl_b32 s86, s4, 24")
    seq = []
    for t in range(5):
        l = reg_loads(t) if t < 3 else dma_loads(t - 3)
        if t == 0: l = [l[0], l[8]] + l[1:8] + l[9:]
        if t < 4: l[-1] = l[-1] + ["s_add_u32 s90, s90, 32768", "s_add_u32 s91, s91, 32768"]
        seq += l
    GRP = 4
    for i in range(Wp):
        for ins in seq[i]: a(ins)
        if i == cfg.get("nfirst", 2) - 1:
            a("s_setprio 0"); stamp_to(1)
    a(f"v_mov_b32 v{VML}, 0xff800000"); a(f"v_mov_b32 v{VL}, 0")
    for r in range(OA, OA + 32): a(f"v_mov_b32 v{r}, 0")
    pos = list(range(Wp, 80, GRP))
    for p in pos:
        a(f"ds_read_b32 v6, v5 offset:{F_Q}")
        for i in range(p, min(p + GRP, 80)):
            if (i - p) % 2 == 0: a(f"s_waitcnt vmcnt({Wp-2})")
            for ins in seq[i]: a(ins)
        if p + GRP < 80:
            a("s_waitcnt lgkmcnt(0)")
            a("v_readfirstlane_b32 s14, v6")
            a("s_cmp_ge_u32 s14, 4")
            a(f"s_cbranch_scc1 L_U{p+GRP}")
    a("s_branch L_Pdone")
    for p in pos[1:]:
        a.label(f"L_U{p}")
        for i in range(p, min(p + GRP, 80)):
            for ins in seq[i]: a(ins)
    a.label("L_Pdone")
    stamp_to(12)
    lds_wait(F_Q, 4, 5, 6, 14, sleep=2)
    for j in range(4):
        a(f"ds_read_b128 v[{QF+4*j}:{QF+4*j+3}], v7 offset:{QL + 64*j}")
    a("s_waitcnt lgkmcnt(0)")
    req_ticket()
    a("s_waitcnt vmcnt(32)")
    stamp_to(8)
    def proc(slot, kwait, vwait):
        KB = RING + 64 * slot; VB = KB + 32
        if kwait is not None: a(f"s_waitcnt vmcnt({kwait})")
        for j in range(4):
            for T in range(2):
                kr = KB + (T * 4 + j) * 4
                c = "0" if j == 0 else f"v[{D+4*T}:{D+4*T+3}]"
                a(f"v_mfma_f32_16x16x32_bf16 v[{D+4*T}:{D+4*T+3}], v[{kr}:{kr+3}], v[{QF+4*j}:{QF+4*j+3}], {c}")
        for i in range(0, 8, 2): bf16r2(D + i, D + i + 1, D + i, D + i + 1, T0 + (i // 2) % 3)
        for i in range(8): a(f"v_mul_f32 v{D+i}, s11, v{D+i}")
        for i in range(0, 8, 2): bf16r2(D + i, D + i + 1, D + i, D + i + 1, T0 + (i // 2) % 3)
        a(f"v_max3_f32 v{T0}, v{D}, v{D+1}, v{D+2}")
        a(f"v_max3_f32 v{T1}, v{D+3}, v{D+4}, v{D+5}")
        a(f"v_max3_f32 v{T0}, v{T0}, v{D+6}, v{D+7}")
        a(f"v_max_f32 v{T0}, v{T0}, v{T1}")
        a(f"v_mul_f32 v{T0}, s10, v{T0}")
        a(f"v_cmp_gt_f32 vcc, v{T0}, v{VML}")
        Ls = a.newlabel("Lnomax")
        a(f"s_cbranch_vccz {Ls}")
        bfly("v_max_f32", [T0], [T1], 16)
        bfly("v_max_f32", [T0], [T1], 32)
        if cfg.get("intmax", True): a(f"v_ceil_f32 v{T0}, v{T0}")
        a(f"v_max_f32 v{T0}, v{T0}, v{VML}")
        a(f"v_sub_f32 v{T1}, v{VML}, v{T0}")
        a(f"v_exp_f32 v{T1}, v{T1}")
        a(f"v_mov_b32 v{VML}, v{T0}")
        a(f"v_mul_f32 v{VL}, v{VL}, v{T1}")
        for r in range(OA, OA + 32): a(f"v_mul_f32 v{r}, v{r}, v{T1}")
        a.label(Ls)
        for i in range(8): a(f"v_fma_f32 v{D+i}, v{D+i}, s10, -v{VML}")
        for i in range(8): a(f"v_exp_f32 v{D+i}, v{D+i}")
        a(f"v_add_f32 v{T0}, v{D}, v{D+1}"); a(f"v_add_f32 v{T1}, v{D+2}, v{D+3}"); a(f"v_add_f32 v{T2}, v{D+4}, v{D+5}")
        a(f"v_add_f32 v{VL}, v{VL}, v{D+6}"); a(f"v_add_f32 v{T0}, v{T0}, v{T1}"); a(f"v_add_f32 v{T2}, v{T2}, v{D+7}")
        a(f"v_add_f32 v{VL}, v{VL}, v{T0}"); a(f"v_add_f32 v{VL}, v{VL}, v{T2}")
        for q in range(4): a(f"v_cvt_pk_bf16_f32 v{D+q}, v{D+2*q}, v{D+2*q+1}")
        if vwait is not None: a(f"s_waitcnt vmcnt({vwait})")
        for t in range(8):
            u = t >> 1; sel = "s12" if (t & 1) == 0 else "s13"
            for q in range(4):
                a(f"v_perm_b32 v{KB+4*t+q}, v{VB+4*(2*q+1)+u}, v{VB+4*(2*q)+u}, {sel}")
            if t >= 1:
                tt = t - 1
                a(f"v_mfma_f32_16x16x32_bf16 v[{OA+4*tt}:{OA+4*tt+3}], v[{KB+4*tt}:{KB+4*tt+3}], v[{D}:{D+3}], v[{OA+4*tt}:{OA+4*tt+3}]")
        tt = 7
        a(f"v_mfma_f32_16x16x32_bf16 v[{OA+4*tt}:{OA+4*tt+3}], v[{KB+4*tt}:{KB+4*tt+3}], v[{D}:{D+3}], v[{OA+4*tt}:{OA+4*tt+3}]")
    a.label("L_SA")
    for slot in range(2):
        a(f"s_cmp_eq_u32 s{6+slot}, 0"); a("s_cbranch_scc1 L_Sdone")
        proc(slot, 40, 32)
        take_ticket(6 + slot)
        for l in reg_loads(slot):
            for ins in l: a(ins)
    a("s_cmp_eq_u32 s88, 3"); a("s_cbranch_scc1 L_SCs")
    a("s_mov_b32 s88, 0")
    a("s_branch L_SC")
    for ls in range(2):
        a.label(f"L_SL{ls}")
        a(f"v_add_u32 v{T0}, s87, v{VV}")
        CB = RING + 128
        for i in range(16):
            a(f"ds_read_b128 v[{CB+4*i}:{CB+4*i+3}], v{T0} offset:{ls*16384 + 1024*i}")
        a(f"s_mov_b32 s88, {1 if ls == 0 else 3}")
        a("s_waitcnt lgkmcnt(0)")
        a("s_branch L_SC")
    a.label("L_SCs")
    a("s_cmp_eq_u32 s8, 0"); a("s_cbranch_scc1 L_Sdone")
    a.label("L_SC")
    proc(2, 40, 32)
    a("s_cmp_eq_u32 s88, 0"); a("s_cbranch_scc1 L_SL0")
    a("s_cmp_eq_u32 s88, 1"); a("s_cbranch_scc1 L_SL1")
    take_ticket(8)
    for l in reg_loads(2):
        for ins in l: a(ins)
    a("s_branch L_SA")
    a.label("L_Sdone")
    stamp_to(5)
    bfly("v_add_f32", [VL], [T0], 16)
    bfly("v_add_f32", [VL], [T0], 32)
    a(f"v_lshrrev_b32 v{T0}, 4, v{VV}")
    a(f"v_and_b32 v{T1}, 15, v{T0}")
    a(f"v_lshrrev_b32 v{T2}, 4, v{T0}")
    a(f"v_lshlrev_b32 v{D}, 9, v{T1}")
    a(f"v_lshl_add_u32 v{D}, v{T2}, 4, v{D}")
    a("s_lshl_b32 s14, s3, 11")
    a(f"v_add_u32 v{D}, s14, v{D}")
    a(f"v_lshlrev_b32 v{D+1}, 5, v{T1}")
    a("s_lshl_b32 s14, s3, 3")
    a(f"v_add_u32 v{D+1}, s14, v{D+1}")
    a(f"v_mov_b32 v6, v{VML}"); a(f"v_mov_b32 v7, v{VL}")
    setexec("0x000f000f", "0x000f000f")
    for t in range(8):
        a(f"ds_write_b128 v{D}, v[{OA+4*t}:{OA+4*t+3}] offset:{SP + 64*t}")
    setexec("0xf", "0")
    a(f"ds_write_b64 v{D+1}, v[6:7] offset:{ML}")
    fullexec()
    a(f"v_mov_b32 v{T0}, 0"); a(f"v_mov_b32 v4, 1")
    lds_signal(F_SP, T0, 4)
    a("s_branch L_end")

    a.label("L_T")
    a(f"s_setprio 2")
    if cfg.get("tdummy"):
        a("v_mov_b32 v3, 1")
        a("v_lshlrev_b32 v4, 2, v0"); a("s_lshl_b32 s12, s3, 8"); a("v_add_u32 v4, s12, v4")
        a("v_mov_b32 v5, 0x3c003c00")
        if cfg.get("tdelay"):
            for _ in range(cfg["tdelay"]): a("s_sleep 32")
        a(f"ds_write_b32 v4, v5 offset:{QL}")
        lds_signal(F_Q, 2, 3)
        a("s_branch L_exit")
    a("s_and_b32 s6, s5, 3"); a("s_lshl_b32 s7, s4, 2"); a("s_add_u32 s6, s6, s7")
    a("s_lshr_b32 s7, s2, 5")
    VZ, VONE = 2, 3
    a("v_mov_b32 v3, 1")
    XA = 8; CC = 12; XJ = 16; WM = 20; WQ = 52
    XV = 70; MEAN = 78; RDEN = 79; TA = 80; TB = 81; SC = 82; SCL = 90; XQR = 98; TAG = 102
    WOF = 104; G = 120; TT = G; W1F = 184; W2F = 216; ACC = 248
    GA = 52; XQ = 56; CB1 = 60; SBV = 64; GB = 48
    def silu_f32(dst, n, t):
        for i in range(n): a(f"v_mul_f32 v{t+i}, {f32bits(-1.4426950408889634):#x}, v{dst+i}")
        for i in range(n): a(f"v_exp_f32 v{t+i}, v{t+i}")
        for i in range(n): a(f"v_add_f32 v{t+i}, 1.0, v{t+i}")
        for i in range(n): a(f"v_rcp_f32 v{t+i}, v{t+i}")
        for i in range(n): a(f"v_mul_f32 v{dst+i}, v{dst+i}, v{t+i}")
    def gemv_dot(acc, w0, n, sc, scl, wait=None):
        for i in range(n):
            if wait: wait(i)
            for u in range(4):
                if i == 0:
                    a(f"v_dot2_f32_bf16 v{acc+2*u}, v{w0+4*i+u}, v{scl+i}, 0")
                    a(f"v_dot2_f32_bf16 v{acc+2*u+1}, v{w0+4*i+u}, v{sc+i}, 0")
                else:
                    a(f"v_dot2c_f32_bf16 v{acc+2*u}, v{w0+4*i+u}, v{scl+i}")
                    a(f"v_dot2c_f32_bf16 v{acc+2*u+1}, v{w0+4*i+u}, v{sc+i}")
    def ln_finish(s1, s2, t1):
        a(f"v_max_f32 v{s2}, 0, v{s2}")
        bf16r2(s1, s2, s1, s2, t1)
        a(f"v_add_f32 v{s2}, {f32bits(1e-5):#x}, v{s2}")
        bf16r(s2, s2)
        a(f"v_sqrt_f32 v{s2}, v{s2}")
        bf16r(s2, s2)
        a(f"v_rcp_f32 v{s2}, v{s2}")
    def rscatter8(acc):
        for k in range(4): a(f"v_permlane32_swap_b32 v{acc+k}, v{acc+4+k}")
        for k in range(4): a(f"v_add_f32 v{acc+k}, v{acc+k}, v{acc+4+k}")
        a(f"v_permlane16_swap_b32 v{acc}, v{acc+2}"); a(f"v_permlane16_swap_b32 v{acc+1}, v{acc+3}")
        a(f"v_add_f32 v{acc}, v{acc}, v{acc+2}"); a(f"v_add_f32 v{acc+1}, v{acc+1}, v{acc+3}")
    def tagcheck_init(): a("s_mov_b64 s[80:81], 0")
    def tagcheck(q):
        a(f"v_cmp_ne_u64 vcc, v[{q+2}:{q+3}], v[{TAG}:{TAG+1}]")
        a("s_or_b64 s[80:81], s[80:81], vcc")
    def make_tag():
        a("s_add_u32 s96, s42, 1")
        a("s_mul_i32 s97, s96, 0x9E3779B1"); a("s_add_u32 s97, s97, 0x7F4A7C15")
        a(f"v_mov_b32 v{TAG}, s96"); a(f"v_mov_b32 v{TAG+1}, s97")
    def block_reduce(sbase, dst, nmat, mstride, sleep, name):
        L = a.newlabel("Lbr" + name); Lok = a.newlabel("Lbrok")
        a(f"s_mov_b32 s15, {TMO}")
        a.label(L)
        for m in range(nmat):
            a(f"s_add_u32 s12, s{sbase}, {m*mstride}"); a("s_add_u32 s13, s12, 4096")
            for k in range(8):
                a(f"buffer_load_dwordx4 v[{G+32*m+4*k}:{G+32*m+4*k+3}], v1, s[60:63], {'s12' if k < 4 else 's13'} offen offset:{1024*(k&3)} sc1")
        a("s_sub_u32 s15, s15, 1"); a("s_cbranch_scc1 L_end")
        tagcheck_init()
        n = 8 * nmat
        for m in range(nmat):
            for k in range(8):
                a(f"s_waitcnt vmcnt({n-1-(8*m+k)})")
                q = G + 32 * m + 4 * k
                a(f"v_cmp_ne_u64 vcc, v[{q+2}:{q+3}], v[{TAG}:{TAG+1}]")
                if k >= 1: a(f"v_pk_add_f32 v[{G+32*m}:{G+32*m+1}], v[{G+32*m}:{G+32*m+1}], v[{q}:{q+1}]")
                a("s_or_b64 s[80:81], s[80:81], vcc")
        a("s_cmp_eq_u64 s[80:81], 0"); a(f"s_cbranch_scc1 {Lok}")
        a(f"s_sleep {sleep}"); a(f"s_branch {L}")
        a.label(Lok)
        for m in range(nmat):
            a(f"v_mov_b32 v{dst+2*m}, v{G+32*m}"); a(f"v_mov_b32 v{dst+2*m+1}, v{G+32*m+1}")
        regs = list(range(dst, dst + 2 * nmat))
        bfly("v_add_f32", regs, list(range(G + 8, G + 8 + 2 * nmat)), 32)
    a("v_lshrrev_b32 v5, 4, v0"); a("v_lshlrev_b32 v7, 15, v5")
    a("v_and_b32 v19, 15, v0"); a("v_lshl_add_u32 v7, v19, 4, v7")
    a("s_lshl_b32 s15, s7, 19"); a("s_lshl_b32 s90, s3, 17"); a("s_add_u32 s15, s15, s90")
    a("s_lshl_b32 s90, s6, 8"); a("s_add_u32 s15, s15, s90")
    a("v_lshrrev_b32 v17, 3, v0"); a("v_and_b32 v18, 7, v0")
    ABL = cfg.get("abl", "")
    if "Q" in ABL: a(f"s_mov_b32 s15, {OOB:#x}")
    a("s_cmp_eq_u32 s3, 3"); a("s_cbranch_scc1 L_pathH")
    a("s_and_b32 s10, s2, 15"); a("s_lshr_b32 s99, s2, 4")
    a("s_sub_u32 s12, s3, 1"); a("s_lshl_b32 s12, s12, 8"); a("s_add_u32 s12, s12, s2")
    a("s_and_b32 s13, s12, 31"); a("s_add_u32 s13, s13, 16"); a("s_lshr_b32 s12, s12, 5")
    a("s_cmp_eq_u32 s3, 0"); a("s_cselect_b32 s10, s10, s13"); a("s_cselect_b32 s99, s99, s12")
    a("v_lshlrev_b32 v4, 3, v17")
    a("v_mul_u32_u24 v6, 24576, v17"); a("v_lshl_add_u32 v6, v18, 4, v6")
    a("s_lshl_b32 s12, s99, 6")
    a(f"s_mul_i32 s13, s99, {32*6144}"); a("s_lshl_b32 s14, s10, 7"); a("s_add_u32 s13, s13, s14")
    if "M" in ABL: a(f"s_mov_b32 s13, {OOB:#x}")
    a("s_waitcnt lgkmcnt(0)")
    a(f"s_load_dword s42, s[40:41], {EPOCH}")
    srd(48, 32, 1024); srd(52, 34, 512 * 6144)
    a(f"buffer_load_dwordx2 v[{CC}:{CC+1}], v4, s[48:51], s12 offen")
    for i in range(4):
        a(f"buffer_load_dwordx4 v[{WM+4*i}:{WM+4*i+3}], v6, s[52:55], s13 offen{WMF}")
        if i < 3: a("s_add_u32 s13, s13, 6144")
    srd(56, 22, 512 * 8192)
    for i in range(4):
        a(f"buffer_load_dwordx4 v[{WQ+4*i}:{WQ+4*i+3}], v7, s[56:59], s15 offen{WT}")
        if i < 3: a("s_add_u32 s15, s15, 8192")
    srd(60, 40, 0x400000 if stamp else WS_END)
    a(f"s_mul_i32 s89, s10, {BS}"); a("s_lshl_b32 s12, s99, 9"); a("s_add_u32 s89, s89, s12"); a(f"s_add_u32 s89, s89, {MODP}")
    a("v_lshlrev_b32 v69, 4, v5"); a("v_lshl_add_u32 v69, v18, 6, v69")
    a("s_waitcnt vmcnt(8)")
    for i in range(2): unpack(SC + 2 * i, SC + 2 * i + 1, CC + i)
    silu_f32(SC, 4, TT)
    for i in range(2): a(f"v_cvt_pk_bf16_f32 v{TT+i}, v{SC+2*i}, v{SC+2*i+1}")
    for i in range(2):
        a(f"v_lshlrev_b32 v{SC+2*i}, 16, v{TT+i}"); a(f"v_and_b32 v{SC+2*i+1}, s83, v{TT+i}")
        a(f"v_and_b32 v{SCL+2*i}, 0xffff, v{TT+i}"); a(f"v_lshrrev_b32 v{SCL+2*i+1}, 16, v{TT+i}")
    a("s_waitcnt lgkmcnt(0)")
    make_tag()
    gemv_dot(ACC, WM, 4, SC, SCL, wait=lambda i: a(f"s_waitcnt vmcnt({7-i})"))
    rscatter8(ACC)
    rowreduce("v_add_f32", [ACC, ACC + 1], [8])
    a(f"v_mov_b32 v{ACC+2}, s96"); a(f"v_mov_b32 v{ACC+3}, s97")
    setexec("0x00ff00ff", "0x00ff00ff")
    if "S" not in ABL: a(f"buffer_store_dwordx4 v[{ACC}:{ACC+3}], v69, s[60:63], s89 offen sc1")
    else: a(f"buffer_load_dword v{ACC}, v2, s[60:63], 0 offen")
    fullexec()
    srd(44, 16, 1024)
    a("s_branch L_joinH")
    a.label("L_pathH")
    a("v_and_b32 v6, 31, v0"); a("v_lshlrev_b32 v6, 2, v6")
    a("s_lshl_b32 s14, s7, 7")
    a("s_waitcnt lgkmcnt(0)")
    a(f"s_load_dword s42, s[40:41], {EPOCH}")
    srd(44, 16, 1024)
    a(f"buffer_load_dwordx4 v[{XA}:{XA+3}], v1, s[44:47], 0 offen")
    a(f"buffer_load_dword v{XJ}, v6, s[44:47], s14 offen")
    srd(56, 22, 512 * 8192)
    for i in range(4):
        a(f"buffer_load_dwordx4 v[{WQ+4*i}:{WQ+4*i+3}], v7, s[56:59], s15 offen{WT}")
        if i < 3: a("s_add_u32 s15, s15, 8192")
    srd(60, 40, 0x400000 if stamp else WS_END)
    a(f"s_mul_i32 s86, s7, {BS}"); a(f"s_add_u32 s86, s86, {MODP}")
    a("s_waitcnt vmcnt(4)")
    for i in range(4): unpack(XV + 2 * i, XV + 2 * i + 1, XA + i)
    a(f"v_readfirstlane_b32 s14, v{XV}")
    for i in range(8): a(f"v_subrev_f32 v{XV+i}, s14, v{XV+i}")
    a(f"v_add_f32 v{MEAN}, v{XV}, v{XV+1}"); a(f"v_mul_f32 v{RDEN}, v{XV}, v{XV}"); a(f"v_fmac_f32 v{RDEN}, v{XV+1}, v{XV+1}")
    for i in range(2, 8):
        a(f"v_add_f32 v{MEAN}, v{MEAN}, v{XV+i}"); a(f"v_fmac_f32 v{RDEN}, v{XV+i}, v{XV+i}")
    rowreduce("v_add_f32", [MEAN, RDEN], [1, 2, 4, 8])
    bfly("v_add_f32", [MEAN, RDEN], [TA, TB], 16)
    bfly("v_add_f32", [MEAN, RDEN], [TA, TB], 32)
    a(f"v_mul_f32 v{MEAN}, {f32bits(1/512):#x}, v{MEAN}")
    a(f"v_mul_f32 v{RDEN}, {f32bits(1/512):#x}, v{RDEN}")
    a(f"v_fma_f32 v{RDEN}, -v{MEAN}, v{MEAN}, v{RDEN}")
    a(f"v_add_f32 v{MEAN}, s14, v{MEAN}")
    ln_finish(MEAN, RDEN, TA)
    LN0 = CC; LN1 = CC + 1
    unpack(LN0, LN1, XJ)
    a(f"v_sub_f32 v{LN0}, v{LN0}, v{MEAN}"); a(f"v_sub_f32 v{LN1}, v{LN1}, v{MEAN}"); bf16rn(LN0, 2, TA)
    a(f"v_mul_f32 v{LN0}, v{LN0}, v{RDEN}"); a(f"v_mul_f32 v{LN1}, v{LN1}, v{RDEN}"); bf16rn(LN0, 2, TA)
    a("s_waitcnt lgkmcnt(0)")
    make_tag()
    if cfg.get("adelay", 56): a(f"s_sleep {cfg.get('adelay', 56)}")
    if "G" not in ABL: block_reduce(86, SC, 2, 8 * BS, cfg.get("asleep", 16), "A")
    else: a("s_waitcnt vmcnt(0)")
    bf16rn(SC, 4, G + 4)
    a(f"v_add_f32 v{SC+2}, 1.0, v{SC+2}"); a(f"v_add_f32 v{SC+3}, 1.0, v{SC+3}"); bf16rn(SC + 2, 2, G + 4)
    a(f"v_mul_f32 v{SC+2}, v{LN0}, v{SC+2}"); a(f"v_mul_f32 v{SC+3}, v{LN1}, v{SC+3}"); bf16rn(SC + 2, 2, G + 4)
    a(f"v_add_f32 v{SC}, v{SC+2}, v{SC}"); a(f"v_add_f32 v{SC+1}, v{SC+3}, v{SC+1}")
    a(f"v_cvt_pk_bf16_f32 v{G+4}, v{SC}, v{SC+1}")
    setexec(-1, 0)
    a(f"ds_write_b32 v6, v{G+4} offset:{HLD}")
    fullexec()
    lds_signal(F_H, VZ, VONE)
    a.label("L_joinH")
    a("s_mul_i32 s9, s4, 7"); a("s_add_u32 s9, s9, s5")
    a("s_cmp_lt_u32 s5, 7"); a("s_cselect_b32 s8, 1, 0")
    srd(68, 24, 4096 * 1024); srd(72, 28, 512 * 3584); srd(76, 30, 1792 * 1024)
    srd(64, 38, 256)
    a("s_mov_b32 s90, s36"); a("s_mov_b32 s91, s37")
    a("s_lshl_b32 s84, s6, 3"); a("s_add_u32 s84, s84, s7"); a(f"s_mul_i32 s84, s84, {QS}")
    a("s_lshl_b32 s12, s3, 8"); a("s_add_u32 s84, s84, s12"); a(f"s_add_u32 s84, s84, {QP}")
    a("s_lshl_b32 s85, s4, 2"); a("s_add_u32 s85, s85, s3")
    a(f"s_mul_i32 s98, s85, {8*QS}"); a(f"s_add_u32 s98, s98, {QP}")
    a("s_lshl_b32 s85, s85, 5"); a("s_add_u32 s85, s85, s5"); a("s_mul_i32 s85, s85, 640"); a(f"s_add_u32 s85, s85, {R1}")
    a("s_lshl_b32 s87, s6, 11"); a("s_lshl_b32 s13, s7, 8"); a("s_add_u32 s87, s87, s13")
    a("s_lshl_b32 s13, s3, 6"); a("s_add_u32 s87, s87, s13"); a(f"s_add_u32 s87, s87, {YO}")
    a("s_lshl_b32 s88, s9, 11"); a("s_lshl_b32 s12, s3, 9"); a("s_add_u32 s88, s88, s12"); a(f"s_add_u32 s88, s88, {ZO}")
    stamp_init()
    stamp_to(1)
    a("s_lshl_b32 s12, s3, 5"); a("v_lshl_add_u32 v4, v5, 3, s12")
    a("v_lshlrev_b32 v6, 5, v19"); a("v_lshl_add_u32 v6, v5, 3, v6")
    a("s_lshl_b32 s12, s3, 9"); a("v_add_u32 v6, s12, v6")
    a("s_lshl_b32 s12, s3, 7"); a("v_lshl_add_u32 v68, v0, 3, s12")
    a("v_lshrrev_b32 v18, 5, v0")
    a("v_and_b32 v7, 31, v0"); a("v_lshlrev_b32 v7, 4, v7"); a("v_lshl_add_u32 v7, v18, 11, v7")
    lds_wait(F_H, 1, VZ, TA, 14, sleep=1)
    stamp_to(13)
    HC = G + 8; HL = G + 12
    a(f"ds_read_b64 v[{G+4}:{G+5}], v4 offset:{HLD}")
    a("s_waitcnt lgkmcnt(0)")
    for k in range(2):
        a(f"v_lshlrev_b32 v{HC+2*k}, 16, v{G+4+k}"); a(f"v_and_b32 v{HC+2*k+1}, s83, v{G+4+k}")
        a(f"v_and_b32 v{HL+2*k}, 0xffff, v{G+4+k}"); a(f"v_lshrrev_b32 v{HL+2*k+1}, 16, v{G+4+k}")
    a("s_waitcnt vmcnt(1)")
    gemv_dot(ACC, WQ, 4, HC, HL)
    rscatter8(ACC)
    a(f"ds_write_b64 v6, v[{ACC}:{ACC+1}] offset:{QR}")
    lds_signal(F_QR, VZ, VONE)
    a(f"v_mov_b32 v{ACC+2}, s96"); a(f"v_mov_b32 v{ACC+3}, s97")
    lds_wait(F_QR, 4, VZ, TA, 14, sleep=0)
    setexec("0xffff", 0)
    for w in range(4): a(f"ds_read_b64 v[{G+2*w}:{G+2*w+1}], v68 offset:{QR + 512*w}")
    a("s_waitcnt lgkmcnt(0)")
    a(f"v_pk_add_f32 v[{G}:{G+1}], v[{G}:{G+1}], v[{G+2}:{G+3}]")
    a(f"v_pk_add_f32 v[{G+4}:{G+5}], v[{G+4}:{G+5}], v[{G+6}:{G+7}]")
    a(f"v_pk_add_f32 v[{ACC}:{ACC+1}], v[{G}:{G+1}], v[{G+4}:{G+5}]")
    if "P" not in ABL: a(f"buffer_store_dwordx4 v[{ACC}:{ACC+3}], v1, s[60:63], s84 offen sc1")
    fullexec()
    stamp_to(2)
    if cfg.get("stop") == "qp":
        a("v_lshlrev_b32 v4, 2, v0"); a("s_lshl_b32 s12, s3, 8"); a("v_add_u32 v4, s12, v4")
        a("v_mov_b32 v5, 0x3c003c00")
        a(f"ds_write_b32 v4, v5 offset:{QL}")
        lds_signal(F_Q, 2, 3)
        a("s_branch L_exit")
    if cfg.get("skipx"): a("s_branch L_skipx")
    a("v_lshrrev_b32 v17, 3, v0")
    a("v_and_b32 v18, 7, v0"); a("v_lshlrev_b32 v18, 4, v18")
    a("v_lshl_add_u32 v4, v17, 13, v18")
    a("v_lshl_add_u32 v6, v17, 10, v18")
    a("s_lshl_b32 s12, s6, 17"); a("s_lshl_b32 s13, s7, 7"); a("s_add_u32 s12, s12, s13")
    a("s_lshl_b32 s13, s3, 11"); a("s_add_u32 s12, s12, s13")
    for i in range(4):
        off = (64 * (i & 1) + (i >> 1)) * 1024
        a(f"s_add_u32 s13, s12, {off}")
        a(f"buffer_load_dwordx4 v[{WOF+4*i}:{WOF+4*i+3}], v4, s[68:71], s13 offen{WT}")
    a("s_cmp_eq_u32 s8, 0"); a("s_cbranch_scc1 L_xnotM")
    a("v_lshrrev_b32 v17, 2, v0"); a("v_mul_u32_u24 v5, 3584, v17")
    a("v_and_b32 v18, 3, v0"); a("v_lshl_add_u32 v5, v18, 4, v5")
    a(f"s_mul_i32 s12, s3, {128*3584}"); a("s_lshl_b32 s13, s9, 6"); a("s_add_u32 s12, s12, s13")
    for i in range(8):
        a(f"buffer_load_dwordx4 v[{W1F+4*i}:{W1F+4*i+3}], v5, s[72:75], s12 offen{WMF}")
        if i < 7: a(f"s_add_u32 s12, s12, {16*3584}")
    a("s_lshl_b32 s12, s9, 15"); a("s_lshl_b32 s13, s3, 8"); a("s_add_u32 s12, s12, s13")
    for hh in range(2):
        for i in range(4):
            a(f"s_add_u32 s13, s12, {8192*i}")
            a(f"buffer_load_dwordx4 v[{W2F+16*hh+4*i}:{W2F+16*hh+4*i+3}], v6, s[76:79], s13 offen offset:{128*hh}{WT}")
    a("v_and_b32 v5, 31, v0"); a("v_lshlrev_b32 v5, 3, v5"); a("s_lshl_b32 s12, s3, 8")
    a(f"buffer_load_dwordx2 v[{XQR}:{XQR+1}], v5, s[44:47], s12 offen")
    a.label("L_xnotM")
    a.label("L_xdone")
    for r in range(8, 12): a(f"v_mov_b32 v{r}, -1")
    setexec(-1, 0)
    a("buffer_store_dwordx4 v[8:11], v1, s[60:63], s85 offen sc1")
    a("s_cmp_eq_u32 s8, 0"); a("s_cbranch_scc1 L_nz")
    a("buffer_store_dwordx4 v[8:11], v1, s[60:63], s88 offen sc1")
    a.label("L_nz")
    setexec("0xf", 0)
    a("buffer_store_dwordx4 v[8:11], v1, s[60:63], s87 offen sc1")
    setexec(1, 0)
    a("buffer_store_dword v8, v1, s[60:63], s85 offen offset:512 sc1")
    a("s_lshr_b32 s12, s2, 3"); a("s_or_b32 s12, s12, s3"); a("s_cmp_lg_u32 s12, 0"); a("s_cbranch_scc1 L_ncnt")
    a("s_lshl_b32 s12, s4, 8"); a(f"s_add_u32 s12, s12, {CNT}")
    a("buffer_store_dword v2, v2, s[60:63], s12 offen sc1")
    a.label("L_ncnt")
    fullexec()
    a.label("L_skipx")
    stamp_to(9, True)
    a("v_lshlrev_b32 v18, 2, v0"); a("s_lshl_b32 s12, s3, 8"); a("v_add_u32 v18, s12, v18")
    if cfg.get("qdelay", 64): a(f"s_sleep {cfg.get('qdelay', 64)}")
    a(f"s_mov_b32 s15, {TMO}")
    a.label("L_Q")
    a("s_mov_b32 s12, s98")
    for i in range(8):
        a(f"buffer_load_dwordx4 v[{G+4*i}:{G+4*i+3}], v1, s[60:63], s12 offen sc1")
        if i < 7: a(f"s_add_u32 s12, s12, {QS}")
    a("s_sub_u32 s15, s15, 1"); a("s_cbranch_scc1 L_end")
    tagcheck_init()
    for i in range(8):
        a(f"s_waitcnt vmcnt({7-i})")
        a(f"v_cmp_ne_u64 vcc, v[{G+4*i+2}:{G+4*i+3}], v[{TAG}:{TAG+1}]")
        if i >= 1: a(f"v_pk_add_f32 v[{G}:{G+1}], v[{G}:{G+1}], v[{G+4*i}:{G+4*i+1}]")
        a("s_or_b64 s[80:81], s[80:81], vcc")
    a("s_cmp_eq_u64 s[80:81], 0"); a("s_cbranch_scc1 L_Qok")
    a(f"s_sleep {cfg.get('qsleep', 20)}"); a("s_branch L_Q")
    a.label("L_Qok")
    a(f"v_cvt_pk_bf16_f32 v{G+4}, v{G}, v{G+1}")
    a(f"ds_write_b32 v18, v{G+4} offset:{QL}")
    lds_signal(F_Q, VZ, VONE)
    stamp_to(4)
    if cfg.get("stop") == "q": a("s_branch L_exit")

    a("s_cmp_lt_u32 s2, 224"); a("s_cbranch_scc1 L_nored")
    a("s_cmp_lg_u32 s3, 1"); a("s_cbranch_scc1 L_nored")
    a("s_sub_u32 s14, s2, 208"); a(f"s_mul_i32 s86, s14, {BS}"); a(f"s_add_u32 s86, s86, {MODP}")
    a(f"s_mul_i32 s89, s14, 640"); a(f"s_add_u32 s89, s89, {MODF}")
    block_reduce(86, ACC, 1, 0, 8, "R")
    bf16rn(ACC, 2, G + 4)
    a(f"v_mov_b32 v{ACC+2}, s96"); a(f"v_mov_b32 v{ACC+3}, s97")
    setexec(-1, 0)
    a(f"buffer_store_dwordx4 v[{ACC}:{ACC+3}], v1, s[60:63], s89 offen sc1")
    fullexec()
    a.label("L_nored")
    a("s_lshl_b32 s12, s3, 12")
    a("v_add_u32 v19, s12, v1")
    a("v_lshrrev_b32 v17, 4, v0"); a("v_and_b32 v18, 15, v0"); a("v_lshl_add_u32 v18, v18, 1, s12")
    a("v_lshl_add_u32 v4, v17, 10, v18")
    a("v_lshl_add_u32 v5, v17, 9, v18")
    a("v_lshlrev_b32 v17, 4, v17")
    def transpose4(dst, rb):
        for q in range(4): a(f"ds_write_b128 v19, v[{dst+4*q}:{dst+4*q+3}] offset:{STG + 1024*q}")
        for f in range(4):
            for e in range(8):
                if rb == 128: off = e * 128 + f * 32; vb = 4
                else: off = (f >> 1) * 2048 + e * 64 + (f & 1) * 32; vb = 5
                a(f"ds_read_u16 v{G+8*f+e}, v{vb} offset:{STG + off}")
            if f == 1: a("s_waitcnt lgkmcnt(4)")
        a("s_waitcnt lgkmcnt(0)")
        for f in range(4):
            for q in range(4): a(f"v_lshl_or_b32 v{dst+4*f+q}, v{G+8*f+2*q+1}, 16, v{G+8*f+2*q}")
    a("s_waitcnt vmcnt(0)")
    stamp_to(10, True)
    setexec(1, 0)
    a(f"ds_add_rtn_u32 v{TA}, v{VZ}, v{VONE} offset:{F_RST}")
    a("s_waitcnt lgkmcnt(0)")
    a(f"v_readfirstlane_b32 s14, v{TA}")
    a("s_cmp_lg_u32 s14, 3"); a("s_cbranch_scc1 L_narr")
    a(f"v_mov_b32 v{TA}, 1")
    a(f"buffer_atomic_add v{TA}, v{VZ}, s[64:67], 0 offen sc0 sc1")
    a("s_waitcnt vmcnt(0)")
    a(f"v_readfirstlane_b32 s14, v{TA}")
    a("s_cmp_lg_u32 s14, 255"); a("s_cbranch_scc1 L_narr")
    a(f"buffer_store_dword v{VONE}, v{VZ}, s[64:67], 0 offen offset:128 sc1")
    a.label("L_narr")
    fullexec()
    stamp_to(11, True)
    transpose4(WOF, 128)
    a("s_cmp_eq_u32 s8, 0"); a("s_cbranch_scc1 L_notM05")
    transpose4(W1F, 64); transpose4(W1F + 16, 64)
    transpose4(W2F, 128); transpose4(W2F + 16, 128)
    a.label("L_notM05")
    a("s_cmp_lg_u32 s3, 0"); a("s_cbranch_scc1 L_gow")
    a(f"s_mov_b32 s15, {TMO}")
    setexec(1, 0)
    a.label("L_go")
    a(f"s_sleep {cfg.get('gosleep', 100)}")
    a(f"buffer_load_dword v{TA}, v{VZ}, s[64:67], 0 offen offset:128 sc1")
    a("s_sub_u32 s15, s15, 1"); a("s_cbranch_scc1 L_end")
    a("s_waitcnt vmcnt(0)")
    a(f"v_readfirstlane_b32 s14, v{TA}")
    a("s_cmp_eq_u32 s14, 0"); a("s_cbranch_scc1 L_go")
    a(f"ds_add_u32 v{VZ}, v{VONE} offset:{F_GO}")
    fullexec()
    a.label("L_gow")
    lds_wait(F_GO, 1, VZ, TA, 14, sleep=8)
    stamp_to(3)
    a("s_cmp_eq_u32 s8, 0"); a("s_cbranch_scc1 L_notM1")
    unpack(XQ, XQ + 1, XQR); unpack(XQ + 2, XQ + 3, XQR + 1)
    a("v_and_b32 v4, 15, v0"); a("v_lshlrev_b32 v4, 5, v4"); a("v_bfe_u32 v6, v0, 4, 1"); a("v_mul_u32_u24 v6, 640, v6"); a("v_add_u32 v4, v4, v6")
    a("v_and_b32 v6, 3, v0"); a("v_lshlrev_b32 v6, 5, v6")
    a(f"s_mul_i32 s12, s3, 1280"); a(f"s_add_u32 s12, s12, {MODF + 16*640}")
    a(f"s_add_u32 s13, s12, {8*640}"); a(f"s_add_u32 s14, s12, {16*640}")
    a(f"s_mul_i32 s86, s4, 640"); a("s_lshl_b32 s89, s3, 7"); a("s_add_u32 s86, s86, s89"); a(f"s_add_u32 s86, s86, {MODF + 40*640}")
    a(f"s_mov_b32 s15, {TMO}")
    a.label("L_mf")
    for k, (sb, va) in enumerate((("s12", 4), ("s13", 4), ("s14", 4), ("s86", 6))):
        a(f"buffer_load_dwordx4 v[{G+8*k}:{G+8*k+3}], v{va}, s[60:63], {sb} offen sc1")
        a(f"buffer_load_dwordx4 v[{G+8*k+4}:{G+8*k+7}], v{va}, s[60:63], {sb} offen offset:16 sc1")
    a("s_sub_u32 s15, s15, 1"); a("s_cbranch_scc1 L_end")
    tagcheck_init()
    a("s_waitcnt vmcnt(0)")
    for k in range(8): tagcheck(G + 4 * k)
    a("s_cmp_eq_u64 s[80:81], 0"); a("s_cbranch_scc1 L_mfok")
    a("s_sleep 16"); a("s_branch L_mf")
    a.label("L_mfok")
    for k, dst in enumerate((GA, SBV, CB1, GB)):
        a(f"v_mov_b32 v{dst}, v{G+8*k}"); a(f"v_mov_b32 v{dst+1}, v{G+8*k+1}")
        a(f"v_mov_b32 v{dst+2}, v{G+8*k+4}"); a(f"v_mov_b32 v{dst+3}, v{G+8*k+5}")
    for i in range(4): a(f"v_add_f32 v{CB1+i}, 1.0, v{CB1+i}")
    bf16rn(CB1, 4, TA)
    a.label("L_notM1")
    stamp_to(8)
    if cfg.get("stop") == "t1": a("s_branch L_exit")

    def pk_sum_quads(dst, n):
        step = 1
        while step < n:
            for i in range(0, n, 2 * step):
                if i + step < n:
                    for k in (0, 2):
                        a(f"v_pk_add_f32 v[{dst+4*i+k}:{dst+4*i+k+1}], v[{dst+4*i+k}:{dst+4*i+k+1}], v[{dst+4*(i+step)+k}:{dst+4*(i+step)+k+1}]")
            step *= 2
    def gather_sum(n, dst, vaddr, sbase, stride, chk, extra=None, fix=None, nq=None, sleep=0, name="G"):
        L = a.newlabel("L" + name); Lok = a.newlabel("L" + name + "ok")
        a(f"s_mov_b32 s15, {TMO}")
        a.label(L)
        a(f"s_mov_b32 s12, s{sbase}")
        for i in range(n):
            a(f"buffer_load_dwordx4 v[{dst+4*i}:{dst+4*i+3}], v{vaddr}, s[60:63], s12 offen sc1")
            if i < n - 1: a(f"s_add_u32 s12, s12, {stride}")
        if extra: extra()
        a("s_waitcnt vmcnt(0)")
        if fix: fix()
        pk_sum_quads(dst, nq or n)
        a(f"v_pk_add_f32 v[{chk}:{chk+1}], v[{dst}:{dst+1}], v[{dst+2}:{dst+3}]")
        a("s_sub_u32 s15, s15, 1")
        a(f"v_cmp_u_f32 vcc, v{chk}, v{chk+1}")
        a(f"s_cbranch_scc1 {Lok}")
        if sleep:
            a(f"s_cbranch_vccz {Lok}"); a(f"s_sleep {sleep}"); a(f"s_branch {L}")
        else:
            a(f"s_cbranch_vccnz {L}")
        a.label(Lok)
    def gather_chk(loads, regs, chk, sleep=0, name="C"):
        L = a.newlabel("L" + name); Lok = a.newlabel("L" + name + "ok")
        a(f"s_mov_b32 s15, {TMO}")
        a.label(L)
        loads()
        a("s_sub_u32 s15, s15, 1"); a("s_cbranch_scc1 L_end")
        a("s_waitcnt vmcnt(0)")
        c0, c1 = chk, chk + 1
        a(f"v_max3_u32 v{c0}, v{regs[0]}, v{regs[1]}, v{regs[2]}")
        a(f"v_max3_u32 v{c1}, v{regs[3]}, v{regs[4]}, v{regs[5]}")
        rest = regs[6:]; k = 0
        while rest:
            c = c0 if k % 2 == 0 else c1
            if len(rest) >= 2:
                a(f"v_max3_u32 v{c}, v{c}, v{rest[0]}, v{rest[1]}"); rest = rest[2:]
            else:
                a(f"v_max_u32 v{c}, v{c}, v{rest[0]}"); rest = rest[1:]
            k += 1
        a(f"v_max_u32 v{c0}, v{c0}, v{c1}")
        a(f"v_cmp_eq_u32 vcc, -1, v{c0}")
        if sleep:
            a(f"s_cbranch_vccz {Lok}"); a(f"s_sleep {sleep}"); a(f"s_branch {L}")
        else:
            a(f"s_cbranch_vccnz {L}")
        a.label(Lok)

    a("s_lshl_b32 s12, s3, 9"); a("v_add_u32 v18, s12, v7")
    a("s_lshl_b32 s12, s3, 5"); a("v_mov_b32 v69, s12")
    a("v_cmp_le_u32 s[80:81], 32, v0")
    a("v_lshrrev_b32 v8, 3, v0"); a("v_mul_u32_u24 v9, 640, v8")
    a("v_and_b32 v10, 7, v0"); a("v_lshl_add_u32 v8, v10, 4, v9")
    a("s_lshl_b32 s13, s3, 7"); a("v_add_u32 v8, s13, v8")
    a("s_lshl_b32 s12, s3, 6"); a("v_lshl_add_u32 v10, v0, 3, s12")
    a("v_add_u32 v11, s12, v17")
    a("s_lshl_b32 s12, s3, 8"); a("v_add_u32 v12, s12, v17")
    a("s_lshl_b32 s12, s3, 6"); a("v_add_u32 v13, s12, v1")
    a(f"s_mul_i32 s52, s6, {32*640}"); a(f"s_add_u32 s52, s52, {R1}")
    a(f"s_add_u32 s53, s52, {8*640}"); a(f"s_add_u32 s54, s52, {16*640}"); a(f"s_add_u32 s55, s52, {24*640}")
    a("s_lshl_b32 s56, s3, 9"); a(f"s_add_u32 s56, s56, {YO}")
    a("s_lshl_b32 s57, s4, 8"); a("s_lshl_b32 s13, s3, 6"); a("s_add_u32 s57, s57, s13"); a(f"s_add_u32 s57, s57, {ZO}")
    a("s_lshl_b32 s12, s3, 8"); a("v_lshl_add_u32 v14, v0, 3, s12")
    a("s_lshl_b32 s12, s3, 3"); a("v_mov_b32 v15, s12")
    a("s_lshl_b32 s12, s3, 7"); a("v_add_u32 v16, s12, v17")
    a("v_lshlrev_b32 v4, 1, v17")
    if NS < NTW:
        a("s_cmp_lg_u32 s3, 3"); a("s_cbranch_scc1 L_nofetch")
        a("s_mov_b32 s58, 0")
        a("s_lshl_b32 s59, s4, 8"); a(f"s_add_u32 s59, s59, {CNT}")
        a(f"s_mov_b32 s15, {TMO*16}")
        a(f"v_lshlrev_b32 v{G+1}, 2, v0")
        a.label("L_fetch")
        a(f"ds_read_b32 v{TA}, v{VZ} offset:{F_TK}")
        a("s_sub_u32 s15, s15, 1"); a("s_cbranch_scc1 L_fend")
        a("s_waitcnt lgkmcnt(0)")
        a(f"v_readfirstlane_b32 s14, v{TA}")
        a("s_lshr_b32 s14, s14, 4"); a(f"s_add_u32 s14, s14, {LW}")
        a(f"s_add_u32 s12, s58, {NS}")
        a("s_cmp_le_u32 s12, s14"); a("s_cbranch_scc1 L_fgo")
        a(f"s_sleep {cfg.get('fsleep', 4)}")
        a("s_branch L_fetch")
        a.label("L_fgo")
        a(f"s_cmp_gt_u32 s58, {256 - CH}"); a("s_cbranch_scc1 L_fend")
        setexec(1, 0)
        a(f"v_mov_b32 v{TA}, {CH}")
        a(f"buffer_atomic_add v{TA}, v{VZ}, s[60:63], s59 offen sc0 sc1")
        a("s_waitcnt vmcnt(0)")
        fullexec()
        a(f"v_readfirstlane_b32 s14, v{TA}")
        a(f"s_cmp_ge_u32 s14, {TOTAL}"); a("s_cbranch_scc1 L_fend")
        a(f"v_add_u32 v{G}, s14, v0")
        if cfg.get("poolmap", "spread") == "spread":
            lg = CH.bit_length() - 1
            a(f"v_bfe_u32 v{G+2}, v{G}, {lg}, 5"); a(f"v_lshlrev_b32 v{G+2}, 6, v{G+2}")
            a(f"v_lshrrev_b32 v{G+3}, {lg+5}, v{G}"); a(f"v_lshlrev_b32 v{G+3}, {lg}, v{G+3}")
            a(f"v_and_b32 v{G}, {CH-1}, v{G}"); a(f"v_add3_u32 v{G}, v{G}, v{G+2}, v{G+3}"); a(f"v_add_u32 v{G}, {NS}, v{G}")
        else:
            a(f"v_lshrrev_b32 v{G+2}, {RD.bit_length()-1}, v{G}"); a(f"v_lshlrev_b32 v{G+2}, 6, v{G+2}")
            a(f"v_and_b32 v{G}, {RD-1}, v{G}"); a(f"v_add3_u32 v{G}, v{G}, v{G+2}, {NS}")
        a("s_lshl_b32 s12, s58, 2"); a(f"v_add_u32 v{G+2}, s12, v{G+1}")
        a(f"s_add_u32 s58, s58, {CH}")
        a(f"v_mov_b32 v{G+3}, s58")
        setexec((1 << CH) - 1, 0)
        a(f"ds_write_b32 v{G+2}, v{G} offset:{TQ}")
        setexec(1, 0)
        a(f"ds_write_b32 v{VZ}, v{G+3} offset:{F_AV}")
        fullexec()
        a("s_branch L_fetch")
        a.label("L_fend")
        setexec(1, 0)
        a(f"ds_write_b32 v{VZ}, v{VONE} offset:{F_END}")
        fullexec()
        a.label("L_nofetch")
    lds_wait(F_SP, 4, VZ, TA, 14, sleep=cfg.get("spsleep", 1))
    a("s_setprio 3")
    stamp_to(5)
    MLR = 20; OA_ = 28; OB_ = 32
    a(f"ds_read_b128 v[{MLR}:{MLR+3}], v69 offset:{ML}")
    a(f"ds_read_b128 v[{MLR+4}:{MLR+7}], v69 offset:{ML+16}")
    a(f"ds_read_b128 v[{OA_}:{OA_+3}], v18 offset:{SP}")
    a(f"ds_read_b128 v[{OB_}:{OB_+3}], v18 offset:{SP+4096}")
    a("s_waitcnt lgkmcnt(2)")
    a(f"v_max3_f32 v36, v{MLR}, v{MLR+2}, v{MLR+4}"); a(f"v_max_f32 v36, v36, v{MLR+6}")
    for w in range(4): a(f"v_sub_f32 v{MLR+2*w}, v{MLR+2*w}, v36")
    for w in range(4): a(f"v_exp_f32 v{MLR+2*w}, v{MLR+2*w}")
    a(f"v_mul_f32 v37, v{MLR}, v{MLR+1}")
    for w in range(1, 4): a(f"v_fmac_f32 v37, v{MLR+2*w}, v{MLR+2*w+1}")
    a(f"v_cndmask_b32 v38, v{MLR}, v{MLR+2}, s[80:81]")
    a(f"v_cndmask_b32 v39, v{MLR+4}, v{MLR+6}, s[80:81]")
    a("v_rcp_f32 v40, v37"); a("v_log_f32 v41, v37")
    a("s_waitcnt lgkmcnt(0)")
    a("v_mul_f32 v38, v38, v40"); a("v_mul_f32 v39, v39, v40")
    a("v_add_f32 v41, v41, v36")
    for k in range(4): a(f"v_mul_f32 v{OA_+k}, v{OA_+k}, v38")
    for k in range(4): a(f"v_fmac_f32 v{OA_+k}, v{OB_+k}, v39")
    bfly("v_add_f32", [OA_, OA_ + 1, OA_ + 2, OA_ + 3], [OB_, OB_ + 1, OB_ + 2, OB_ + 3], 32)
    setexec(-1, 0)
    a(f"buffer_store_dwordx4 v[{OA_}:{OA_+3}], v1, s[60:63], s85 offen sc1")
    setexec(1, 0)
    a("buffer_store_dword v41, v2, s[60:63], s85 offen offset:512 sc1")
    fullexec()

    LS = 44
    def wloads():
        for i in range(4):
            a(f"buffer_load_dwordx4 v[{G+4*i}:{G+4*i+3}], v8, s[60:63], s{52+i} offen sc1")
        for i in range(4):
            a(f"buffer_load_dword v{LS+i}, v9, s[60:63], s{52+i} offen offset:512 sc1")
    gather_chk(wloads, list(range(G, G + 16)) + [LS, LS + 1, LS + 2, LS + 3], TA, sleep=cfg.get("wsleep", 0), name="W")
    stamp_to(6)
    a(f"v_max3_f32 v36, v{LS}, v{LS+1}, v{LS+2}"); a(f"v_max_f32 v36, v36, v{LS+3}")
    rowreduce("v_max_f32", [36], [8])
    bfly("v_max_f32", [36], [37], 16); bfly("v_max_f32", [36], [37], 32)
    for i in range(4): a(f"v_sub_f32 v{LS+i}, v{LS+i}, v36")
    for i in range(4): a(f"v_exp_f32 v{LS+i}, v{LS+i}")
    for k in range(4): a(f"v_mul_f32 v{G+k}, v{G+k}, v{LS}")
    for i in range(1, 4):
        for k in range(4): a(f"v_fmac_f32 v{G+k}, v{G+4*i+k}, v{LS+i}")
    a(f"v_add_f32 v{G+4}, v{LS}, v{LS+1}"); a(f"v_add_f32 v{G+5}, v{LS+2}, v{LS+3}"); a(f"v_add_f32 v{G+4}, v{G+4}, v{G+5}")
    five = [G, G + 1, G + 2, G + 3, G + 4]; five_t = [G + 8, G + 9, G + 10, G + 11, G + 12]
    rowreduce("v_add_f32", five, [8])
    bfly("v_add_f32", five, five_t, 16); bfly("v_add_f32", five, five_t, 32)
    a(f"v_rcp_f32 v{G+4}, v{G+4}")
    for k in range(4): a(f"v_mul_f32 v{G+k}, v{G+k}, v{G+4}")
    a(f"v_cvt_pk_bf16_f32 v{G+6}, v{G}, v{G+1}"); a(f"v_cvt_pk_bf16_f32 v{G+7}, v{G+2}, v{G+3}")
    setexec("0xff", 0)
    a(f"ds_write_b64 v10, v[{G+6}:{G+7}] offset:{OL}")
    fullexec()
    a(f"ds_read_b128 v[{G+16}:{G+19}], v11 offset:{OL}")
    a("s_waitcnt lgkmcnt(0)")
    for ct in range(4):
        a(f"v_mfma_f32_16x16x32_bf16 v[{G+4*ct}:{G+4*ct+3}], v[{WOF+4*ct}:{WOF+4*ct+3}], v[{G+16}:{G+19}], 0")
    setexec("0x00010001", "0x00010001")
    for ct in range(4): a(f"ds_write_b128 v12, v[{G+4*ct}:{G+4*ct+3}] offset:{YPL + 64*ct}")
    lds_signal(F_O, VZ, VONE)
    lds_wait(F_O, 4, VZ, TA, 14, sleep=0)
    setexec("0xf", 0)
    for w in range(4): a(f"ds_read_b128 v[{G+4*w}:{G+4*w+3}], v13 offset:{YPL + 256*w}")
    a("s_waitcnt lgkmcnt(0)")
    pk_sum_quads(G, 4)
    a(f"buffer_store_dwordx4 v[{G}:{G+3}], v1, s[60:63], s87 offen sc1")
    fullexec()
    stamp_to(7)
    a("s_cmp_eq_u32 s8, 0"); a("s_cbranch_scc1 L_end")

    gather_sum(16, G, 7, 56, 4096, TA, sleep=cfg.get("ysleep", 0), name="Y")
    stamp_to(9)
    bfly("v_add_f32", [G, G + 1, G + 2, G + 3], [G + 4, G + 5, G + 6, G + 7], 32)
    bf16rn(G, 4, G + 4)
    for k in range(4): a(f"v_mul_f32 v{G+k}, v{G+k}, v{GA+k}")
    bf16rn(G, 4, G + 4)
    for k in range(4): a(f"v_add_f32 v{G+k}, v{G+k}, v{XQ+k}")
    a(f"v_cvt_pk_bf16_f32 v{G+4}, v{G}, v{G+1}"); a(f"v_cvt_pk_bf16_f32 v{G+5}, v{G+2}, v{G+3}")
    unpack(XV, XV + 1, G + 4); unpack(XV + 2, XV + 3, G + 5)
    setexec(-1, 0)
    a(f"ds_write_b64 v14, v[{G+4}:{G+5}] offset:{X1L}")
    fullexec()
    a(f"v_readfirstlane_b32 s14, v{XV}")
    for k in range(4): a(f"v_subrev_f32 v{G+k}, s14, v{XV+k}")
    S1 = G + 6; S2 = G + 7
    a(f"v_add_f32 v{S1}, v{G}, v{G+1}"); a(f"v_mul_f32 v{S2}, v{G}, v{G}"); a(f"v_fmac_f32 v{S2}, v{G+1}, v{G+1}")
    a(f"v_add_f32 v{S1}, v{S1}, v{G+2}"); a(f"v_fmac_f32 v{S2}, v{G+2}, v{G+2}")
    a(f"v_add_f32 v{S1}, v{S1}, v{G+3}"); a(f"v_fmac_f32 v{S2}, v{G+3}, v{G+3}")
    rowreduce("v_add_f32", [S1, S2], [1, 2, 4, 8])
    bfly("v_add_f32", [S1, S2], [G + 8, G + 9], 16)
    a(f"v_mul_f32 v{G+8}, {f32bits(1/128):#x}, v{S1}")
    a(f"v_fma_f32 v{S2}, -v{G+8}, v{S1}, v{S2}")
    a(f"v_add_f32 v{S1}, s14, v{G+8}")
    setexec(1, 0)
    a(f"ds_write_b64 v15, v[{S1}:{S2}] offset:{STL}")
    a("s_waitcnt lgkmcnt(0)")
    a(f"ds_add_u32 v{VZ}, v{VONE} offset:{F_X1}")
    fullexec()
    lds_wait(F_X1, 4, VZ, TA, 14, sleep=0)
    a(f"ds_read_b128 v[{G}:{G+3}], v{VZ} offset:{STL}")
    a(f"ds_read_b128 v[{G+4}:{G+7}], v{VZ} offset:{STL+16}")
    a("s_waitcnt lgkmcnt(0)")
    a(f"v_add_f32 v{MEAN}, v{G}, v{G+2}"); a(f"v_add_f32 v{TA}, v{G+4}, v{G+6}")
    a(f"v_add_f32 v{RDEN}, v{G+1}, v{G+3}"); a(f"v_add_f32 v{TB}, v{G+5}, v{G+7}")
    a(f"v_add_f32 v{MEAN}, v{MEAN}, v{TA}"); a(f"v_add_f32 v{RDEN}, v{RDEN}, v{TB}")
    a(f"v_mul_f32 v{MEAN}, {f32bits(0.25):#x}, v{MEAN}")
    for w in range(4): a(f"v_sub_f32 v{G+2*w}, v{G+2*w}, v{MEAN}")
    a(f"v_mul_f32 v{TA}, v{G}, v{G}"); a(f"v_mul_f32 v{TB}, v{G+2}, v{G+2}")
    a(f"v_fmac_f32 v{TA}, v{G+4}, v{G+4}"); a(f"v_fmac_f32 v{TB}, v{G+6}, v{G+6}")
    a(f"v_add_f32 v{TA}, v{TA}, v{TB}")
    a(f"v_mul_f32 v{RDEN}, {f32bits(1/512):#x}, v{RDEN}")
    a(f"v_fmac_f32 v{RDEN}, {f32bits(0.25):#x}, v{TA}")
    ln_finish(MEAN, RDEN, TA)
    for i in range(4): a(f"v_sub_f32 v{XV+i}, v{XV+i}, v{MEAN}")
    bf16rn(XV, 4, G)
    for i in range(4): a(f"v_mul_f32 v{XV+i}, v{XV+i}, v{RDEN}")
    bf16rn(XV, 4, G)
    for i in range(4): a(f"v_mul_f32 v{XV+i}, v{XV+i}, v{CB1+i}")
    bf16rn(XV, 4, G)
    for i in range(4): a(f"v_add_f32 v{XV+i}, v{XV+i}, v{SBV+i}")
    a(f"v_cvt_pk_bf16_f32 v{G}, v{XV}, v{XV+1}"); a(f"v_cvt_pk_bf16_f32 v{G+1}, v{XV+2}, v{XV+3}")
    setexec(-1, 0)
    a(f"ds_write_b64 v14, v[{G}:{G+1}] offset:{H2L}")
    fullexec()
    for ks in range(4): a(f"ds_read_b128 v[{G+16+4*ks}:{G+19+4*ks}], v12 offset:{H2L + 64*ks}")
    for ks in range(4):
        a(f"s_waitcnt lgkmcnt({3-ks})")
        for ct in range(2):
            acc = G + 4 + 4 * ct
            c = "0" if ks == 0 else f"v[{acc}:{acc+3}]"
            f = W1F + 4 * (2 * ks + ct)
            a(f"v_mfma_f32_16x16x32_bf16 v[{acc}:{acc+3}], v[{f}:{f+3}], v[{G+16+4*ks}:{G+19+4*ks}], {c}")
    setexec("0x00010001", "0x00010001")
    a(f"ds_write_b128 v16, v[{G+4}:{G+7}] offset:{A1L}")
    a(f"ds_write_b128 v16, v[{G+8}:{G+11}] offset:{A1L+64}")
    lds_signal(F_A1, VZ, VONE)
    lds_wait(F_A1, 4, VZ, TA, 14, sleep=0)
    for w in range(4):
        a(f"ds_read_b128 v[{G+8*w}:{G+8*w+3}], v4 offset:{A1L + 128*w}")
        a(f"ds_read_b128 v[{G+8*w+4}:{G+8*w+7}], v4 offset:{A1L + 128*w + 16}")
    a("s_waitcnt lgkmcnt(4)")
    for i in range(0, 8, 2): a(f"v_pk_add_f32 v[{G+i}:{G+i+1}], v[{G+i}:{G+i+1}], v[{G+8+i}:{G+9+i}]")
    a("s_waitcnt lgkmcnt(0)")
    for i in range(0, 8, 2): a(f"v_pk_add_f32 v[{G+16+i}:{G+17+i}], v[{G+16+i}:{G+17+i}], v[{G+24+i}:{G+25+i}]")
    for i in range(0, 8, 2): a(f"v_pk_add_f32 v[{G+i}:{G+i+1}], v[{G+i}:{G+i+1}], v[{G+16+i}:{G+17+i}]")
    bf16rn(G, 8, G + 8)
    silu_f32(G, 8, G + 8)
    for i in range(4): a(f"v_cvt_pk_bf16_f32 v{G+16+i}, v{G+2*i}, v{G+2*i+1}")
    ZD = G + 20
    for u in range(8):
        a(f"v_mfma_f32_16x16x32_bf16 v[{ZD+4*u}:{ZD+4*u+3}], v[{W2F+4*u}:{W2F+4*u+3}], v[{G+16}:{G+19}], 0")
    setexec("0x00010001", "0x00010001")
    for u in range(8):
        a(f"buffer_store_dwordx4 v[{ZD+4*u}:{ZD+4*u+3}], v17, s[60:63], s88 offen offset:{64*u} sc1")
    fullexec()
    stamp_to(10)
    a("s_cmp_ge_u32 s2, 8"); a("s_cbranch_scc1 L_end")

    a("v_lshrrev_b32 v8, 2, v0"); a("v_lshlrev_b32 v18, 11, v8")
    a("v_and_b32 v9, 3, v0"); a("v_lshl_add_u32 v18, v9, 4, v18")
    a("v_and_b32 v8, 7, v8"); a("v_lshlrev_b32 v10, 11, v8"); a("v_lshl_add_u32 v10, v9, 4, v10")
    a("s_lshl_b32 s12, s4, 7"); a("s_lshl_b32 s13, s3, 5"); a("s_add_u32 s14, s12, s13")
    a("v_lshlrev_b32 v9, 3, v9"); a("v_add_u32 v9, s14, v9")
    a(f"ds_read_b64 v[{XQ+2}:{XQ+3}], v9 offset:{X1L}")
    srd(44, 90, 1024)
    def zextra():
        a("s_add_u32 s12, s12, 32768")
        a(f"buffer_load_dwordx4 v[{G+12}:{G+15}], v10, s[60:63], s12 offen sc1")
    def zfix():
        setexec(0, -1)
        for k in range(4): a(f"v_mov_b32 v{G+12+k}, 0")
        fullexec()
    gather_sum(3, G, 18, 57, 32768, TA, extra=zextra, fix=zfix, nq=4, name="Z")
    four = [G, G + 1, G + 2, G + 3]; four_t = [G + 4, G + 5, G + 6, G + 7]
    rowreduce("v_add_f32", four, [4, 8])
    bfly("v_add_f32", four, four_t, 16); bfly("v_add_f32", four, four_t, 32)
    a("s_waitcnt lgkmcnt(0)")
    unpack(XQ, XQ + 1, XQ + 2); unpack(XQ + 2, XQ + 3, XQ + 3)
    bf16rn(G, 4, G + 4)
    for k in range(4): a(f"v_mul_f32 v{G+k}, v{G+k}, v{GB+k}")
    bf16rn(G, 4, G + 4)
    for k in range(4): a(f"v_add_f32 v{G+k}, v{G+k}, v{XQ+k}")
    a(f"v_cvt_pk_bf16_f32 v{G+4}, v{G}, v{G+1}"); a(f"v_cvt_pk_bf16_f32 v{G+5}, v{G+2}, v{G+3}")
    setexec("0xf", 0)
    a(f"buffer_store_dwordx2 v[{G+4}:{G+5}], v9, s[44:47], 0 offen")
    a("s_or_b32 s12, s2, s3"); a("s_cmp_lg_u32 s12, 0"); a("s_cbranch_scc1 L_noep")
    setexec(1, 0)
    a(f"buffer_store_dword v{TAG}, v{VZ}, s[60:63], 0 offen offset:{EPOCH} sc1")
    a.label("L_noep")
    fullexec()
    stamp_to(11)
    a.label("L_end")
    if stamp:
        fullexec()
        stamp_to(15)
        for i in range(16): a(f"v_writelane_b32 v2, s{16+i}, {i}")
        a("v_mbcnt_lo_u32_b32 v3, -1, 0"); a("v_lshlrev_b32 v3, 2, v3")
        setexec("0xffff", 0)
        a("buffer_store_dword v2, v3, s[60:63], s94 offen")
    a.label("L_exit")
    a("s_endpgm")
    a.raw('.section .rodata,"a"')
    a.raw(".p2align 6")
    a.raw(f".amdhsa_kernel {NAME}_kernel")
    a.raw("  .amdhsa_next_free_vgpr 256")
    a.raw("  .amdhsa_next_free_sgpr 100")
    a.raw("  .amdhsa_accum_offset 256")
    a.raw("  .amdhsa_group_segment_fixed_size 0")
    a.raw("  .amdhsa_kernarg_size 104")
    a.raw("  .amdhsa_user_sgpr_count 2")
    a.raw("  .amdhsa_user_sgpr_kernarg_segment_ptr 1")
    a.raw("  .amdhsa_system_sgpr_workgroup_id_x 1")
    a.raw(".end_amdhsa_kernel")
    assert a.maxv <= 256 and a.maxs <= 100, (a.maxv, a.maxs)
    return a.text()

if __name__ == "__main__":
    import json
    out = sys.argv[1]
    cfg = json.loads(sys.argv[2]) if len(sys.argv) > 2 else {}
    open(out, "w").write(gen(cfg))
```

```python
import sys, struct
from dsl import Asm
NAME = "adaLN_cond__gqa_block_cached__dense_activation_silu__decode"

EPOCH = 0
QP = 0x1000
QS = 1152
MODF = 0x50000
R1 = 0x110000
YO = 0x1B0000
ZO = 0x1C0000
MODP = 0x1E0000
BS = 8320
CNT = 0x242000
WS_END = 0x243000
DBGWS = 0x300000
F_H, F_Q, F_SP, F_O, F_X1, F_A1, F_RST, F_GO, F_AV, F_END, F_QR, F_TK = 0, 4, 8, 12, 16, 20, 24, 28, 32, 36, 40, 64
TQ = 256
HLD = 1280
QL = 1536
ML = 2560
OL = 2688
X1L = 2944
STL = 3968
YPL = 4096
A1L = 5120
H2L = 5632
QR = 8192
SP = 8192
STG = 16384
KVL = 32768
LOG2E = 0x3fb8aa3b
SCALE = 0x3db504f3
OOB = 0x10000000

def f32bits(x): return struct.unpack("<I", struct.pack("<f", x))[0]

def gen(cfg):
    a = Asm()
    def fl(name, d):
        v = cfg.get(name, d); return (" " + v) if v else ""
    KF = fl("kflags", "nt"); VF = fl("vflags", "nt"); WT = fl("wflags", "nt"); WMF = fl("wmflags", "nt")
    NTW = 64
    NS = cfg.get("ns", 64)
    RD = NTW - NS
    CH = cfg.get("ch", 4); LW = cfg.get("lw", 6)
    TOTAL = 32 * RD
    TMO = cfg.get("timeout", 1 << 15)
    lds_req = cfg.get("lds", 163840)
    stamp = cfg.get("stamp", False)
    Wp = cfg.get("wp", 8)
    a.raw(f"; @launch grid=(256,1,1) block=(512,1,1) lds={lds_req}")
    a.raw('.amdgcn_target "amdgcn-amd-amdhsa--gfx950"')
    a.raw(".text")
    a.raw(f".globl {NAME}_kernel")
    a.raw(".p2align 8")
    a.raw(f".type {NAME}_kernel,@function")
    a.raw(f"{NAME}_kernel:")

    def srd(d, p, size):
        a(f"s_mov_b32 s{d}, s{p}"); a(f"s_mov_b32 s{d+1}, s{p+1}")
        a(f"s_mov_b32 s{d+2}, {size:#x}"); a(f"s_mov_b32 s{d+3}, 0x20000")
    def setexec(lo, hi):
        a(f"s_mov_b32 exec_lo, {lo}"); a(f"s_mov_b32 exec_hi, {hi}")
    def fullexec(): a("s_mov_b64 exec, -1")
    def bf16r(d, s):
        a(f"v_cvt_pk_bf16_f32 v{d}, v{s}, v{s}"); a(f"v_lshlrev_b32 v{d}, 16, v{d}")
    def bf16r2(d0, d1, s0, s1, t):
        a(f"v_cvt_pk_bf16_f32 v{t}, v{s0}, v{s1}")
        a(f"v_lshlrev_b32 v{d0}, 16, v{t}"); a(f"v_and_b32 v{d1}, s83, v{t}")
    def bf16rn(r, n, t):
        for i in range(0, n, 2): a(f"v_cvt_pk_bf16_f32 v{t+i//2}, v{r+i}, v{r+i+1}")
        for i in range(0, n, 2):
            a(f"v_lshlrev_b32 v{r+i}, 16, v{t+i//2}"); a(f"v_and_b32 v{r+i+1}, s83, v{t+i//2}")
    def unpack(d0, d1, s):
        a(f"v_lshlrev_b32 v{d0}, 16, v{s}"); a(f"v_and_b32 v{d1}, s83, v{s}")
    def rowreduce(op, regs, rors):
        for k in rors:
            for r in regs: a(f"{op} v{r}, v{r}, v{r} row_ror:{k}")
    def bfly(op, regs, tmps, width):
        for r, t in zip(regs, tmps): a(f"v_mov_b32 v{t}, v{r}")
        for r, t in zip(regs, tmps): a(f"v_permlane{width}_swap_b32 v{r}, v{t}")
        for r, t in zip(regs, tmps): a(f"{op} v{r}, v{r}, v{t}")
    def lds_signal(flag, vz, vone):
        a("s_waitcnt lgkmcnt(0)")
        setexec(1, 0)
        a(f"ds_add_u32 v{vz}, v{vone} offset:{flag}")
        fullexec()
    def lds_wait(flag, target, vz, vt, st=14, sleep=1):
        L = a.newlabel("Lw"); L2 = a.newlabel("Lwd")
        a(f"s_mov_b32 s{st+1}, {TMO*16}")
        a.label(L)
        a(f"ds_read_b32 v{vt}, v{vz} offset:{flag}")
        a(f"s_sub_u32 s{st+1}, s{st+1}, 1")
        a("s_cbranch_scc1 L_end")
        a("s_waitcnt lgkmcnt(0)")
        a(f"v_readfirstlane_b32 s{st}, v{vt}")
        a(f"s_cmp_ge_u32 s{st}, {target}")
        if sleep:
            a(f"s_cbranch_scc1 {L2}")
            a(f"s_sleep {sleep}")
            a(f"s_branch {L}")
            a.label(L2)
        else:
            a(f"s_cbranch_scc0 {L}")
    def stamp_to(slot, t1=False):
        if not stamp: return
        if slot in (9, 10, 11) and bool(cfg.get("stampT1")) != t1: return
        a(f"s_memrealtime s[92:93]")
        a("s_waitcnt lgkmcnt(0)")
        a(f"s_mov_b32 s{16+slot}, s92")
    def stamp_init():
        if not stamp: return
        for i in range(1, 16): a(f"s_mov_b32 s{16+i}, 0")
        a("s_mov_b32 s16, s95")

    a("s_cmp_ge_u32 s2, 256")
    a("s_cbranch_scc1 L_exit")
    a("v_lshrrev_b32 v1, 6, v0")
    a("v_and_b32 v0, 63, v0")
    a("v_readfirstlane_b32 s82, v1")
    a("v_mov_b32 v2, 0")
    a("s_cmp_lg_u32 s82, 3"); a("s_cbranch_scc1 L_noinit")
    a("v_lshlrev_b32 v1, 2, v0")
    a(f"v_cmp_eq_u32 vcc, {F_TK//4}, v0")
    a(f"v_mov_b32 v3, {(12 if cfg.get('nol') else 20)*16}")
    a("v_cndmask_b32 v3, v2, v3, vcc")
    a("ds_write_b32 v1, v3")
    a("s_waitcnt lgkmcnt(0)")
    a.label("L_noinit")
    if stamp:
        a("s_memrealtime s[92:93]"); a("s_waitcnt lgkmcnt(0)"); a("s_mov_b32 s95, s92")
    a("s_load_dwordx16 s[16:31], s[0:1], 0")
    a("s_load_dwordx8 s[32:39], s[0:1], 64")
    a("s_load_dwordx2 s[40:41], s[0:1], 96")
    a("s_barrier")
    a("s_and_b32 s3, s82, 3")
    if cfg.get("hrot"):
        a(f"s_add_u32 s4, s2, {cfg['hrot']}"); a("s_and_b32 s4, s4, 7")
    else:
        a("s_and_b32 s4, s2, 7")
    a("s_lshr_b32 s5, s2, 3")
    a("s_mov_b32 s83, 0xffff0000")
    if stamp:
        a("s_lshl_b32 s94, s2, 3"); a("s_add_u32 s94, s94, s82"); a("s_lshl_b32 s94, s94, 6"); a(f"s_add_u32 s94, s94, {DBGWS}")
    a("v_lshlrev_b32 v1, 4, v0")
    a("s_cmp_ge_u32 s82, 4")
    a("s_cbranch_scc1 L_T")

    VK, VV, VTK, VML, VL, T0, T1, T2 = 0, 1, 2, 3, 4, 5, 6, 7
    D = 8; QF = 16; OA = 32; RING = 64
    a(f"s_setprio {cfg.get('sprio0', 3)}")
    a("v_and_b32 v5, 15, v0")
    a("v_lshrrev_b32 v6, 4, v0")
    a("v_and_b32 v7, 3, v0"); a("v_lshlrev_b32 v7, 8, v7"); a("v_lshl_add_u32 v7, v6, 4, v7")
    a("v_and_b32 v2, 3, v5"); a("v_lshrrev_b32 v3, 2, v5"); a("v_lshl_add_u32 v2, v2, 2, v3")
    a("v_lshlrev_b32 v2, 8, v2")
    a("v_lshl_add_u32 v0, v6, 4, v2")
    DM = cfg.get("dm", 3)
    if DM:
        assert NS == 64
        A_ = 64 - DM; R_ = 2048 - 7 * A_; M_ = -(-R_ * 65536 // 25)
        for k in range(26): assert (k * M_) >> 16 == k * R_ // 25
        def start(dst, sp):
            a(f"s_mul_i32 {dst}, {sp}, {A_}")
            a(f"s_sub_u32 s15, {sp}, 7"); a(f"s_mul_i32 s15, s15, {M_}"); a("s_lshr_b32 s15, s15, 16"); a(f"s_add_u32 s15, s15, {7*A_}")
            a(f"s_cmp_gt_u32 {sp}, 7"); a(f"s_cselect_b32 {dst}, s15, {dst}")
        start("s89", "s5")
        a("s_add_u32 s14, s5, 1"); start("s9", "s14")
        a("s_sub_u32 s81, s9, s89"); a("s_lshl_b32 s81, s81, 4")
        a("s_lshl_b32 s89, s89, 13"); a("s_lshl_b32 s91, s4, 24"); a("s_add_u32 s89, s89, s91")
    else:
        a(f"s_mov_b32 s81, {NS*16}")
        a("s_lshl_b32 s89, s4, 24"); a("s_lshl_b32 s91, s5, 19"); a("s_add_u32 s89, s89, s91")
    a("s_lshl_b32 s91, s3, 13"); a("s_add_u32 s90, s89, s91")
    a("s_add_u32 s91, s90, 4096")
    a(f"s_mov_b32 s10, {LOG2E:#x}")
    a(f"s_mov_b32 s11, {SCALE:#x}")
    a("s_mov_b32 s12, 0x05040100"); a("s_mov_b32 s13, 0x07060302")
    for r in (6, 7, 8, 9): a(f"s_mov_b32 s{r}, 1")
    a(f"s_mov_b32 s88, {3 if cfg.get('nol') else 2}")
    a("s_lshl_b32 s87, s3, 15"); a(f"s_add_u32 s87, s87, {KVL}")
    a("v_mov_b32 v5, 0")
    a("s_waitcnt lgkmcnt(0)")
    srd(44, 18, 0x8000000); srd(48, 20, 0x8000000)
    if stamp: srd(60, 40, 0x400000)
    stamp_init()
    stamp_to(3)
    def reg_loads(slot):
        out = []; r = RING + 64 * slot
        for T in range(2):
            for j in range(4):
                out.append([f"buffer_load_dwordx4 v[{r}:{r+3}], v{VK}, s[44:47], {'s90' if T == 0 else 's91'} offen offset:{64*j}{KF}"]); r += 4
        for T in range(2):
            for j in range(4):
                out.append([f"buffer_load_dwordx4 v[{r}:{r+3}], v{VV}, s[48:51], {'s90' if T == 0 else 's91'} offen offset:{1024*j}{VF}"]); r += 4
        return out
    def dma_loads(ls):
        out = []
        for T in range(2):
            for j in range(4):
                m = ls * 16384 + (T * 4 + j) * 1024 - 64 * j
                out.append([f"s_add_u32 m0, s87, {m}", f"buffer_load_dwordx4 v{VK}, s[44:47], {'s90' if T == 0 else 's91'} offen offset:{64*j}{KF} lds"])
        for T in range(2):
            for j in range(4):
                m = ls * 16384 + (8 + 4 * T) * 1024
                out.append([f"s_add_u32 m0, s87, {m}", f"buffer_load_dwordx4 v{VV}, s[48:51], {'s90' if T == 0 else 's91'} offen offset:{1024*j}{VF} lds"])
        return out
    def req_ticket():
        setexec(2, 0)
        a(f"ds_add_rtn_u32 v{VTK}, v{VV}, v{VV} offset:{F_TK-16}")
        fullexec()
    def take_ticket(vflag):
        Ld = a.newlabel("Ldyn"); Lk = a.newlabel("Ltk"); Lp = a.newlabel("Ltp"); Li = a.newlabel("Lti")
        if cfg.get("static"):
            a("s_mov_b32 s14, s80"); a("s_add_u32 s80, s80, 64")
        else:
            a("s_waitcnt lgkmcnt(0)")
            a(f"v_readlane_b32 s14, v{VTK}, 1")
        a(f"s_cmp_lt_u32 s14, s81")
        a(f"s_cbranch_scc0 {Ld}")
        a("s_lshl_b32 s15, s14, 9")
        a("s_add_u32 s90, s89, s15")
        a(f"s_branch {Lk}")
        a.label(Ld)
        if NS < NTW:
            a("s_lshr_b32 s14, s14, 4"); a(f"s_sub_u32 s14, s14, {NS}")
            a("s_lshl_b32 s15, s14, 2"); a(f"s_min_u32 s15, s15, 1020")
            a(f"v_mov_b32 v{T0}, 0"); a(f"v_mov_b32 v{D}, s15")
            a(f"s_mov_b32 s85, {TMO*16}")
            a.label(Lp)
            a(f"ds_read_b64 v[{T1}:{T2}], v{T0} offset:{F_AV}")
            a(f"ds_read_b32 v{D+1}, v{D} offset:{TQ}")
            a("s_sub_u32 s85, s85, 1"); a(f"s_cbranch_scc1 {Li}")
            a("s_waitcnt lgkmcnt(0)")
            a(f"v_readfirstlane_b32 s15, v{T1}")
            a(f"v_readfirstlane_b32 s84, v{T2}")
            a(f"v_readfirstlane_b32 s90, v{D+1}")
            a("s_lshl_b32 s90, s90, 13"); a("s_add_u32 s90, s90, s86")
            a("s_cmp_lt_u32 s14, s15"); a(f"s_cbranch_scc1 {Lk}")
            a("s_cmp_lg_u32 s84, 0"); a(f"s_cbranch_scc1 {Li}")
            a("s_sleep 1")
            a(f"s_branch {Lp}")
        a.label(Li)
        a(f"s_mov_b32 s90, {OOB:#x}")
        a(f"s_mov_b32 s{vflag}, 0")
        a.label(Lk)
        a("s_add_u32 s91, s90, 4096")
        if not cfg.get("static"): req_ticket()
    a("s_lshl_b32 s86, s4, 24")
    a("s_lshl_b32 s80, s3, 4"); a(f"s_add_u32 s80, s80, {20*16}")
    seq = []
    NPRE = 3 if cfg.get("nol") else 5
    for t in range(NPRE):
        l = reg_loads(t) if t < 3 else dma_loads(t - 3)
        if t == 0: l = [l[0], l[8]] + l[1:8] + l[9:]
        if t < 4: l[-1] = l[-1] + ["s_add_u32 s90, s90, 32768", "s_add_u32 s91, s91, 32768"]
        seq += l
    GRP = 4
    for i in range(Wp):
        for ins in seq[i]: a(ins)
        if i == cfg.get("nfirst", 2) - 1:
            a("s_setprio 0"); stamp_to(1)
    a(f"v_mov_b32 v{VML}, 0xff800000"); a(f"v_mov_b32 v{VL}, 0")
    for r in range(OA, OA + 32): a(f"v_mov_b32 v{r}, 0")
    NL = 16 * NPRE
    pos = list(range(Wp, NL, GRP))
    for p in pos:
        a(f"ds_read_b32 v6, v5 offset:{F_Q}")
        for i in range(p, min(p + GRP, NL)):
            if (i - p) % 2 == 0: a(f"s_waitcnt vmcnt({Wp-2})")
            for ins in seq[i]: a(ins)
        if p + GRP < NL:
            a("s_waitcnt lgkmcnt(0)")
            a("v_readfirstlane_b32 s14, v6")
            a("s_cmp_ge_u32 s14, 4")
            a(f"s_cbranch_scc1 L_U{p+GRP}")
    a("s_branch L_Pdone")
    for p in pos[1:]:
        a.label(f"L_U{p}")
        for i in range(p, min(p + GRP, NL)):
            for ins in seq[i]: a(ins)
    a.label("L_Pdone")
    stamp_to(12)
    lds_wait(F_Q, 4, 5, 6, 14, sleep=2)
    for j in range(4):
        a(f"ds_read_b128 v[{QF+4*j}:{QF+4*j+3}], v7 offset:{QL + 64*j}")
    a("s_waitcnt lgkmcnt(0)")
    req_ticket()
    a("s_waitcnt vmcnt(32)")
    stamp_to(8)
    def proc(slot, kwait, vwait):
        KB = RING + 64 * slot; VB = KB + 32
        if kwait is not None: a(f"s_waitcnt vmcnt({kwait})")
        if cfg.get("nocompute"):
            if vwait is not None: a(f"s_waitcnt vmcnt({vwait})")
            return
        for j in range(4):
            for T in range(2):
                kr = KB + (T * 4 + j) * 4
                c = "0" if j == 0 else f"v[{D+4*T}:{D+4*T+3}]"
                a(f"v_mfma_f32_16x16x32_bf16 v[{D+4*T}:{D+4*T+3}], v[{kr}:{kr+3}], v[{QF+4*j}:{QF+4*j+3}], {c}")
        for i in range(0, 8, 2): bf16r2(D + i, D + i + 1, D + i, D + i + 1, T0 + (i // 2) % 3)
        for i in range(8): a(f"v_mul_f32 v{D+i}, s11, v{D+i}")
        for i in range(0, 8, 2): bf16r2(D + i, D + i + 1, D + i, D + i + 1, T0 + (i // 2) % 3)
        a(f"v_max3_f32 v{T0}, v{D}, v{D+1}, v{D+2}")
        a(f"v_max3_f32 v{T1}, v{D+3}, v{D+4}, v{D+5}")
        a(f"v_max3_f32 v{T0}, v{T0}, v{D+6}, v{D+7}")
        a(f"v_max_f32 v{T0}, v{T0}, v{T1}")
        a(f"v_mul_f32 v{T0}, s10, v{T0}")
        a(f"v_cmp_gt_f32 vcc, v{T0}, v{VML}")
        Ls = a.newlabel("Lnomax")
        a(f"s_cbranch_vccz {Ls}")
        bfly("v_max_f32", [T0], [T1], 16)
        bfly("v_max_f32", [T0], [T1], 32)
        if cfg.get("intmax", True): a(f"v_ceil_f32 v{T0}, v{T0}")
        a(f"v_max_f32 v{T0}, v{T0}, v{VML}")
        a(f"v_sub_f32 v{T1}, v{VML}, v{T0}")
        a(f"v_exp_f32 v{T1}, v{T1}")
        a(f"v_mov_b32 v{VML}, v{T0}")
        a(f"v_mul_f32 v{VL}, v{VL}, v{T1}")
        for r in range(OA, OA + 32): a(f"v_mul_f32 v{r}, v{r}, v{T1}")
        a.label(Ls)
        for i in range(8): a(f"v_fma_f32 v{D+i}, v{D+i}, s10, -v{VML}")
        for i in range(8): a(f"v_exp_f32 v{D+i}, v{D+i}")
        a(f"v_add_f32 v{T0}, v{D}, v{D+1}"); a(f"v_add_f32 v{T1}, v{D+2}, v{D+3}"); a(f"v_add_f32 v{T2}, v{D+4}, v{D+5}")
        a(f"v_add_f32 v{VL}, v{VL}, v{D+6}"); a(f"v_add_f32 v{T0}, v{T0}, v{T1}"); a(f"v_add_f32 v{T2}, v{T2}, v{D+7}")
        a(f"v_add_f32 v{VL}, v{VL}, v{T0}"); a(f"v_add_f32 v{VL}, v{VL}, v{T2}")
        for q in range(4): a(f"v_cvt_pk_bf16_f32 v{D+q}, v{D+2*q}, v{D+2*q+1}")
        if vwait is not None: a(f"s_waitcnt vmcnt({vwait})")
        for t in range(8):
            u = t >> 1; sel = "s12" if (t & 1) == 0 else "s13"
            for q in range(4):
                a(f"v_perm_b32 v{KB+4*t+q}, v{VB+4*(2*q+1)+u}, v{VB+4*(2*q)+u}, {sel}")
            if t >= 1:
                tt = t - 1
                a(f"v_mfma_f32_16x16x32_bf16 v[{OA+4*tt}:{OA+4*tt+3}], v[{KB+4*tt}:{KB+4*tt+3}], v[{D}:{D+3}], v[{OA+4*tt}:{OA+4*tt+3}]")
        tt = 7
        a(f"v_mfma_f32_16x16x32_bf16 v[{OA+4*tt}:{OA+4*tt+3}], v[{KB+4*tt}:{KB+4*tt+3}], v[{D}:{D+3}], v[{OA+4*tt}:{OA+4*tt+3}]")
    def refill(slot, vflag):
        if cfg.get("skipoob"):
            Lr = a.newlabel("Lrf"); Le = a.newlabel("Lre")
            a(f"s_cmp_eq_u32 s{vflag}, 0"); a(f"s_cbranch_scc0 {Lr}")
            a("s_waitcnt vmcnt(0)")
            a(f"s_branch {Le}")
            a.label(Lr)
            for l in reg_loads(slot):
                for ins in l: a(ins)
            a.label(Le)
        else:
            for l in reg_loads(slot):
                for ins in l: a(ins)
    a.label("L_SA")
    for slot in range(2):
        a(f"s_cmp_eq_u32 s{6+slot}, 0"); a("s_cbranch_scc1 L_Sdone")
        proc(slot, 40, 32)
        take_ticket(6 + slot)
        refill(slot, 6 + slot)
    a("s_cmp_eq_u32 s88, 3"); a("s_cbranch_scc1 L_SCs")
    a("s_mov_b32 s88, 0")
    a("s_branch L_SC")
    for ls in range(2):
        a.label(f"L_SL{ls}")
        a(f"v_add_u32 v{T0}, s87, v{VV}")
        CB = RING + 128
        for i in range(16):
            a(f"ds_read_b128 v[{CB+4*i}:{CB+4*i+3}], v{T0} offset:{ls*16384 + 1024*i}")
        a(f"s_mov_b32 s88, {1 if ls == 0 else 3}")
        a("s_waitcnt lgkmcnt(0)")
        a("s_branch L_SC")
    a.label("L_SCs")
    a("s_cmp_eq_u32 s8, 0"); a("s_cbranch_scc1 L_Sdone")
    a.label("L_SC")
    proc(2, 40, 32)
    a("s_cmp_eq_u32 s88, 0"); a("s_cbranch_scc1 L_SL0")
    a("s_cmp_eq_u32 s88, 1"); a("s_cbranch_scc1 L_SL1")
    take_ticket(8)
    refill(2, 8)
    a("s_branch L_SA")
    a.label("L_Sdone")
    stamp_to(5)
    bfly("v_add_f32", [VL], [T0], 16)
    bfly("v_add_f32", [VL], [T0], 32)
    a(f"v_lshrrev_b32 v{T0}, 4, v{VV}")
    a(f"v_and_b32 v{T1}, 15, v{T0}")
    a(f"v_lshrrev_b32 v{T2}, 4, v{T0}")
    a(f"v_lshlrev_b32 v{D}, 9, v{T1}")
    a(f"v_lshl_add_u32 v{D}, v{T2}, 4, v{D}")
    a("s_lshl_b32 s14, s3, 11")
    a(f"v_add_u32 v{D}, s14, v{D}")
    a(f"v_lshlrev_b32 v{D+1}, 5, v{T1}")
    a("s_lshl_b32 s14, s3, 3")
    a(f"v_add_u32 v{D+1}, s14, v{D+1}")
    a(f"v_mov_b32 v6, v{VML}"); a(f"v_mov_b32 v7, v{VL}")
    setexec("0x000f000f", "0x000f000f")
    for t in range(8):
        a(f"ds_write_b128 v{D}, v[{OA+4*t}:{OA+4*t+3}] offset:{SP + 64*t}")
    setexec("0xf", "0")
    a(f"ds_write_b64 v{D+1}, v[6:7] offset:{ML}")
    fullexec()
    a(f"v_mov_b32 v{T0}, 0"); a(f"v_mov_b32 v4, 1")
    lds_signal(F_SP, T0, 4)
    a("s_branch L_end")

    a.label("L_T")
    a(f"s_setprio 2")
    if cfg.get("tdummy"):
        a("v_mov_b32 v3, 1")
        a("v_lshlrev_b32 v4, 2, v0"); a("s_lshl_b32 s12, s3, 8"); a("v_add_u32 v4, s12, v4")
        a("v_mov_b32 v5, 0x3c003c00")
        if cfg.get("tdelay"):
            for _ in range(cfg["tdelay"]): a("s_sleep 32")
        a(f"ds_write_b32 v4, v5 offset:{QL}")
        lds_signal(F_Q, 2, 3)
        a("s_branch L_exit")
    a("s_and_b32 s6, s5, 3"); a("s_lshl_b32 s7, s4, 2"); a("s_add_u32 s6, s6, s7")
    a("s_lshr_b32 s7, s2, 5")
    VZ, VONE = 2, 3
    a("v_mov_b32 v3, 1")
    XA = 8; CC = 12; XJ = 16; WM = 20; WQ = 52
    XV = 70; MEAN = 78; RDEN = 79; TA = 80; TB = 81; SC = 82; SCL = 90; XQR = 98; TAG = 102
    WOF = 104; G = 120; TT = G; W1F = 184; W2F = 216; ACC = 248
    GA = 52; XQ = 56; CB1 = 60; SBV = 64; GB = 48
    def silu_f32(dst, n, t):
        for i in range(n): a(f"v_mul_f32 v{t+i}, {f32bits(-1.4426950408889634):#x}, v{dst+i}")
        for i in range(n): a(f"v_exp_f32 v{t+i}, v{t+i}")
        for i in range(n): a(f"v_add_f32 v{t+i}, 1.0, v{t+i}")
        for i in range(n): a(f"v_rcp_f32 v{t+i}, v{t+i}")
        for i in range(n): a(f"v_mul_f32 v{dst+i}, v{dst+i}, v{t+i}")
    def gemv_dot(acc, w0, n, sc, scl, wait=None):
        for i in range(n):
            if wait: wait(i)
            for u in range(4):
                if i == 0:
                    a(f"v_dot2_f32_bf16 v{acc+2*u}, v{w0+4*i+u}, v{scl+i}, 0")
                    a(f"v_dot2_f32_bf16 v{acc+2*u+1}, v{w0+4*i+u}, v{sc+i}, 0")
                else:
                    a(f"v_dot2c_f32_bf16 v{acc+2*u}, v{w0+4*i+u}, v{scl+i}")
                    a(f"v_dot2c_f32_bf16 v{acc+2*u+1}, v{w0+4*i+u}, v{sc+i}")
    def ln_finish(s1, s2, t1):
        a(f"v_max_f32 v{s2}, 0, v{s2}")
        bf16r2(s1, s2, s1, s2, t1)
        a(f"v_add_f32 v{s2}, {f32bits(1e-5):#x}, v{s2}")
        bf16r(s2, s2)
        a(f"v_sqrt_f32 v{s2}, v{s2}")
        bf16r(s2, s2)
        a(f"v_rcp_f32 v{s2}, v{s2}")
    def rscatter8(acc):
        for k in range(4): a(f"v_permlane32_swap_b32 v{acc+k}, v{acc+4+k}")
        for k in range(4): a(f"v_add_f32 v{acc+k}, v{acc+k}, v{acc+4+k}")
        a(f"v_permlane16_swap_b32 v{acc}, v{acc+2}"); a(f"v_permlane16_swap_b32 v{acc+1}, v{acc+3}")
        a(f"v_add_f32 v{acc}, v{acc}, v{acc+2}"); a(f"v_add_f32 v{acc+1}, v{acc+1}, v{acc+3}")
    def sel_gather(items, name, sleep=0, chk=None):
        L = a.newlabel("Lsg" + name); Lok = a.newlabel("Lsgok")
        n = len(items)
        a(f"s_mov_b32 s58, {(1 << n) - 1:#x}")
        a(f"s_mov_b32 s15, {TMO}")
        first = True
        for ld, kind, regs in items: ld()
        a(f"s_branch {L}_chk")
        a.label(L)
        if sleep: a(f"s_sleep {sleep}")
        for i, (ld, kind, regs) in enumerate(items):
            Ls = a.newlabel("Lsk")
            a(f"s_bitcmp1_b32 s58, {i}"); a(f"s_cbranch_scc0 {Ls}")
            ld()
            a.label(Ls)
        a.label(L + "_chk")
        a("s_sub_u32 s15, s15, 1"); a("s_cbranch_scc1 L_end")
        a("s_waitcnt vmcnt(0)")
        for i, (ld, kind, regs) in enumerate(items):
            Ls = a.newlabel("Lsc")
            a(f"s_bitcmp1_b32 s58, {i}"); a(f"s_cbranch_scc0 {Ls}")
            if kind == "tag":
                a(f"v_cmp_ne_u64 vcc, v[{regs[0]+2}:{regs[0]+3}], v[{TAG}:{TAG+1}]")
                for q in regs[1:]:
                    a(f"v_cmp_ne_u64 s[80:81], v[{q+2}:{q+3}], v[{TAG}:{TAG+1}]")
                    a("s_or_b64 vcc, vcc, s[80:81]")
            else:
                a(f"v_max3_u32 v{chk}, v{regs[0]}, v{regs[1]}, v{regs[2]}")
                rest = regs[3:]
                while rest:
                    if len(rest) >= 2: a(f"v_max3_u32 v{chk}, v{chk}, v{rest[0]}, v{rest[1]}"); rest = rest[2:]
                    else: a(f"v_max_u32 v{chk}, v{chk}, v{rest[0]}"); rest = rest[1:]
                a(f"v_cmp_eq_u32 vcc, -1, v{chk}")
            a(f"s_cbranch_vccnz {Ls}")
            a(f"s_bitset0_b32 s58, {i}")
            a.label(Ls)
        a("s_cmp_lg_u32 s58, 0"); a(f"s_cbranch_scc1 {L}")
    def tagcheck_init(): a("s_mov_b64 s[80:81], 0")
    def tagcheck(q):
        a(f"v_cmp_ne_u64 vcc, v[{q+2}:{q+3}], v[{TAG}:{TAG+1}]")
        a("s_or_b64 s[80:81], s[80:81], vcc")
    def make_tag():
        a("s_add_u32 s96, s42, 1")
        a("s_mul_i32 s97, s96, 0x9E3779B1"); a("s_add_u32 s97, s97, 0x7F4A7C15")
        a(f"v_mov_b32 v{TAG}, s96"); a(f"v_mov_b32 v{TAG+1}, s97")
    def block_reduce(sbase, dst, nmat, mstride, sleep, name):
        items = []
        for m in range(nmat):
            a(f"s_add_u32 s{52+2*m}, s{sbase}, {m*mstride}"); a(f"s_add_u32 s{53+2*m}, s{52+2*m}, 4096")
            for k2 in range(4):
                def ld(m=m, k2=k2):
                    for k in (2 * k2, 2 * k2 + 1):
                        a(f"buffer_load_dwordx4 v[{G+32*m+4*k}:{G+32*m+4*k+3}], v1, s[60:63], s{52+2*m+(k>>2)} offen offset:{1024*(k&3)} sc1")
                items.append((ld, "tag", [G + 32 * m + 8 * k2, G + 32 * m + 8 * k2 + 4]))
        sel_gather(items, name, sleep)
        for m in range(nmat):
            for k in range(1, 8):
                a(f"v_pk_add_f32 v[{G+32*m}:{G+32*m+1}], v[{G+32*m}:{G+32*m+1}], v[{G+32*m+4*k}:{G+32*m+4*k+1}]")
        for m in range(nmat):
            a(f"v_mov_b32 v{dst+2*m}, v{G+32*m}"); a(f"v_mov_b32 v{dst+2*m+1}, v{G+32*m+1}")
        regs = list(range(dst, dst + 2 * nmat))
        bfly("v_add_f32", regs, list(range(G + 8, G + 8 + 2 * nmat)), 32)
    a("v_lshrrev_b32 v5, 4, v0"); a("v_lshlrev_b32 v7, 15, v5")
    a("v_and_b32 v19, 15, v0"); a("v_lshl_add_u32 v7, v19, 4, v7")
    a("s_lshl_b32 s15, s7, 19"); a("s_lshl_b32 s90, s3, 17"); a("s_add_u32 s15, s15, s90")
    a("s_lshl_b32 s90, s6, 8"); a("s_add_u32 s15, s15, s90")
    a("v_lshrrev_b32 v17, 3, v0"); a("v_and_b32 v18, 7, v0")
    ABL = cfg.get("abl", "")
    if "Q" in ABL: a(f"s_mov_b32 s15, {OOB:#x}")
    a("s_cmp_eq_u32 s3, 3"); a("s_cbranch_scc1 L_pathH")
    a("s_and_b32 s10, s2, 15"); a("s_lshr_b32 s99, s2, 4")
    a("s_sub_u32 s12, s3, 1"); a("s_lshl_b32 s12, s12, 8"); a("s_add_u32 s12, s12, s2")
    a("s_and_b32 s13, s12, 31"); a("s_add_u32 s13, s13, 16"); a("s_lshr_b32 s12, s12, 5")
    a("s_cmp_eq_u32 s3, 0"); a("s_cselect_b32 s10, s10, s13"); a("s_cselect_b32 s99, s99, s12")
    a("v_lshlrev_b32 v4, 3, v17")
    a("v_mul_u32_u24 v6, 24576, v17"); a("v_lshl_add_u32 v6, v18, 4, v6")
    a("s_lshl_b32 s12, s99, 6")
    a(f"s_mul_i32 s13, s99, {32*6144}"); a("s_lshl_b32 s14, s10, 7"); a("s_add_u32 s13, s13, s14")
    if "M" in ABL: a(f"s_mov_b32 s13, {OOB:#x}")
    a("s_waitcnt lgkmcnt(0)")
    a(f"s_load_dword s42, s[40:41], {EPOCH}")
    srd(48, 32, 1024); srd(52, 34, 512 * 6144)
    a(f"buffer_load_dwordx2 v[{CC}:{CC+1}], v4, s[48:51], s12 offen")
    for i in range(4):
        a(f"buffer_load_dwordx4 v[{WM+4*i}:{WM+4*i+3}], v6, s[52:55], s13 offen{WMF}")
        if i < 3: a("s_add_u32 s13, s13, 6144")
    srd(56, 22, 512 * 8192)
    for i in range(4):
        a(f"buffer_load_dwordx4 v[{WQ+4*i}:{WQ+4*i+3}], v7, s[56:59], s15 offen{WT}")
        if i < 3: a("s_add_u32 s15, s15, 8192")
    srd(60, 40, 0x400000 if stamp else WS_END)
    a(f"s_mul_i32 s89, s10, {BS}"); a("s_lshl_b32 s12, s99, 9"); a("s_add_u32 s89, s89, s12"); a(f"s_add_u32 s89, s89, {MODP}")
    a("v_lshlrev_b32 v69, 4, v5"); a("v_lshl_add_u32 v69, v18, 6, v69")
    a("s_waitcnt vmcnt(8)")
    for i in range(2): unpack(SC + 2 * i, SC + 2 * i + 1, CC + i)
    silu_f32(SC, 4, TT)
    for i in range(2): a(f"v_cvt_pk_bf16_f32 v{TT+i}, v{SC+2*i}, v{SC+2*i+1}")
    for i in range(2):
        a(f"v_lshlrev_b32 v{SC+2*i}, 16, v{TT+i}"); a(f"v_and_b32 v{SC+2*i+1}, s83, v{TT+i}")
        a(f"v_and_b32 v{SCL+2*i}, 0xffff, v{TT+i}"); a(f"v_lshrrev_b32 v{SCL+2*i+1}, 16, v{TT+i}")
    a("s_waitcnt lgkmcnt(0)")
    make_tag()
    gemv_dot(ACC, WM, 4, SC, SCL, wait=lambda i: a(f"s_waitcnt vmcnt({7-i})"))
    rscatter8(ACC)
    rowreduce("v_add_f32", [ACC, ACC + 1], [8])
    a(f"v_mov_b32 v{ACC+2}, s96"); a(f"v_mov_b32 v{ACC+3}, s97")
    setexec("0x00ff00ff", "0x00ff00ff")
    if "S" not in ABL: a(f"buffer_store_dwordx4 v[{ACC}:{ACC+3}], v69, s[60:63], s89 offen sc1")
    else: a(f"buffer_load_dword v{ACC}, v2, s[60:63], 0 offen")
    fullexec()
    srd(44, 16, 1024)
    a("s_branch L_joinH")
    a.label("L_pathH")
    a("v_and_b32 v6, 31, v0"); a("v_lshlrev_b32 v6, 2, v6")
    a("s_lshl_b32 s14, s7, 7")
    a("s_waitcnt lgkmcnt(0)")
    a(f"s_load_dword s42, s[40:41], {EPOCH}")
    srd(44, 16, 1024)
    a(f"buffer_load_dwordx4 v[{XA}:{XA+3}], v1, s[44:47], 0 offen")
    a(f"buffer_load_dword v{XJ}, v6, s[44:47], s14 offen")
    srd(56, 22, 512 * 8192)
    for i in range(4):
        a(f"buffer_load_dwordx4 v[{WQ+4*i}:{WQ+4*i+3}], v7, s[56:59], s15 offen{WT}")
        if i < 3: a("s_add_u32 s15, s15, 8192")
    srd(60, 40, 0x400000 if stamp else WS_END)
    a(f"s_mul_i32 s86, s7, {BS}"); a(f"s_add_u32 s86, s86, {MODP}")
    a("s_waitcnt vmcnt(4)")
    for i in range(4): unpack(XV + 2 * i, XV + 2 * i + 1, XA + i)
    a(f"v_readfirstlane_b32 s14, v{XV}")
    for i in range(8): a(f"v_subrev_f32 v{XV+i}, s14, v{XV+i}")
    a(f"v_add_f32 v{MEAN}, v{XV}, v{XV+1}"); a(f"v_mul_f32 v{RDEN}, v{XV}, v{XV}"); a(f"v_fmac_f32 v{RDEN}, v{XV+1}, v{XV+1}")
    for i in range(2, 8):
        a(f"v_add_f32 v{MEAN}, v{MEAN}, v{XV+i}"); a(f"v_fmac_f32 v{RDEN}, v{XV+i}, v{XV+i}")
    rowreduce("v_add_f32", [MEAN, RDEN], [1, 2, 4, 8])
    bfly("v_add_f32", [MEAN, RDEN], [TA, TB], 16)
    bfly("v_add_f32", [MEAN, RDEN], [TA, TB], 32)
    a(f"v_mul_f32 v{MEAN}, {f32bits(1/512):#x}, v{MEAN}")
    a(f"v_mul_f32 v{RDEN}, {f32bits(1/512):#x}, v{RDEN}")
    a(f"v_fma_f32 v{RDEN}, -v{MEAN}, v{MEAN}, v{RDEN}")
    a(f"v_add_f32 v{MEAN}, s14, v{MEAN}")
    ln_finish(MEAN, RDEN, TA)
    LN0 = CC; LN1 = CC + 1
    unpack(LN0, LN1, XJ)
    a(f"v_sub_f32 v{LN0}, v{LN0}, v{MEAN}"); a(f"v_sub_f32 v{LN1}, v{LN1}, v{MEAN}"); bf16rn(LN0, 2, TA)
    a(f"v_mul_f32 v{LN0}, v{LN0}, v{RDEN}"); a(f"v_mul_f32 v{LN1}, v{LN1}, v{RDEN}"); bf16rn(LN0, 2, TA)
    a("s_waitcnt lgkmcnt(0)")
    make_tag()
    if cfg.get("adelay", 56): a(f"s_sleep {cfg.get('adelay', 56)}")
    if "G" not in ABL: block_reduce(86, SC, 2, 8 * BS, cfg.get("asleep", 16), "A")
    else: a("s_waitcnt vmcnt(0)")
    bf16rn(SC, 4, G + 4)
    a(f"v_add_f32 v{SC+2}, 1.0, v{SC+2}"); a(f"v_add_f32 v{SC+3}, 1.0, v{SC+3}"); bf16rn(SC + 2, 2, G + 4)
    a(f"v_mul_f32 v{SC+2}, v{LN0}, v{SC+2}"); a(f"v_mul_f32 v{SC+3}, v{LN1}, v{SC+3}"); bf16rn(SC + 2, 2, G + 4)
    a(f"v_add_f32 v{SC}, v{SC+2}, v{SC}"); a(f"v_add_f32 v{SC+1}, v{SC+3}, v{SC+1}")
    a(f"v_cvt_pk_bf16_f32 v{G+4}, v{SC}, v{SC+1}")
    setexec(-1, 0)
    a(f"ds_write_b32 v6, v{G+4} offset:{HLD}")
    fullexec()
    lds_signal(F_H, VZ, VONE)
    a.label("L_joinH")
    a("s_mul_i32 s9, s4, 7"); a("s_add_u32 s9, s9, s5")
    a("s_cmp_lt_u32 s5, 7"); a("s_cselect_b32 s8, 1, 0")
    srd(68, 24, 4096 * 1024); srd(72, 28, 512 * 3584); srd(76, 30, 1792 * 1024)
    srd(64, 38, 256)
    a("s_mov_b32 s90, s36"); a("s_mov_b32 s91, s37")
    a("s_lshl_b32 s84, s6, 3"); a("s_add_u32 s84, s84, s7"); a(f"s_mul_i32 s84, s84, {QS}")
    a("s_lshl_b32 s12, s3, 8"); a("s_add_u32 s84, s84, s12"); a(f"s_add_u32 s84, s84, {QP}")
    a("s_lshl_b32 s85, s4, 2"); a("s_add_u32 s85, s85, s3")
    a(f"s_mul_i32 s98, s85, {8*QS}"); a(f"s_add_u32 s98, s98, {QP}")
    a("s_lshl_b32 s85, s85, 5"); a("s_add_u32 s85, s85, s5"); a("s_mul_i32 s85, s85, 640"); a(f"s_add_u32 s85, s85, {R1}")
    a("s_lshl_b32 s87, s6, 11"); a("s_lshl_b32 s13, s7, 8"); a("s_add_u32 s87, s87, s13")
    a("s_lshl_b32 s13, s3, 6"); a("s_add_u32 s87, s87, s13"); a(f"s_add_u32 s87, s87, {YO}")
    a("s_lshl_b32 s88, s9, 11"); a("s_lshl_b32 s12, s3, 9"); a("s_add_u32 s88, s88, s12"); a(f"s_add_u32 s88, s88, {ZO}")
    stamp_init()
    stamp_to(1)
    a("s_lshl_b32 s12, s3, 5"); a("v_lshl_add_u32 v4, v5, 3, s12")
    a("v_lshlrev_b32 v6, 5, v19"); a("v_lshl_add_u32 v6, v5, 3, v6")
    a("s_lshl_b32 s12, s3, 9"); a("v_add_u32 v6, s12, v6")
    a("s_lshl_b32 s12, s3, 7"); a("v_lshl_add_u32 v68, v0, 3, s12")
    a("v_lshrrev_b32 v18, 5, v0")
    a("v_and_b32 v7, 31, v0"); a("v_lshlrev_b32 v7, 4, v7"); a("v_lshl_add_u32 v7, v18, 11, v7")
    lds_wait(F_H, 1, VZ, TA, 14, sleep=1)
    stamp_to(13)
    HC = G + 8; HL = G + 12
    a(f"ds_read_b64 v[{G+4}:{G+5}], v4 offset:{HLD}")
    a("s_waitcnt lgkmcnt(0)")
    for k in range(2):
        a(f"v_lshlrev_b32 v{HC+2*k}, 16, v{G+4+k}"); a(f"v_and_b32 v{HC+2*k+1}, s83, v{G+4+k}")
        a(f"v_and_b32 v{HL+2*k}, 0xffff, v{G+4+k}"); a(f"v_lshrrev_b32 v{HL+2*k+1}, 16, v{G+4+k}")
    a("s_waitcnt vmcnt(1)")
    gemv_dot(ACC, WQ, 4, HC, HL)
    rscatter8(ACC)
    a(f"ds_write_b64 v6, v[{ACC}:{ACC+1}] offset:{QR}")
    lds_signal(F_QR, VZ, VONE)
    a(f"v_mov_b32 v{ACC+2}, s96"); a(f"v_mov_b32 v{ACC+3}, s97")
    lds_wait(F_QR, 4, VZ, TA, 14, sleep=0)
    setexec("0xffff", 0)
    for w in range(4): a(f"ds_read_b64 v[{G+2*w}:{G+2*w+1}], v68 offset:{QR + 512*w}")
    a("s_waitcnt lgkmcnt(0)")
    a(f"v_pk_add_f32 v[{G}:{G+1}], v[{G}:{G+1}], v[{G+2}:{G+3}]")
    a(f"v_pk_add_f32 v[{G+4}:{G+5}], v[{G+4}:{G+5}], v[{G+6}:{G+7}]")
    a(f"v_pk_add_f32 v[{ACC}:{ACC+1}], v[{G}:{G+1}], v[{G+4}:{G+5}]")
    if "P" not in ABL: a(f"buffer_store_dwordx4 v[{ACC}:{ACC+3}], v1, s[60:63], s84 offen sc1")
    fullexec()
    stamp_to(2)
    if cfg.get("stop") == "qp":
        a("v_lshlrev_b32 v4, 2, v0"); a("s_lshl_b32 s12, s3, 8"); a("v_add_u32 v4, s12, v4")
        a("v_mov_b32 v5, 0x3c003c00")
        a(f"ds_write_b32 v4, v5 offset:{QL}")
        lds_signal(F_Q, 2, 3)
        a("s_branch L_exit")
    if cfg.get("skipx"): a("s_branch L_skipx")
    a("v_lshrrev_b32 v17, 3, v0")
    a("v_and_b32 v18, 7, v0"); a("v_lshlrev_b32 v18, 4, v18")
    a("v_lshl_add_u32 v4, v17, 13, v18")
    a("v_lshl_add_u32 v6, v17, 10, v18")
    a("s_lshl_b32 s12, s6, 17"); a("s_lshl_b32 s13, s7, 7"); a("s_add_u32 s12, s12, s13")
    a("s_lshl_b32 s13, s3, 11"); a("s_add_u32 s12, s12, s13")
    for i in range(4):
        off = (64 * (i & 1) + (i >> 1)) * 1024
        a(f"s_add_u32 s13, s12, {off}")
        a(f"buffer_load_dwordx4 v[{WOF+4*i}:{WOF+4*i+3}], v4, s[68:71], s13 offen{WT}")
    a("s_cmp_eq_u32 s8, 0"); a("s_cbranch_scc1 L_xnotM")
    a("v_lshrrev_b32 v17, 2, v0"); a("v_mul_u32_u24 v5, 3584, v17")
    a("v_and_b32 v18, 3, v0"); a("v_lshl_add_u32 v5, v18, 4, v5")
    a(f"s_mul_i32 s12, s3, {128*3584}"); a("s_lshl_b32 s13, s9, 6"); a("s_add_u32 s12, s12, s13")
    for i in range(8):
        a(f"buffer_load_dwordx4 v[{W1F+4*i}:{W1F+4*i+3}], v5, s[72:75], s12 offen{WMF}")
        if i < 7: a(f"s_add_u32 s12, s12, {16*3584}")
    a("s_lshl_b32 s12, s9, 15"); a("s_lshl_b32 s13, s3, 8"); a("s_add_u32 s12, s12, s13")
    for hh in range(2):
        for i in range(4):
            a(f"s_add_u32 s13, s12, {8192*i}")
            a(f"buffer_load_dwordx4 v[{W2F+16*hh+4*i}:{W2F+16*hh+4*i+3}], v6, s[76:79], s13 offen offset:{128*hh}{WT}")
    a("v_and_b32 v5, 31, v0"); a("v_lshlrev_b32 v5, 3, v5"); a("s_lshl_b32 s12, s3, 8")
    a(f"buffer_load_dwordx2 v[{XQR}:{XQR+1}], v5, s[44:47], s12 offen")
    a.label("L_xnotM")
    a.label("L_xdone")
    for r in range(8, 12): a(f"v_mov_b32 v{r}, -1")
    setexec(-1, 0)
    a("buffer_store_dwordx4 v[8:11], v1, s[60:63], s85 offen sc1")
    a("s_cmp_eq_u32 s8, 0"); a("s_cbranch_scc1 L_nz")
    a("buffer_store_dwordx4 v[8:11], v1, s[60:63], s88 offen sc1")
    a.label("L_nz")
    setexec("0xf", 0)
    a("buffer_store_dwordx4 v[8:11], v1, s[60:63], s87 offen sc1")
    setexec(1, 0)
    a("buffer_store_dword v8, v1, s[60:63], s85 offen offset:512 sc1")
    a("s_lshr_b32 s12, s2, 3"); a("s_or_b32 s12, s12, s3"); a("s_cmp_lg_u32 s12, 0"); a("s_cbranch_scc1 L_ncnt")
    a("s_lshl_b32 s12, s4, 8"); a(f"s_add_u32 s12, s12, {CNT}")
    a("buffer_store_dword v2, v2, s[60:63], s12 offen sc1")
    a.label("L_ncnt")
    fullexec()
    a.label("L_skipx")
    stamp_to(9, True)
    a("v_lshlrev_b32 v18, 2, v0"); a("s_lshl_b32 s12, s3, 8"); a("v_add_u32 v18, s12, v18")
    if cfg.get("qdelay", 64): a(f"s_sleep {cfg.get('qdelay', 64)}")
    a(f"s_add_u32 s52, s98, {3*QS}"); a(f"s_add_u32 s53, s98, {6*QS}")
    items = []
    for i in range(8):
        def ld(i=i):
            sb = ("s98", "s52", "s53")[i // 3]
            a(f"buffer_load_dwordx4 v[{G+4*i}:{G+4*i+3}], v1, s[60:63], {sb} offen offset:{QS*(i%3)} sc1")
        items.append((ld, "tag", [G + 4 * i]))
    sel_gather(items, "Q", cfg.get("qsleep", 20))
    for i in range(1, 8): a(f"v_pk_add_f32 v[{G}:{G+1}], v[{G}:{G+1}], v[{G+4*i}:{G+4*i+1}]")
    a(f"v_cvt_pk_bf16_f32 v{G+4}, v{G}, v{G+1}")
    a(f"ds_write_b32 v18, v{G+4} offset:{QL}")
    lds_signal(F_Q, VZ, VONE)
    stamp_to(4)
    if cfg.get("stop") == "q": a("s_branch L_exit")

    a("s_cmp_lt_u32 s2, 224"); a("s_cbranch_scc1 L_nored")
    a("s_cmp_lg_u32 s3, 1"); a("s_cbranch_scc1 L_nored")
    a("s_sub_u32 s14, s2, 208"); a(f"s_mul_i32 s86, s14, {BS}"); a(f"s_add_u32 s86, s86, {MODP}")
    a(f"s_mul_i32 s89, s14, 640"); a(f"s_add_u32 s89, s89, {MODF}")
    block_reduce(86, ACC, 1, 0, 8, "R")
    bf16rn(ACC, 2, G + 4)
    a(f"v_mov_b32 v{ACC+2}, s96"); a(f"v_mov_b32 v{ACC+3}, s97")
    setexec(-1, 0)
    a(f"buffer_store_dwordx4 v[{ACC}:{ACC+3}], v1, s[60:63], s89 offen sc1")
    fullexec()
    a.label("L_nored")
    a("s_lshl_b32 s12, s3, 12")
    a("v_add_u32 v19, s12, v1")
    a("v_lshrrev_b32 v17, 4, v0"); a("v_and_b32 v18, 15, v0"); a("v_lshl_add_u32 v18, v18, 1, s12")
    a("v_lshl_add_u32 v4, v17, 10, v18")
    a("v_lshl_add_u32 v5, v17, 9, v18")
    a("v_lshlrev_b32 v17, 4, v17")
    def transpose4(dst, rb):
        for q in range(4): a(f"ds_write_b128 v19, v[{dst+4*q}:{dst+4*q+3}] offset:{STG + 1024*q}")
        for f in range(4):
            for e in range(8):
                if rb == 128: off = e * 128 + f * 32; vb = 4
                else: off = (f >> 1) * 2048 + e * 64 + (f & 1) * 32; vb = 5
                a(f"ds_read_u16 v{G+8*f+e}, v{vb} offset:{STG + off}")
            if f == 1: a("s_waitcnt lgkmcnt(4)")
        a("s_waitcnt lgkmcnt(0)")
        for f in range(4):
            for q in range(4): a(f"v_lshl_or_b32 v{dst+4*f+q}, v{G+8*f+2*q+1}, 16, v{G+8*f+2*q}")
    a("s_waitcnt vmcnt(0)")
    stamp_to(10, True)
    setexec(1, 0)
    a(f"ds_add_rtn_u32 v{TA}, v{VZ}, v{VONE} offset:{F_RST}")
    a("s_waitcnt lgkmcnt(0)")
    a(f"v_readfirstlane_b32 s14, v{TA}")
    a("s_cmp_lg_u32 s14, 3"); a("s_cbranch_scc1 L_narr")
    a(f"v_mov_b32 v{TA}, 1")
    a(f"buffer_atomic_add v{TA}, v{VZ}, s[64:67], 0 offen sc0 sc1")
    a("s_waitcnt vmcnt(0)")
    a(f"v_readfirstlane_b32 s14, v{TA}")
    a("s_cmp_lg_u32 s14, 255"); a("s_cbranch_scc1 L_narr")
    a(f"buffer_store_dword v{VONE}, v{VZ}, s[64:67], 0 offen offset:128 sc1")
    a.label("L_narr")
    fullexec()
    stamp_to(11, True)
    transpose4(WOF, 128)
    a("s_cmp_eq_u32 s8, 0"); a("s_cbranch_scc1 L_notM05")
    transpose4(W1F, 64); transpose4(W1F + 16, 64)
    transpose4(W2F, 128); transpose4(W2F + 16, 128)
    a.label("L_notM05")
    a("s_cmp_lg_u32 s3, 0"); a("s_cbranch_scc1 L_gow")
    a(f"s_mov_b32 s15, {TMO}")
    setexec(1, 0)
    a.label("L_go")
    a(f"s_sleep {cfg.get('gosleep', 100)}")
    a(f"buffer_load_dword v{TA}, v{VZ}, s[64:67], 0 offen offset:128 sc1")
    a("s_sub_u32 s15, s15, 1"); a("s_cbranch_scc1 L_end")
    a("s_waitcnt vmcnt(0)")
    a(f"v_readfirstlane_b32 s14, v{TA}")
    a("s_cmp_eq_u32 s14, 0"); a("s_cbranch_scc1 L_go")
    a(f"ds_add_u32 v{VZ}, v{VONE} offset:{F_GO}")
    fullexec()
    a.label("L_gow")
    lds_wait(F_GO, 1, VZ, TA, 14, sleep=8)
    stamp_to(3)
    a("s_cmp_eq_u32 s8, 0"); a("s_cbranch_scc1 L_notM1")
    unpack(XQ, XQ + 1, XQR); unpack(XQ + 2, XQ + 3, XQR + 1)
    a("v_and_b32 v4, 15, v0"); a("v_lshlrev_b32 v4, 5, v4"); a("v_bfe_u32 v6, v0, 4, 1"); a("v_mul_u32_u24 v6, 640, v6"); a("v_add_u32 v4, v4, v6")
    a("v_and_b32 v6, 3, v0"); a("v_lshlrev_b32 v6, 5, v6")
    a(f"s_mul_i32 s12, s3, 1280"); a(f"s_add_u32 s12, s12, {MODF + 16*640}")
    a(f"s_add_u32 s13, s12, {8*640}"); a(f"s_add_u32 s14, s12, {16*640}")
    a(f"s_mul_i32 s86, s4, 640"); a("s_lshl_b32 s89, s3, 7"); a("s_add_u32 s86, s86, s89"); a(f"s_add_u32 s86, s86, {MODF + 40*640}")
    a(f"s_mov_b32 s15, {TMO}")
    a.label("L_mf")
    for k, (sb, va) in enumerate((("s12", 4), ("s13", 4), ("s14", 4), ("s86", 6))):
        a(f"buffer_load_dwordx4 v[{G+8*k}:{G+8*k+3}], v{va}, s[60:63], {sb} offen sc1")
        a(f"buffer_load_dwordx4 v[{G+8*k+4}:{G+8*k+7}], v{va}, s[60:63], {sb} offen offset:16 sc1")
    a("s_sub_u32 s15, s15, 1"); a("s_cbranch_scc1 L_end")
    tagcheck_init()
    a("s_waitcnt vmcnt(0)")
    for k in range(8): tagcheck(G + 4 * k)
    a("s_cmp_eq_u64 s[80:81], 0"); a("s_cbranch_scc1 L_mfok")
    a("s_sleep 16"); a("s_branch L_mf")
    a.label("L_mfok")
    for k, dst in enumerate((GA, SBV, CB1, GB)):
        a(f"v_mov_b32 v{dst}, v{G+8*k}"); a(f"v_mov_b32 v{dst+1}, v{G+8*k+1}")
        a(f"v_mov_b32 v{dst+2}, v{G+8*k+4}"); a(f"v_mov_b32 v{dst+3}, v{G+8*k+5}")
    for i in range(4): a(f"v_add_f32 v{CB1+i}, 1.0, v{CB1+i}")
    bf16rn(CB1, 4, TA)
    a.label("L_notM1")
    stamp_to(8)
    if cfg.get("stop") == "t1": a("s_branch L_exit")

    def pk_sum_quads(dst, n):
        step = 1
        while step < n:
            for i in range(0, n, 2 * step):
                if i + step < n:
                    for k in (0, 2):
                        a(f"v_pk_add_f32 v[{dst+4*i+k}:{dst+4*i+k+1}], v[{dst+4*i+k}:{dst+4*i+k+1}], v[{dst+4*(i+step)+k}:{dst+4*(i+step)+k+1}]")
            step *= 2
    def gather_sum(n, dst, vaddr, sbase, stride, chk, extra=None, fix=None, nq=None, sleep=0, name="G"):
        L = a.newlabel("L" + name); Lok = a.newlabel("L" + name + "ok")
        a(f"s_mov_b32 s15, {TMO}")
        a.label(L)
        a(f"s_mov_b32 s12, s{sbase}")
        for i in range(n):
            a(f"buffer_load_dwordx4 v[{dst+4*i}:{dst+4*i+3}], v{vaddr}, s[60:63], s12 offen sc1")
            if i < n - 1: a(f"s_add_u32 s12, s12, {stride}")
        if extra: extra()
        a("s_waitcnt vmcnt(0)")
        if fix: fix()
        pk_sum_quads(dst, nq or n)
        a(f"v_pk_add_f32 v[{chk}:{chk+1}], v[{dst}:{dst+1}], v[{dst+2}:{dst+3}]")
        a("s_sub_u32 s15, s15, 1")
        a(f"v_cmp_u_f32 vcc, v{chk}, v{chk+1}")
        a(f"s_cbranch_scc1 {Lok}")
        if sleep:
            a(f"s_cbranch_vccz {Lok}"); a(f"s_sleep {sleep}"); a(f"s_branch {L}")
        else:
            a(f"s_cbranch_vccnz {L}")
        a.label(Lok)
    def gather_chk(loads, regs, chk, sleep=0, name="C"):
        L = a.newlabel("L" + name); Lok = a.newlabel("L" + name + "ok")
        a(f"s_mov_b32 s15, {TMO}")
        a.label(L)
        loads()
        a("s_sub_u32 s15, s15, 1"); a("s_cbranch_scc1 L_end")
        a("s_waitcnt vmcnt(0)")
        c0, c1 = chk, chk + 1
        a(f"v_max3_u32 v{c0}, v{regs[0]}, v{regs[1]}, v{regs[2]}")
        a(f"v_max3_u32 v{c1}, v{regs[3]}, v{regs[4]}, v{regs[5]}")
        rest = regs[6:]; k = 0
        while rest:
            c = c0 if k % 2 == 0 else c1
            if len(rest) >= 2:
                a(f"v_max3_u32 v{c}, v{c}, v{rest[0]}, v{rest[1]}"); rest = rest[2:]
            else:
                a(f"v_max_u32 v{c}, v{c}, v{rest[0]}"); rest = rest[1:]
            k += 1
        a(f"v_max_u32 v{c0}, v{c0}, v{c1}")
        a(f"v_cmp_eq_u32 vcc, -1, v{c0}")
        if sleep:
            a(f"s_cbranch_vccz {Lok}"); a(f"s_sleep {sleep}"); a(f"s_branch {L}")
        else:
            a(f"s_cbranch_vccnz {L}")
        a.label(Lok)

    a("s_lshl_b32 s12, s3, 9"); a("v_add_u32 v18, s12, v7")
    a("s_lshl_b32 s12, s3, 5"); a("v_mov_b32 v69, s12")
    a("v_cmp_le_u32 s[80:81], 32, v0")
    a("v_lshrrev_b32 v8, 3, v0"); a("v_mul_u32_u24 v9, 640, v8")
    a("v_and_b32 v10, 7, v0"); a("v_lshl_add_u32 v8, v10, 4, v9")
    a("s_lshl_b32 s13, s3, 7"); a("v_add_u32 v8, s13, v8")
    a("s_lshl_b32 s12, s3, 6"); a("v_lshl_add_u32 v10, v0, 3, s12")
    a("v_add_u32 v11, s12, v17")
    a("s_lshl_b32 s12, s3, 8"); a("v_add_u32 v12, s12, v17")
    a("s_lshl_b32 s12, s3, 6"); a("v_add_u32 v13, s12, v1")
    a(f"s_mul_i32 s52, s6, {32*640}"); a(f"s_add_u32 s52, s52, {R1}")
    a(f"s_add_u32 s53, s52, {8*640}"); a(f"s_add_u32 s54, s52, {16*640}"); a(f"s_add_u32 s55, s52, {24*640}")
    a("s_lshl_b32 s56, s3, 9"); a(f"s_add_u32 s56, s56, {YO}")
    a("s_lshl_b32 s57, s4, 8"); a("s_lshl_b32 s13, s3, 6"); a("s_add_u32 s57, s57, s13"); a(f"s_add_u32 s57, s57, {ZO}")
    a("s_lshl_b32 s12, s3, 8"); a("v_lshl_add_u32 v14, v0, 3, s12")
    a("s_lshl_b32 s12, s3, 3"); a("v_mov_b32 v15, s12")
    a("s_lshl_b32 s12, s3, 7"); a("v_add_u32 v16, s12, v17")
    a("v_lshlrev_b32 v4, 1, v17")
    if NS < NTW:
        a("s_cmp_lg_u32 s3, 3"); a("s_cbranch_scc1 L_nofetch")
        a("s_mov_b32 s58, 0")
        a("s_lshl_b32 s59, s4, 8"); a(f"s_add_u32 s59, s59, {CNT}")
        a(f"s_mov_b32 s15, {TMO*16}")
        a(f"v_lshlrev_b32 v{G+1}, 2, v0")
        a.label("L_fetch")
        a(f"ds_read_b32 v{TA}, v{VZ} offset:{F_TK}")
        a("s_sub_u32 s15, s15, 1"); a("s_cbranch_scc1 L_fend")
        a("s_waitcnt lgkmcnt(0)")
        a(f"v_readfirstlane_b32 s14, v{TA}")
        a("s_lshr_b32 s14, s14, 4"); a(f"s_add_u32 s14, s14, {LW}")
        a(f"s_add_u32 s12, s58, {NS}")
        a("s_cmp_le_u32 s12, s14"); a("s_cbranch_scc1 L_fgo")
        a(f"s_sleep {cfg.get('fsleep', 4)}")
        a("s_branch L_fetch")
        a.label("L_fgo")
        a(f"s_cmp_gt_u32 s58, {256 - CH}"); a("s_cbranch_scc1 L_fend")
        setexec(1, 0)
        a(f"v_mov_b32 v{TA}, {CH}")
        a(f"buffer_atomic_add v{TA}, v{VZ}, s[60:63], s59 offen sc0 sc1")
        a("s_waitcnt vmcnt(0)")
        fullexec()
        a(f"v_readfirstlane_b32 s14, v{TA}")
        a(f"s_cmp_ge_u32 s14, {TOTAL}"); a("s_cbranch_scc1 L_fend")
        a(f"v_add_u32 v{G}, s14, v0")
        if cfg.get("poolmap", "spread") == "spread":
            lg = CH.bit_length() - 1
            a(f"v_bfe_u32 v{G+2}, v{G}, {lg}, 5"); a(f"v_lshlrev_b32 v{G+2}, 6, v{G+2}")
            a(f"v_lshrrev_b32 v{G+3}, {lg+5}, v{G}"); a(f"v_lshlrev_b32 v{G+3}, {lg}, v{G+3}")
            a(f"v_and_b32 v{G}, {CH-1}, v{G}"); a(f"v_add3_u32 v{G}, v{G}, v{G+2}, v{G+3}"); a(f"v_add_u32 v{G}, {NS}, v{G}")
        else:
            a(f"v_lshrrev_b32 v{G+2}, {RD.bit_length()-1}, v{G}"); a(f"v_lshlrev_b32 v{G+2}, 6, v{G+2}")
            a(f"v_and_b32 v{G}, {RD-1}, v{G}"); a(f"v_add3_u32 v{G}, v{G}, v{G+2}, {NS}")
        a("s_lshl_b32 s12, s58, 2"); a(f"v_add_u32 v{G+2}, s12, v{G+1}")
        a(f"s_add_u32 s58, s58, {CH}")
        a(f"v_mov_b32 v{G+3}, s58")
        setexec((1 << CH) - 1, 0)
        a(f"ds_write_b32 v{G+2}, v{G} offset:{TQ}")
        setexec(1, 0)
        a(f"ds_write_b32 v{VZ}, v{G+3} offset:{F_AV}")
        fullexec()
        a("s_branch L_fetch")
        a.label("L_fend")
        setexec(1, 0)
        a(f"ds_write_b32 v{VZ}, v{VONE} offset:{F_END}")
        fullexec()
        a.label("L_nofetch")
    lds_wait(F_SP, 4, VZ, TA, 14, sleep=cfg.get("spsleep", 1))
    a("s_setprio 3")
    stamp_to(5)
    MLR = 20; OA_ = 28; OB_ = 32
    a(f"ds_read_b128 v[{MLR}:{MLR+3}], v69 offset:{ML}")
    a(f"ds_read_b128 v[{MLR+4}:{MLR+7}], v69 offset:{ML+16}")
    a(f"ds_read_b128 v[{OA_}:{OA_+3}], v18 offset:{SP}")
    a(f"ds_read_b128 v[{OB_}:{OB_+3}], v18 offset:{SP+4096}")
    a("s_waitcnt lgkmcnt(2)")
    a(f"v_max3_f32 v36, v{MLR}, v{MLR+2}, v{MLR+4}"); a(f"v_max_f32 v36, v36, v{MLR+6}")
    for w in range(4): a(f"v_sub_f32 v{MLR+2*w}, v{MLR+2*w}, v36")
    for w in range(4): a(f"v_exp_f32 v{MLR+2*w}, v{MLR+2*w}")
    a(f"v_mul_f32 v37, v{MLR}, v{MLR+1}")
    for w in range(1, 4): a(f"v_fmac_f32 v37, v{MLR+2*w}, v{MLR+2*w+1}")
    a(f"v_cndmask_b32 v38, v{MLR}, v{MLR+2}, s[80:81]")
    a(f"v_cndmask_b32 v39, v{MLR+4}, v{MLR+6}, s[80:81]")
    a("v_rcp_f32 v40, v37"); a("v_log_f32 v41, v37")
    a("s_waitcnt lgkmcnt(0)")
    a("v_mul_f32 v38, v38, v40"); a("v_mul_f32 v39, v39, v40")
    a("v_add_f32 v41, v41, v36")
    for k in range(4): a(f"v_mul_f32 v{OA_+k}, v{OA_+k}, v38")
    for k in range(4): a(f"v_fmac_f32 v{OA_+k}, v{OB_+k}, v39")
    bfly("v_add_f32", [OA_, OA_ + 1, OA_ + 2, OA_ + 3], [OB_, OB_ + 1, OB_ + 2, OB_ + 3], 32)
    setexec(-1, 0)
    a(f"buffer_store_dwordx4 v[{OA_}:{OA_+3}], v1, s[60:63], s85 offen sc1")
    setexec(1, 0)
    a("buffer_store_dword v41, v2, s[60:63], s85 offen offset:512 sc1")
    fullexec()

    LS = 44
    items = []
    for i in range(4):
        def ld(i=i):
            a(f"buffer_load_dwordx4 v[{G+4*i}:{G+4*i+3}], v8, s[60:63], s{52+i} offen sc1")
            a(f"buffer_load_dword v{LS+i}, v9, s[60:63], s{52+i} offen offset:512 sc1")
        items.append((ld, "sent", [G + 4 * i, G + 4 * i + 1, G + 4 * i + 2, G + 4 * i + 3, LS + i]))
    sel_gather(items, "W", cfg.get("wsleep", 0), chk=TA)
    stamp_to(6)
    a(f"v_max3_f32 v36, v{LS}, v{LS+1}, v{LS+2}"); a(f"v_max_f32 v36, v36, v{LS+3}")
    rowreduce("v_max_f32", [36], [8])
    bfly("v_max_f32", [36], [37], 16); bfly("v_max_f32", [36], [37], 32)
    for i in range(4): a(f"v_sub_f32 v{LS+i}, v{LS+i}, v36")
    for i in range(4): a(f"v_exp_f32 v{LS+i}, v{LS+i}")
    for k in range(4): a(f"v_mul_f32 v{G+k}, v{G+k}, v{LS}")
    for i in range(1, 4):
        for k in range(4): a(f"v_fmac_f32 v{G+k}, v{G+4*i+k}, v{LS+i}")
    a(f"v_add_f32 v{G+4}, v{LS}, v{LS+1}"); a(f"v_add_f32 v{G+5}, v{LS+2}, v{LS+3}"); a(f"v_add_f32 v{G+4}, v{G+4}, v{G+5}")
    five = [G, G + 1, G + 2, G + 3, G + 4]; five_t = [G + 8, G + 9, G + 10, G + 11, G + 12]
    rowreduce("v_add_f32", five, [8])
    bfly("v_add_f32", five, five_t, 16); bfly("v_add_f32", five, five_t, 32)
    a(f"v_rcp_f32 v{G+4}, v{G+4}")
    for k in range(4): a(f"v_mul_f32 v{G+k}, v{G+k}, v{G+4}")
    a(f"v_cvt_pk_bf16_f32 v{G+6}, v{G}, v{G+1}"); a(f"v_cvt_pk_bf16_f32 v{G+7}, v{G+2}, v{G+3}")
    setexec("0xff", 0)
    a(f"ds_write_b64 v10, v[{G+6}:{G+7}] offset:{OL}")
    fullexec()
    a(f"ds_read_b128 v[{G+16}:{G+19}], v11 offset:{OL}")
    a("s_waitcnt lgkmcnt(0)")
    for ct in range(4):
        a(f"v_mfma_f32_16x16x32_bf16 v[{G+4*ct}:{G+4*ct+3}], v[{WOF+4*ct}:{WOF+4*ct+3}], v[{G+16}:{G+19}], 0")
    setexec("0x00010001", "0x00010001")
    for ct in range(4): a(f"ds_write_b128 v12, v[{G+4*ct}:{G+4*ct+3}] offset:{YPL + 64*ct}")
    lds_signal(F_O, VZ, VONE)
    lds_wait(F_O, 4, VZ, TA, 14, sleep=0)
    setexec("0xf", 0)
    for w in range(4): a(f"ds_read_b128 v[{G+4*w}:{G+4*w+3}], v13 offset:{YPL + 256*w}")
    a("s_waitcnt lgkmcnt(0)")
    pk_sum_quads(G, 4)
    a(f"buffer_store_dwordx4 v[{G}:{G+3}], v1, s[60:63], s87 offen sc1")
    fullexec()
    stamp_to(7)
    a("s_cmp_eq_u32 s8, 0"); a("s_cbranch_scc1 L_end")

    items = []
    for i in range(16):
        def ld(i=i):
            a(f"s_add_u32 s12, s56, {4096*i}")
            a(f"buffer_load_dwordx4 v[{G+4*i}:{G+4*i+3}], v7, s[60:63], s12 offen sc1")
        items.append((ld, "sent", [G + 4 * i + k for k in range(4)]))
    sel_gather(items, "Y", cfg.get("ysleep", 0), chk=TA)
    pk_sum_quads(G, 16)
    stamp_to(9)
    bfly("v_add_f32", [G, G + 1, G + 2, G + 3], [G + 4, G + 5, G + 6, G + 7], 32)
    bf16rn(G, 4, G + 4)
    for k in range(4): a(f"v_mul_f32 v{G+k}, v{G+k}, v{GA+k}")
    bf16rn(G, 4, G + 4)
    for k in range(4): a(f"v_add_f32 v{G+k}, v{G+k}, v{XQ+k}")
    a(f"v_cvt_pk_bf16_f32 v{G+4}, v{G}, v{G+1}"); a(f"v_cvt_pk_bf16_f32 v{G+5}, v{G+2}, v{G+3}")
    unpack(XV, XV + 1, G + 4); unpack(XV + 2, XV + 3, G + 5)
    setexec(-1, 0)
    a(f"ds_write_b64 v14, v[{G+4}:{G+5}] offset:{X1L}")
    fullexec()
    a(f"v_readfirstlane_b32 s14, v{XV}")
    for k in range(4): a(f"v_subrev_f32 v{G+k}, s14, v{XV+k}")
    S1 = G + 6; S2 = G + 7
    a(f"v_add_f32 v{S1}, v{G}, v{G+1}"); a(f"v_mul_f32 v{S2}, v{G}, v{G}"); a(f"v_fmac_f32 v{S2}, v{G+1}, v{G+1}")
    a(f"v_add_f32 v{S1}, v{S1}, v{G+2}"); a(f"v_fmac_f32 v{S2}, v{G+2}, v{G+2}")
    a(f"v_add_f32 v{S1}, v{S1}, v{G+3}"); a(f"v_fmac_f32 v{S2}, v{G+3}, v{G+3}")
    rowreduce("v_add_f32", [S1, S2], [1, 2, 4, 8])
    bfly("v_add_f32", [S1, S2], [G + 8, G + 9], 16)
    a(f"v_mul_f32 v{G+8}, {f32bits(1/128):#x}, v{S1}")
    a(f"v_fma_f32 v{S2}, -v{G+8}, v{S1}, v{S2}")
    a(f"v_add_f32 v{S1}, s14, v{G+8}")
    setexec(1, 0)
    a(f"ds_write_b64 v15, v[{S1}:{S2}] offset:{STL}")
    a("s_waitcnt lgkmcnt(0)")
    a(f"ds_add_u32 v{VZ}, v{VONE} offset:{F_X1}")
    fullexec()
    lds_wait(F_X1, 4, VZ, TA, 14, sleep=0)
    a(f"ds_read_b128 v[{G}:{G+3}], v{VZ} offset:{STL}")
    a(f"ds_read_b128 v[{G+4}:{G+7}], v{VZ} offset:{STL+16}")
    a("s_waitcnt lgkmcnt(0)")
    a(f"v_add_f32 v{MEAN}, v{G}, v{G+2}"); a(f"v_add_f32 v{TA}, v{G+4}, v{G+6}")
    a(f"v_add_f32 v{RDEN}, v{G+1}, v{G+3}"); a(f"v_add_f32 v{TB}, v{G+5}, v{G+7}")
    a(f"v_add_f32 v{MEAN}, v{MEAN}, v{TA}"); a(f"v_add_f32 v{RDEN}, v{RDEN}, v{TB}")
    a(f"v_mul_f32 v{MEAN}, {f32bits(0.25):#x}, v{MEAN}")
    for w in range(4): a(f"v_sub_f32 v{G+2*w}, v{G+2*w}, v{MEAN}")
    a(f"v_mul_f32 v{TA}, v{G}, v{G}"); a(f"v_mul_f32 v{TB}, v{G+2}, v{G+2}")
    a(f"v_fmac_f32 v{TA}, v{G+4}, v{G+4}"); a(f"v_fmac_f32 v{TB}, v{G+6}, v{G+6}")
    a(f"v_add_f32 v{TA}, v{TA}, v{TB}")
    a(f"v_mul_f32 v{RDEN}, {f32bits(1/512):#x}, v{RDEN}")
    a(f"v_fmac_f32 v{RDEN}, {f32bits(0.25):#x}, v{TA}")
    ln_finish(MEAN, RDEN, TA)
    for i in range(4): a(f"v_sub_f32 v{XV+i}, v{XV+i}, v{MEAN}")
    bf16rn(XV, 4, G)
    for i in range(4): a(f"v_mul_f32 v{XV+i}, v{XV+i}, v{RDEN}")
    bf16rn(XV, 4, G)
    for i in range(4): a(f"v_mul_f32 v{XV+i}, v{XV+i}, v{CB1+i}")
    bf16rn(XV, 4, G)
    for i in range(4): a(f"v_add_f32 v{XV+i}, v{XV+i}, v{SBV+i}")
    a(f"v_cvt_pk_bf16_f32 v{G}, v{XV}, v{XV+1}"); a(f"v_cvt_pk_bf16_f32 v{G+1}, v{XV+2}, v{XV+3}")
    setexec(-1, 0)
    a(f"ds_write_b64 v14, v[{G}:{G+1}] offset:{H2L}")
    fullexec()
    for ks in range(4): a(f"ds_read_b128 v[{G+16+4*ks}:{G+19+4*ks}], v12 offset:{H2L + 64*ks}")
    for ks in range(4):
        a(f"s_waitcnt lgkmcnt({3-ks})")
        for ct in range(2):
            acc = G + 4 + 4 * ct
            c = "0" if ks == 0 else f"v[{acc}:{acc+3}]"
            f = W1F + 4 * (2 * ks + ct)
            a(f"v_mfma_f32_16x16x32_bf16 v[{acc}:{acc+3}], v[{f}:{f+3}], v[{G+16+4*ks}:{G+19+4*ks}], {c}")
    setexec("0x00010001", "0x00010001")
    a(f"ds_write_b128 v16, v[{G+4}:{G+7}] offset:{A1L}")
    a(f"ds_write_b128 v16, v[{G+8}:{G+11}] offset:{A1L+64}")
    lds_signal(F_A1, VZ, VONE)
    lds_wait(F_A1, 4, VZ, TA, 14, sleep=0)
    for w in range(4):
        a(f"ds_read_b128 v[{G+8*w}:{G+8*w+3}], v4 offset:{A1L + 128*w}")
        a(f"ds_read_b128 v[{G+8*w+4}:{G+8*w+7}], v4 offset:{A1L + 128*w + 16}")
    a("s_waitcnt lgkmcnt(4)")
    for i in range(0, 8, 2): a(f"v_pk_add_f32 v[{G+i}:{G+i+1}], v[{G+i}:{G+i+1}], v[{G+8+i}:{G+9+i}]")
    a("s_waitcnt lgkmcnt(0)")
    for i in range(0, 8, 2): a(f"v_pk_add_f32 v[{G+16+i}:{G+17+i}], v[{G+16+i}:{G+17+i}], v[{G+24+i}:{G+25+i}]")
    for i in range(0, 8, 2): a(f"v_pk_add_f32 v[{G+i}:{G+i+1}], v[{G+i}:{G+i+1}], v[{G+16+i}:{G+17+i}]")
    bf16rn(G, 8, G + 8)
    silu_f32(G, 8, G + 8)
    for i in range(4): a(f"v_cvt_pk_bf16_f32 v{G+16+i}, v{G+2*i}, v{G+2*i+1}")
    ZD = G + 20
    for u in range(8):
        a(f"v_mfma_f32_16x16x32_bf16 v[{ZD+4*u}:{ZD+4*u+3}], v[{W2F+4*u}:{W2F+4*u+3}], v[{G+16}:{G+19}], 0")
    setexec("0x00010001", "0x00010001")
    for u in range(8):
        a(f"buffer_store_dwordx4 v[{ZD+4*u}:{ZD+4*u+3}], v17, s[60:63], s88 offen offset:{64*u} sc1")
    fullexec()
    stamp_to(10)
    a("s_cmp_ge_u32 s2, 8"); a("s_cbranch_scc1 L_end")

    a("v_lshrrev_b32 v8, 2, v0"); a("v_lshlrev_b32 v18, 11, v8")
    a("v_and_b32 v9, 3, v0"); a("v_lshl_add_u32 v18, v9, 4, v18")
    a("v_and_b32 v8, 7, v8"); a("v_lshlrev_b32 v10, 11, v8"); a("v_lshl_add_u32 v10, v9, 4, v10")
    a("s_lshl_b32 s12, s4, 7"); a("s_lshl_b32 s13, s3, 5"); a("s_add_u32 s14, s12, s13")
    a("v_lshlrev_b32 v9, 3, v9"); a("v_add_u32 v9, s14, v9")
    a(f"ds_read_b64 v[{XQ+2}:{XQ+3}], v9 offset:{X1L}")
    srd(44, 90, 1024)
    items = []
    for i in range(4):
        def ld(i=i):
            a(f"s_add_u32 s12, s57, {32768*i}")
            a(f"buffer_load_dwordx4 v[{G+4*i}:{G+4*i+3}], v{18 if i < 3 else 10}, s[60:63], s12 offen sc1")
        items.append((ld, "sent", [G + 4 * i + k for k in range(4)]))
    sel_gather(items, "Z", 0, chk=TA)
    setexec(0, -1)
    for k in range(4): a(f"v_mov_b32 v{G+12+k}, 0")
    fullexec()
    pk_sum_quads(G, 4)
    four = [G, G + 1, G + 2, G + 3]; four_t = [G + 4, G + 5, G + 6, G + 7]
    rowreduce("v_add_f32", four, [4, 8])
    bfly("v_add_f32", four, four_t, 16); bfly("v_add_f32", four, four_t, 32)
    a("s_waitcnt lgkmcnt(0)")
    unpack(XQ, XQ + 1, XQ + 2); unpack(XQ + 2, XQ + 3, XQ + 3)
    bf16rn(G, 4, G + 4)
    for k in range(4): a(f"v_mul_f32 v{G+k}, v{G+k}, v{GB+k}")
    bf16rn(G, 4, G + 4)
    for k in range(4): a(f"v_add_f32 v{G+k}, v{G+k}, v{XQ+k}")
    a(f"v_cvt_pk_bf16_f32 v{G+4}, v{G}, v{G+1}"); a(f"v_cvt_pk_bf16_f32 v{G+5}, v{G+2}, v{G+3}")
    setexec("0xf", 0)
    a(f"buffer_store_dwordx2 v[{G+4}:{G+5}], v9, s[44:47], 0 offen")
    a("s_or_b32 s12, s2, s3"); a("s_cmp_lg_u32 s12, 0"); a("s_cbranch_scc1 L_noep")
    setexec(1, 0)
    a(f"buffer_store_dword v{TAG}, v{VZ}, s[60:63], 0 offen offset:{EPOCH} sc1")
    a.label("L_noep")
    fullexec()
    stamp_to(11)
    a.label("L_end")
    if stamp:
        fullexec()
        stamp_to(15)
        for i in range(16): a(f"v_writelane_b32 v2, s{16+i}, {i}")
        a("v_mbcnt_lo_u32_b32 v3, -1, 0"); a("v_lshlrev_b32 v3, 2, v3")
        setexec("0xffff", 0)
        a("buffer_store_dword v2, v3, s[60:63], s94 offen")
    a.label("L_exit")
    a("s_endpgm")
    a.raw('.section .rodata,"a"')
    a.raw(".p2align 6")
    a.raw(f".amdhsa_kernel {NAME}_kernel")
    a.raw("  .amdhsa_next_free_vgpr 256")
    a.raw("  .amdhsa_next_free_sgpr 100")
    a.raw("  .amdhsa_accum_offset 256")
    a.raw("  .amdhsa_group_segment_fixed_size 0")
    a.raw("  .amdhsa_kernarg_size 104")
    a.raw("  .amdhsa_user_sgpr_count 2")
    a.raw("  .amdhsa_user_sgpr_kernarg_segment_ptr 1")
    a.raw("  .amdhsa_system_sgpr_workgroup_id_x 1")
    a.raw(".end_amdhsa_kernel")
    assert a.maxv <= 256 and a.maxs <= 100, (a.maxv, a.maxs)
    return a.text()

if __name__ == "__main__":
    import json
    out = sys.argv[1]
    cfg = json.loads(sys.argv[2]) if len(sys.argv) > 2 else {}
    open(out, "w").write(gen(cfg))
```

```python
import sys, struct
from dsl import Asm
NAME = "adaLN_cond__gqa_block_cached__dense_activation_silu__decode"

EPOCH = 0
QP = 0x1000
QS = 1152
MODF = 0x20000
R1 = 0x30000
YO = 0xB0000
ZO = 0xC0000
MODP = 0xE0000
BS = 8320
WS_END = 0x142000
DBGWS = 0x300000
F_Q, F_SP, F_O, F_X1, F_A1, F_RST, F_GO, F_QR, F_TK = 4, 8, 12, 16, 20, 24, 28, 40, 64
HLD = 256
QL = 1536
ML = 2560
OL = 2688
X1L = 2944
STL = 3968
A1L = 5120
H2L = 5632
QR = 8192
SP = 8192
YPL = 12288
STG = 16384
KVL = 32768
LOG2E = 0x3fb8aa3b
SCALE = 0x3db504f3
OOB = 0x10000000
NSP = 24

def f32bits(x): return struct.unpack("<I", struct.pack("<f", x))[0]

def gen(cfg):
    a = Asm()
    def fl(name, d):
        v = cfg.get(name, d); return (" " + v) if v else ""
    KF = fl("kflags", "nt"); VF = fl("vflags", "nt"); WT = fl("wflags", "nt")
    TMO = cfg.get("timeout", 1 << 15)
    stamp = cfg.get("stamp", False)
    Wp = cfg.get("wp", 8)
    a.raw(f"; @launch grid=(256,1,1) block=(512,1,1) lds=163840")
    a.raw('.amdgcn_target "amdgcn-amd-amdhsa--gfx950"')
    a.raw(".text")
    a.raw(f".globl {NAME}_kernel")
    a.raw(".p2align 8")
    a.raw(f".type {NAME}_kernel,@function")
    a.raw(f"{NAME}_kernel:")

    def srd(d, p, size):
        a(f"s_mov_b32 s{d}, s{p}"); a(f"s_mov_b32 s{d+1}, s{p+1}")
        a(f"s_mov_b32 s{d+2}, {size:#x}"); a(f"s_mov_b32 s{d+3}, 0x20000")
    def setexec(lo, hi):
        a(f"s_mov_b32 exec_lo, {lo}"); a(f"s_mov_b32 exec_hi, {hi}")
    def fullexec(): a("s_mov_b64 exec, -1")
    def bf16r(d, s):
        a(f"v_cvt_pk_bf16_f32 v{d}, v{s}, v{s}"); a(f"v_lshlrev_b32 v{d}, 16, v{d}")
    def bf16r2(d0, d1, s0, s1, t):
        a(f"v_cvt_pk_bf16_f32 v{t}, v{s0}, v{s1}")
        a(f"v_lshlrev_b32 v{d0}, 16, v{t}"); a(f"v_and_b32 v{d1}, s83, v{t}")
    def bf16rn(r, n, t):
        for i in range(0, n, 2): a(f"v_cvt_pk_bf16_f32 v{t+i//2}, v{r+i}, v{r+i+1}")
        for i in range(0, n, 2):
            a(f"v_lshlrev_b32 v{r+i}, 16, v{t+i//2}"); a(f"v_and_b32 v{r+i+1}, s83, v{t+i//2}")
    def unpack(d0, d1, s):
        a(f"v_lshlrev_b32 v{d0}, 16, v{s}"); a(f"v_and_b32 v{d1}, s83, v{s}")
    def rowreduce(op, regs, rors):
        for k in rors:
            for r in regs: a(f"{op} v{r}, v{r}, v{r} row_ror:{k}")
    def bfly(op, regs, tmps, width):
        for r, t in zip(regs, tmps): a(f"v_mov_b32 v{t}, v{r}")
        for r, t in zip(regs, tmps): a(f"v_permlane{width}_swap_b32 v{r}, v{t}")
        for r, t in zip(regs, tmps): a(f"{op} v{r}, v{r}, v{t}")
    def lds_signal(flag, vz, vone):
        a("s_waitcnt lgkmcnt(0)")
        setexec(1, 0)
        a(f"ds_add_u32 v{vz}, v{vone} offset:{flag}")
        fullexec()
    def lds_wait(flag, target, vz, vt, st=14, sleep=1):
        L = a.newlabel("Lw"); L2 = a.newlabel("Lwd")
        a(f"s_mov_b32 s{st+1}, {TMO*16}")
        a.label(L)
        a(f"ds_read_b32 v{vt}, v{vz} offset:{flag}")
        a(f"s_sub_u32 s{st+1}, s{st+1}, 1")
        a("s_cbranch_scc1 L_end")
        a("s_waitcnt lgkmcnt(0)")
        a(f"v_readfirstlane_b32 s{st}, v{vt}")
        a(f"s_cmp_ge_u32 s{st}, {target}")
        if sleep:
            a(f"s_cbranch_scc1 {L2}"); a(f"s_sleep {sleep}"); a(f"s_branch {L}")
            a.label(L2)
        else:
            a(f"s_cbranch_scc0 {L}")
    def stamp_to(slot):
        if not stamp: return
        a(f"s_memrealtime s[92:93]"); a("s_waitcnt lgkmcnt(0)"); a(f"s_mov_b32 s{16+slot}, s92")
    def stamp_init():
        if not stamp: return
        for i in range(1, 16): a(f"s_mov_b32 s{16+i}, 0")
        a("s_mov_b32 s16, s95")
    def silu_f32(dst, n, t):
        for i in range(n): a(f"v_mul_f32 v{t+i}, {f32bits(-1.4426950408889634):#x}, v{dst+i}")
        for i in range(n): a(f"v_exp_f32 v{t+i}, v{t+i}")
        for i in range(n): a(f"v_add_f32 v{t+i}, 1.0, v{t+i}")
        for i in range(n): a(f"v_rcp_f32 v{t+i}, v{t+i}")
        for i in range(n): a(f"v_mul_f32 v{dst+i}, v{dst+i}, v{t+i}")
    def gemv_dot(acc, w0, n, sc, scl, wait=None, first=True):
        for i in range(n):
            if wait: wait(i)
            for u in range(4):
                if i == 0 and first:
                    a(f"v_dot2_f32_bf16 v{acc+2*u}, v{w0+4*i+u}, v{scl+i}, 0")
                    a(f"v_dot2_f32_bf16 v{acc+2*u+1}, v{w0+4*i+u}, v{sc+i}, 0")
                else:
                    a(f"v_dot2c_f32_bf16 v{acc+2*u}, v{w0+4*i+u}, v{scl+i}")
                    a(f"v_dot2c_f32_bf16 v{acc+2*u+1}, v{w0+4*i+u}, v{sc+i}")
    def coef4(src, hc, hl):
        for k in range(2):
            a(f"v_lshlrev_b32 v{hc+2*k}, 16, v{src+k}"); a(f"v_and_b32 v{hc+2*k+1}, s83, v{src+k}")
            a(f"v_and_b32 v{hl+2*k}, 0xffff, v{src+k}"); a(f"v_lshrrev_b32 v{hl+2*k+1}, 16, v{src+k}")
    def ln_finish(s1, s2, t1):
        a(f"v_max_f32 v{s2}, 0, v{s2}")
        bf16r2(s1, s2, s1, s2, t1)
        a(f"v_add_f32 v{s2}, {f32bits(1e-5):#x}, v{s2}")
        bf16r(s2, s2)
        a(f"v_sqrt_f32 v{s2}, v{s2}")
        bf16r(s2, s2)
        a(f"v_rcp_f32 v{s2}, v{s2}")
    def rscatter8(acc):
        for k in range(4): a(f"v_permlane32_swap_b32 v{acc+k}, v{acc+4+k}")
        for k in range(4): a(f"v_add_f32 v{acc+k}, v{acc+k}, v{acc+4+k}")
        a(f"v_permlane16_swap_b32 v{acc}, v{acc+2}"); a(f"v_permlane16_swap_b32 v{acc+1}, v{acc+3}")
        a(f"v_add_f32 v{acc}, v{acc}, v{acc+2}"); a(f"v_add_f32 v{acc+1}, v{acc+1}, v{acc+3}")
    def pk_sum_quads(dst, n):
        step = 1
        while step < n:
            for i in range(0, n, 2 * step):
                if i + step < n:
                    for k in (0, 2):
                        a(f"v_pk_add_f32 v[{dst+4*i+k}:{dst+4*i+k+1}], v[{dst+4*i+k}:{dst+4*i+k+1}], v[{dst+4*(i+step)+k}:{dst+4*(i+step)+k+1}]")
            step *= 2
    TAG = 102
    def make_tag():
        a("s_add_u32 s96, s42, 1")
        a("s_mul_i32 s97, s96, 0x9E3779B1"); a("s_add_u32 s97, s97, 0x7F4A7C15")
        a(f"v_mov_b32 v{TAG}, s96"); a(f"v_mov_b32 v{TAG+1}, s97")
    def sel_gather(items, name, sleep=0, chk=None):
        L = a.newlabel("Lsg" + name)
        n = len(items)
        a(f"s_mov_b32 s58, {(1 << n) - 1:#x}")
        a(f"s_mov_b32 s15, {TMO}")
        for ld, kind, regs in items: ld()
        a(f"s_branch {L}_chk")
        a.label(L)
        if sleep: a(f"s_sleep {sleep}")
        for i, (ld, kind, regs) in enumerate(items):
            Ls = a.newlabel("Lsk")
            a(f"s_bitcmp1_b32 s58, {i}"); a(f"s_cbranch_scc0 {Ls}")
            ld()
            a.label(Ls)
        a.label(L + "_chk")
        a("s_sub_u32 s15, s15, 1"); a("s_cbranch_scc1 L_end")
        a("s_waitcnt vmcnt(0)")
        for i, (ld, kind, regs) in enumerate(items):
            Ls = a.newlabel("Lsc")
            a(f"s_bitcmp1_b32 s58, {i}"); a(f"s_cbranch_scc0 {Ls}")
            if kind == "tag":
                a(f"v_cmp_ne_u64 vcc, v[{regs[0]+2}:{regs[0]+3}], v[{TAG}:{TAG+1}]")
                for q in regs[1:]:
                    a(f"v_cmp_ne_u64 s[80:81], v[{q+2}:{q+3}], v[{TAG}:{TAG+1}]")
                    a("s_or_b64 vcc, vcc, s[80:81]")
            else:
                a(f"v_max3_u32 v{chk}, v{regs[0]}, v{regs[1]}, v{regs[2]}")
                rest = regs[3:]
                while rest:
                    if len(rest) >= 2: a(f"v_max3_u32 v{chk}, v{chk}, v{rest[0]}, v{rest[1]}"); rest = rest[2:]
                    else: a(f"v_max_u32 v{chk}, v{chk}, v{rest[0]}"); rest = rest[1:]
                a(f"v_cmp_eq_u32 vcc, -1, v{chk}")
            a(f"s_cbranch_vccnz {Ls}")
            a(f"s_bitset0_b32 s58, {i}")
            a.label(Ls)
        a("s_cmp_lg_u32 s58, 0"); a(f"s_cbranch_scc1 {L}")
    def arrive(VZ, VONE, TA):
        Ln = a.newlabel("Lnarr")
        setexec(1, 0)
        a(f"ds_add_rtn_u32 v{TA}, v{VZ}, v{VONE} offset:{F_RST}")
        a("s_waitcnt lgkmcnt(0)")
        a(f"v_readfirstlane_b32 s14, v{TA}")
        a("s_cmp_lg_u32 s14, 3"); a(f"s_cbranch_scc1 {Ln}")
        a(f"v_mov_b32 v{TA}, 1")
        a(f"buffer_atomic_add v{TA}, v{VZ}, s[64:67], 0 offen sc0 sc1")
        a("s_waitcnt vmcnt(0)")
        a(f"v_readfirstlane_b32 s14, v{TA}")
        a("s_cmp_lg_u32 s14, 255"); a(f"s_cbranch_scc1 {Ln}")
        a(f"buffer_store_dword v{VONE}, v{VZ}, s[64:67], 0 offen offset:128 sc1")
        a.label(Ln)
        fullexec()

    a("s_cmp_ge_u32 s2, 256")
    a("s_cbranch_scc1 L_exit")
    a("v_lshrrev_b32 v1, 6, v0")
    a("v_and_b32 v0, 63, v0")
    a("v_readfirstlane_b32 s82, v1")
    a("v_mov_b32 v2, 0")
    a("s_cmp_lg_u32 s82, 3"); a("s_cbranch_scc1 L_noinit")
    a("v_lshlrev_b32 v1, 2, v0")
    a(f"v_cmp_eq_u32 vcc, {F_TK//4}, v0")
    a(f"v_mov_b32 v3, {16*16}")
    a("v_cndmask_b32 v3, v2, v3, vcc")
    a("ds_write_b32 v1, v3")
    a("s_waitcnt lgkmcnt(0)")
    a.label("L_noinit")
    if stamp:
        a("s_memrealtime s[92:93]"); a("s_waitcnt lgkmcnt(0)"); a("s_mov_b32 s95, s92")
    a("s_load_dwordx16 s[16:31], s[0:1], 0")
    a("s_load_dwordx8 s[32:39], s[0:1], 64")
    a("s_load_dwordx2 s[40:41], s[0:1], 96")
    a("s_barrier")
    a("s_and_b32 s3, s82, 3")
    a("s_and_b32 s4, s2, 7")
    a("s_lshr_b32 s5, s2, 3")
    a("s_mov_b32 s83, 0xffff0000")
    if stamp:
        a("s_lshl_b32 s94, s2, 3"); a("s_add_u32 s94, s94, s82"); a("s_lshl_b32 s94, s94, 6"); a(f"s_add_u32 s94, s94, {DBGWS}")
    a("v_lshlrev_b32 v1, 4, v0")
    a("s_cmp_ge_u32 s82, 4"); a("s_cbranch_scc1 L_T")
    a(f"s_cmp_ge_u32 s2, {NSP*8}"); a("s_cbranch_scc1 L_exit")

    VV, VTK, VML, VL, T0, T1, T2 = 1, 2, 3, 4, 5, 6, 7
    KX = 8; KA = 12; D = 16; QF = 24; OA = 40; KT = 72; VR = 104
    a(f"s_setprio {cfg.get('sprio0', 3)}")
    a("v_and_b32 v5, 15, v0"); a("v_lshrrev_b32 v6, 4, v0")
    a("v_and_b32 v7, 3, v0"); a("v_lshlrev_b32 v7, 8, v7"); a("v_lshl_add_u32 v7, v6, 4, v7")
    a("v_lshlrev_b32 v2, 2, v6"); a("v_xor_b32 v2, v2, v5"); a("v_lshlrev_b32 v2, 4, v2"); a(f"v_lshl_add_u32 v{KX}, v6, 8, v2")
    for k in range(1, 4): a(f"v_xor_b32 v{KX+k}, {16*k}, v{KX}")
    a("s_lshl_b32 s87, s3, 15"); a(f"s_add_u32 s87, s87, {KVL}")
    a("v_and_b32 v2, 3, v5"); a("v_lshrrev_b32 v3, 2, v5"); a("v_lshl_add_u32 v2, v2, 2, v3"); a("v_lshlrev_b32 v2, 8, v2")
    a("v_xor_b32 v3, v5, v6"); a("v_lshl_add_u32 v2, v3, 4, v2"); a(f"v_add_u32 v{KA}, s87, v2")
    for k in range(1, 4): a(f"v_xor_b32 v{KA+k}, {64*k}, v{KA}") if 64 * k <= 64 else a(f"v_xor_b32 v{KA+k}, {64*k:#x}, v{KA}")
    M_ = -(-2048 * 1024 // NSP)
    for k in range(NSP + 1): assert (k * M_) >> 10 == k * 2048 // NSP
    a(f"s_mul_i32 s89, s5, {M_}"); a("s_lshr_b32 s89, s89, 10")
    a("s_add_u32 s14, s5, 1"); a(f"s_mul_i32 s14, s14, {M_}"); a("s_lshr_b32 s14, s14, 10")
    a("s_sub_u32 s81, s14, s89"); a("s_lshl_b32 s81, s81, 4")
    a("s_lshl_b32 s89, s89, 13"); a("s_lshl_b32 s91, s4, 24"); a("s_add_u32 s89, s89, s91")
    a("s_lshl_b32 s91, s3, 13"); a("s_add_u32 s90, s89, s91"); a("s_add_u32 s91, s90, 4096")
    a(f"s_mov_b32 s10, {LOG2E:#x}"); a(f"s_mov_b32 s11, {SCALE:#x}")
    a("s_mov_b32 s12, 0x05040100"); a("s_mov_b32 s13, 0x07060302")
    for r in (6, 7, 8, 9): a(f"s_mov_b32 s{r}, 1")
    a("v_mov_b32 v5, 0")
    a("s_waitcnt lgkmcnt(0)")
    srd(44, 18, 0x8000000); srd(48, 20, 0x8000000)
    if stamp: srd(60, 40, 0x400000)
    stamp_init(); stamp_to(3)
    def tile_loads(slot):
        out = []
        for i in range(8):
            pre = [f"s_add_u32 m0, s87, {slot*8192 + (i>>2)*4096}"] if (i & 3) == 0 else []
            out.append(pre + [f"buffer_load_dwordx4 v{KX+(i&3)}, s[44:47], {'s90' if i < 4 else 's91'} offen offset:{1024*(i&3)}{KF} lds"])
        r = VR + 32 * slot
        for i in range(8):
            out.append([f"buffer_load_dwordx4 v[{r+4*i}:{r+4*i+3}], v{VV}, s[48:51], {'s90' if i < 4 else 's91'} offen offset:{1024*(i&3)}{VF}"])
        return out
    def req_ticket():
        setexec(2, 0)
        a(f"ds_add_rtn_u32 v{VTK}, v{VV}, v{VV} offset:{F_TK-16}")
        fullexec()
    seq = []
    for t in range(4):
        l = tile_loads(t)
        if t < 3: l[-1] = l[-1] + ["s_add_u32 s90, s90, 32768", "s_add_u32 s91, s91, 32768"]
        seq += l
    NL = 64; GRP = 4
    for i in range(Wp):
        for ins in seq[i]: a(ins)
        if i == cfg.get("nfirst", 2) - 1: a("s_setprio 0")
    stamp_to(1)
    a(f"v_mov_b32 v{VML}, 0xff800000"); a(f"v_mov_b32 v{VL}, 0")
    for r in range(OA, OA + 32): a(f"v_mov_b32 v{r}, 0")
    pos = list(range(Wp, NL, GRP))
    for p in pos:
        a(f"ds_read_b32 v6, v5 offset:{F_Q}")
        for i in range(p, min(p + GRP, NL)):
            if (i - p) % 2 == 0: a(f"s_waitcnt vmcnt({Wp-2})")
            for ins in seq[i]: a(ins)
        if p + GRP < NL:
            a("s_waitcnt lgkmcnt(0)")
            a("v_readfirstlane_b32 s14, v6")
            a("s_cmp_ge_u32 s14, 4")
            a(f"s_cbranch_scc1 L_U{p+GRP}")
    a("s_branch L_Pdone")
    for p in pos[1:]:
        a.label(f"L_U{p}")
        for i in range(p, min(p + GRP, NL)):
            for ins in seq[i]: a(ins)
    a.label("L_Pdone")
    stamp_to(12)
    lds_wait(F_Q, 4, 5, 6, 14, sleep=2)
    for j in range(4): a(f"ds_read_b128 v[{QF+4*j}:{QF+4*j+3}], v7 offset:{QL + 64*j}")
    req_ticket()
    stamp_to(8)
    a.label("L_Sloop")
    for slot in range(4):
        VB = VR + 32 * slot
        a(f"s_cmp_eq_u32 s{6+slot}, 0"); a("s_cbranch_scc1 L_Sdone")
        a("s_waitcnt vmcnt(56)")
        for j in range(4):
            for T in range(2):
                kr = KT + (T * 4 + j) * 4
                a(f"ds_read_b128 v[{kr}:{kr+3}], v{KA+j} offset:{slot*8192 + T*4096}")
        for j in range(4):
            a(f"s_waitcnt lgkmcnt({6-2*j})")
            for T in range(2):
                kr = KT + (T * 4 + j) * 4
                c = "0" if j == 0 else f"v[{D+4*T}:{D+4*T+3}]"
                a(f"v_mfma_f32_16x16x32_bf16 v[{D+4*T}:{D+4*T+3}], v[{kr}:{kr+3}], v[{QF+4*j}:{QF+4*j+3}], {c}")
        Li = a.newlabel("Lti"); Lk = a.newlabel("Ltk")
        a(f"v_readlane_b32 s14, v{VTK}, 1")
        a("s_lshl_b32 s15, s14, 9"); a("s_add_u32 s90, s89, s15")
        a("s_cmp_lt_u32 s14, s81")
        a(f"s_cselect_b32 s{6+slot}, 1, 0")
        a("s_add_u32 s91, s90, 4096")
        req_ticket()
        for i in range(0, 8, 2): bf16r2(D + i, D + i + 1, D + i, D + i + 1, T0 + (i // 2) % 3)
        for i in range(8): a(f"v_mul_f32 v{D+i}, s11, v{D+i}")
        for i in range(0, 8, 2): bf16r2(D + i, D + i + 1, D + i, D + i + 1, T0 + (i // 2) % 3)
        a(f"v_max3_f32 v{T0}, v{D}, v{D+1}, v{D+2}")
        a(f"v_max3_f32 v{T1}, v{D+3}, v{D+4}, v{D+5}")
        a(f"v_max3_f32 v{T0}, v{T0}, v{D+6}, v{D+7}")
        a(f"v_max_f32 v{T0}, v{T0}, v{T1}")
        a(f"v_mul_f32 v{T0}, s10, v{T0}")
        a(f"v_cmp_gt_f32 vcc, v{T0}, v{VML}")
        Ls = a.newlabel("Lnomax")
        a(f"s_cbranch_vccz {Ls}")
        bfly("v_max_f32", [T0], [T1], 16)
        bfly("v_max_f32", [T0], [T1], 32)
        a(f"v_ceil_f32 v{T0}, v{T0}")
        a(f"v_max_f32 v{T0}, v{T0}, v{VML}")
        a(f"v_sub_f32 v{T1}, v{VML}, v{T0}")
        a(f"v_exp_f32 v{T1}, v{T1}")
        a(f"v_mov_b32 v{VML}, v{T0}")
        a(f"v_mul_f32 v{VL}, v{VL}, v{T1}")
        for r in range(OA, OA + 32): a(f"v_mul_f32 v{r}, v{r}, v{T1}")
        a.label(Ls)
        for i in range(8): a(f"v_fma_f32 v{D+i}, v{D+i}, s10, -v{VML}")
        for i in range(8): a(f"v_exp_f32 v{D+i}, v{D+i}")
        a(f"v_add_f32 v{T0}, v{D}, v{D+1}"); a(f"v_add_f32 v{T1}, v{D+2}, v{D+3}"); a(f"v_add_f32 v{T2}, v{D+4}, v{D+5}")
        a(f"v_add_f32 v{VL}, v{VL}, v{D+6}"); a(f"v_add_f32 v{T0}, v{T0}, v{T1}"); a(f"v_add_f32 v{T2}, v{T2}, v{D+7}")
        a(f"v_add_f32 v{VL}, v{VL}, v{T0}"); a(f"v_add_f32 v{VL}, v{VL}, v{T2}")
        for q in range(4): a(f"v_cvt_pk_bf16_f32 v{D+q}, v{D+2*q}, v{D+2*q+1}")
        a("s_waitcnt vmcnt(48)")
        for t in range(8):
            u = t >> 1; sel = "s12" if (t & 1) == 0 else "s13"
            for q in range(4):
                a(f"v_perm_b32 v{KT+4*t+q}, v{VB+4*(2*q+1)+u}, v{VB+4*(2*q)+u}, {sel}")
            if t >= 1:
                tt = t - 1
                a(f"v_mfma_f32_16x16x32_bf16 v[{OA+4*tt}:{OA+4*tt+3}], v[{KT+4*tt}:{KT+4*tt+3}], v[{D}:{D+3}], v[{OA+4*tt}:{OA+4*tt+3}]")
        tt = 7
        a(f"v_mfma_f32_16x16x32_bf16 v[{OA+4*tt}:{OA+4*tt+3}], v[{KT+4*tt}:{KT+4*tt+3}], v[{D}:{D+3}], v[{OA+4*tt}:{OA+4*tt+3}]")
        a(f"s_cmp_eq_u32 s{6+slot}, 0"); a(f"s_cbranch_scc0 {Li}")
        a("s_waitcnt vmcnt(0)")
        a(f"s_branch {Lk}")
        a.label(Li)
        if cfg.get("sw"): a(f"s_waitcnt vmcnt({cfg['sw']})")
        for l in tile_loads(slot):
            for ins in l: a(ins)
        a.label(Lk)
    a("s_branch L_Sloop")
    a.label("L_Sdone")
    stamp_to(5)
    bfly("v_add_f32", [VL], [T0], 16)
    bfly("v_add_f32", [VL], [T0], 32)
    a(f"v_lshrrev_b32 v{T0}, 4, v{VV}")
    a(f"v_and_b32 v{T1}, 15, v{T0}"); a(f"v_lshrrev_b32 v{T2}, 4, v{T0}")
    a(f"v_lshlrev_b32 v{D}, 9, v{T1}"); a(f"v_lshl_add_u32 v{D}, v{T2}, 4, v{D}")
    a("s_lshl_b32 s14, s3, 11"); a(f"v_add_u32 v{D}, s14, v{D}")
    a(f"v_lshlrev_b32 v{D+1}, 5, v{T1}"); a("s_lshl_b32 s14, s3, 3"); a(f"v_add_u32 v{D+1}, s14, v{D+1}")
    a(f"v_mov_b32 v6, v{VML}"); a(f"v_mov_b32 v7, v{VL}")
    setexec("0x000f000f", "0x000f000f")
    for t in range(8): a(f"ds_write_b128 v{D}, v[{OA+4*t}:{OA+4*t+3}] offset:{SP + 64*t}")
    setexec("0xf", "0")
    a(f"ds_write_b64 v{D+1}, v[6:7] offset:{ML}")
    fullexec()
    a(f"v_mov_b32 v{T0}, 0"); a(f"v_mov_b32 v4, 1")
    lds_signal(F_SP, T0, 4)
    a("s_branch L_end")

    a.label("L_T")
    a("s_setprio 2")
    VZ, VONE = 2, 3
    TA = 80; TB = 81
    a("v_mov_b32 v3, 1")
    a(f"s_cmp_ge_u32 s2, {NSP*8}"); a("s_cbranch_scc1 L_TW")
    G = 20
    a("s_lshl_b32 s85, s4, 2"); a("s_add_u32 s85, s85, s3")
    a(f"s_mul_i32 s98, s85, {2*QS}"); a(f"s_add_u32 s98, s98, {QP}")
    a(f"s_mul_i32 s85, s85, {NSP}"); a("s_add_u32 s85, s85, s5"); a("s_mul_i32 s85, s85, 640"); a(f"s_add_u32 s85, s85, {R1}")
    for r in range(8, 12): a(f"v_mov_b32 v{r}, -1")
    a("v_lshlrev_b32 v18, 2, v0"); a("s_lshl_b32 s12, s3, 8"); a("v_add_u32 v18, s12, v18")
    a("v_lshrrev_b32 v17, 5, v0"); a("v_and_b32 v7, 31, v0"); a("v_lshlrev_b32 v7, 4, v7"); a("v_lshl_add_u32 v7, v17, 11, v7")
    a("s_lshl_b32 s12, s3, 9"); a("v_add_u32 v7, s12, v7")
    a("s_lshl_b32 s12, s3, 5"); a("v_mov_b32 v19, s12")
    a("s_waitcnt lgkmcnt(0)")
    a(f"s_load_dword s42, s[40:41], {EPOCH}")
    srd(60, 40, 0x400000 if stamp else WS_END); srd(64, 38, 256)
    stamp_init()
    if cfg.get("tdummy"):
        a("v_mov_b32 v5, 0x3c003c00"); a(f"ds_write_b32 v18, v5 offset:{QL}")
        lds_signal(F_Q, VZ, VONE); a("s_branch L_exit")
    if cfg.get("ldelay", 40): a(f"s_sleep {cfg.get('ldelay', 40)}")
    setexec(-1, 0)
    a("buffer_store_dwordx4 v[8:11], v1, s[60:63], s85 offen sc1")
    setexec(1, 0)
    a("buffer_store_dword v8, v1, s[60:63], s85 offen offset:512 sc1")
    fullexec()
    a("s_waitcnt lgkmcnt(0)")
    make_tag()
    for _ in range(cfg.get("qdelay_n", 1)): a(f"s_sleep {cfg.get('qdelay', 100)}")
    items = []
    for i in range(2):
        def ld(i=i): a(f"buffer_load_dwordx4 v[{G+4*i}:{G+4*i+3}], v1, s[60:63], s98 offen offset:{QS*i} sc1")
        items.append((ld, "tag", [G + 4 * i]))
    sel_gather(items, "Q", cfg.get("qsleep", 12))
    a(f"v_pk_add_f32 v[{G}:{G+1}], v[{G}:{G+1}], v[{G+4}:{G+5}]")
    a(f"v_cvt_pk_bf16_f32 v{G+4}, v{G}, v{G+1}")
    a(f"ds_write_b32 v18, v{G+4} offset:{QL}")
    lds_signal(F_Q, VZ, VONE)
    stamp_to(4)
    arrive(VZ, VONE, TA)
    a("v_cmp_le_u32 s[80:81], 32, v0")
    a("s_setprio 0")
    lds_wait(F_SP, 4, VZ, TA, 14, sleep=cfg.get("spsleep", 1))
    a("s_setprio 3")
    stamp_to(5)
    MLR = 20; OA_ = 28; OB_ = 32
    a(f"ds_read_b128 v[{MLR}:{MLR+3}], v19 offset:{ML}")
    a(f"ds_read_b128 v[{MLR+4}:{MLR+7}], v19 offset:{ML+16}")
    a(f"ds_read_b128 v[{OA_}:{OA_+3}], v7 offset:{SP}")
    a(f"ds_read_b128 v[{OB_}:{OB_+3}], v7 offset:{SP+4096}")
    a("s_waitcnt lgkmcnt(2)")
    a(f"v_max3_f32 v36, v{MLR}, v{MLR+2}, v{MLR+4}"); a(f"v_max_f32 v36, v36, v{MLR+6}")
    for w in range(4): a(f"v_sub_f32 v{MLR+2*w}, v{MLR+2*w}, v36")
    for w in range(4): a(f"v_exp_f32 v{MLR+2*w}, v{MLR+2*w}")
    a(f"v_mul_f32 v37, v{MLR}, v{MLR+1}")
    for w in range(1, 4): a(f"v_fmac_f32 v37, v{MLR+2*w}, v{MLR+2*w+1}")
    a(f"v_cndmask_b32 v38, v{MLR}, v{MLR+2}, s[80:81]")
    a(f"v_cndmask_b32 v39, v{MLR+4}, v{MLR+6}, s[80:81]")
    a("v_rcp_f32 v40, v37"); a("v_log_f32 v41, v37")
    a("s_waitcnt lgkmcnt(0)")
    a("v_mul_f32 v38, v38, v40"); a("v_mul_f32 v39, v39, v40")
    a("v_add_f32 v41, v41, v36")
    for k in range(4): a(f"v_mul_f32 v{OA_+k}, v{OA_+k}, v38")
    for k in range(4): a(f"v_fmac_f32 v{OA_+k}, v{OB_+k}, v39")
    bfly("v_add_f32", [OA_, OA_ + 1, OA_ + 2, OA_ + 3], [OB_, OB_ + 1, OB_ + 2, OB_ + 3], 32)
    setexec(-1, 0)
    a(f"buffer_store_dwordx4 v[{OA_}:{OA_+3}], v1, s[60:63], s85 offen sc1")
    setexec(1, 0)
    a("buffer_store_dword v41, v2, s[60:63], s85 offen offset:512 sc1")
    fullexec()
    stamp_to(6)
    a("s_branch L_end")

    a.label("L_TW")
    if cfg.get("tdummy"): a("s_branch L_exit")
    XA = 8; CC = 12; XJ = 16; GW = 20; GA = 52; XQ = 56; CB1 = 60; SBV = 64
    XV = 70; MEAN = 78; RDEN = 79; SC = 82; SCL = 90; XQR = 98; C2 = 100
    WOF = 104; GE = 104; W1F = 168; W2F = 200; WQ = 168; ACC = 232; GB = 240; C3 = 244
    a(f"s_sub_u32 s5, s2, {NSP*8}")
    a("s_lshr_b32 s6, s5, 3"); a("s_and_b32 s6, s6, 3"); a("s_lshl_b32 s7, s4, 2"); a("s_add_u32 s6, s6, s7")
    a("s_lshr_b32 s7, s5, 5")
    a("s_cmp_lt_u32 s5, 56"); a("s_cselect_b32 s8, 1, 0")
    a("s_and_b32 s10, s5, 15"); a("s_lshr_b32 s99, s5, 4"); a("s_lshl_b32 s99, s99, 2"); a("s_add_u32 s99, s99, s3")
    a("v_lshrrev_b32 v17, 3, v0"); a("v_and_b32 v18, 7, v0"); a("v_lshrrev_b32 v5, 4, v0"); a("v_and_b32 v19, 15, v0")
    a("v_lshlrev_b32 v4, 3, v17")
    a("v_mul_u32_u24 v68, 24576, v17"); a("v_lshl_add_u32 v68, v18, 4, v68")
    a("v_lshlrev_b32 v69, 4, v5"); a("v_lshl_add_u32 v69, v18, 6, v69")
    a("v_and_b32 v6, 31, v0"); a("v_lshlrev_b32 v6, 2, v6")
    a("v_lshlrev_b32 v7, 15, v5"); a("v_lshl_add_u32 v7, v19, 4, v7")
    a("s_lshl_b32 s12, s99, 6")
    a(f"s_mul_i32 s13, s99, {32*6144}"); a("s_lshl_b32 s14, s10, 7"); a("s_add_u32 s13, s13, s14")
    a("s_lshl_b32 s9, s7, 2"); a("s_add_u32 s9, s9, s3")
    a("s_lshl_b32 s14, s9, 7")
    a("s_lshl_b32 s15, s9, 19"); a("s_lshl_b32 s90, s6, 8"); a("s_add_u32 s15, s15, s90")
    a("s_waitcnt lgkmcnt(0)")
    a(f"s_load_dword s42, s[40:41], {EPOCH}")
    srd(48, 32, 1024); srd(52, 34, 512 * 6144)
    a(f"buffer_load_dwordx2 v[{CC}:{CC+1}], v4, s[48:51], s12 offen")
    for i in range(4):
        a(f"buffer_load_dwordx4 v[{GW+4*i}:{GW+4*i+3}], v68, s[52:55], s13 offen{WT}")
        if i < 3: a("s_add_u32 s13, s13, 6144")
    srd(44, 16, 1024)
    a(f"buffer_load_dwordx4 v[{XA}:{XA+3}], v1, s[44:47], 0 offen")
    a(f"buffer_load_dword v{XJ}, v6, s[44:47], s14 offen")
    srd(56, 22, 512 * 8192)
    for aa in range(4):
        for i in range(4):
            a(f"s_add_u32 s12, s15, {(16*aa + i) * 8192}")
            a(f"buffer_load_dwordx4 v[{WQ+16*aa+4*i}:{WQ+16*aa+4*i+3}], v7, s[56:59], s12 offen{WT}")
    srd(60, 40, 0x400000 if stamp else WS_END); srd(64, 38, 256)
    srd(68, 24, 4096 * 1024); srd(72, 28, 512 * 3584); srd(76, 30, 1792 * 1024)
    a("s_mov_b32 s90, s36"); a("s_mov_b32 s91, s37")
    stamp_init()
    a(f"s_mul_i32 s89, s10, {BS}"); a("s_lshl_b32 s12, s99, 9"); a("s_add_u32 s89, s89, s12"); a(f"s_add_u32 s89, s89, {MODP}")
    a(f"s_mul_i32 s86, s9, {BS}"); a(f"s_add_u32 s86, s86, {MODP}")
    a("s_lshl_b32 s84, s6, 1"); a("s_add_u32 s84, s84, s7"); a(f"s_mul_i32 s84, s84, {QS}")
    a("s_lshl_b32 s12, s3, 8"); a("s_add_u32 s84, s84, s12"); a(f"s_add_u32 s84, s84, {QP}")
    a("s_lshl_b32 s87, s6, 11"); a("s_lshl_b32 s13, s7, 10"); a("s_add_u32 s87, s87, s13")
    a("s_add_u32 s87, s87, s12"); a(f"s_add_u32 s87, s87, {YO}")
    a("s_lshl_b32 s88, s5, 11"); a("s_lshl_b32 s12, s3, 9"); a("s_add_u32 s88, s88, s12"); a(f"s_add_u32 s88, s88, {ZO}")
    def unit(csrc, wsrc, sdst, wait=None):
        for i in range(2): unpack(SC + 2 * i, SC + 2 * i + 1, csrc + i)
        silu_f32(SC, 4, SC + 4)
        for i in range(2): a(f"v_cvt_pk_bf16_f32 v{TA+i}, v{SC+2*i}, v{SC+2*i+1}")
        coef4(TA, SC, SCL)
        gemv_dot(ACC, wsrc, 4, SC, SCL, wait=wait)
        rscatter8(ACC)
        rowreduce("v_add_f32", [ACC, ACC + 1], [8])
        a(f"v_mov_b32 v{ACC+2}, s96"); a(f"v_mov_b32 v{ACC+3}, s97")
        setexec("0x00ff00ff", "0x00ff00ff")
        a(f"buffer_store_dwordx4 v[{ACC}:{ACC+3}], v69, s[60:63], {sdst} offen sc1")
        fullexec()
    a("s_waitcnt lgkmcnt(0)")
    make_tag()
    a("s_waitcnt vmcnt(22)")
    unit(CC, GW, "s89", wait=lambda i: a(f"s_waitcnt vmcnt({21-i})"))
    stamp_to(1)
    a("s_waitcnt vmcnt(17)")
    for i in range(4): unpack(XV + 2 * i, XV + 2 * i + 1, XA + i)
    a(f"v_readfirstlane_b32 s14, v{XV}")
    for i in range(8): a(f"v_subrev_f32 v{XV+i}, s14, v{XV+i}")
    a(f"v_add_f32 v{MEAN}, v{XV}, v{XV+1}"); a(f"v_mul_f32 v{RDEN}, v{XV}, v{XV}"); a(f"v_fmac_f32 v{RDEN}, v{XV+1}, v{XV+1}")
    for i in range(2, 8):
        a(f"v_add_f32 v{MEAN}, v{MEAN}, v{XV+i}"); a(f"v_fmac_f32 v{RDEN}, v{XV+i}, v{XV+i}")
    rowreduce("v_add_f32", [MEAN, RDEN], [1, 2, 4, 8])
    bfly("v_add_f32", [MEAN, RDEN], [TA, TB], 16)
    bfly("v_add_f32", [MEAN, RDEN], [TA, TB], 32)
    a(f"v_mul_f32 v{MEAN}, {f32bits(1/512):#x}, v{MEAN}")
    a(f"v_mul_f32 v{RDEN}, {f32bits(1/512):#x}, v{RDEN}")
    a(f"v_fma_f32 v{RDEN}, -v{MEAN}, v{MEAN}, v{RDEN}")
    a(f"v_add_f32 v{MEAN}, s14, v{MEAN}")
    ln_finish(MEAN, RDEN, TA)
    LN0 = CC; LN1 = CC + 1
    unpack(LN0, LN1, XJ)
    a(f"v_sub_f32 v{LN0}, v{LN0}, v{MEAN}"); a(f"v_sub_f32 v{LN1}, v{LN1}, v{MEAN}"); bf16rn(LN0, 2, TA)
    a(f"v_mul_f32 v{LN0}, v{LN0}, v{RDEN}"); a(f"v_mul_f32 v{LN1}, v{LN1}, v{RDEN}"); bf16rn(LN0, 2, TA)
    a("s_lshl_b32 s12, s3, 7"); a("v_add_u32 v6, s12, v6")
    a("v_lshl_add_u32 v4, v5, 3, s12")
    a("v_lshlrev_b32 v7, 5, v19"); a("v_lshl_add_u32 v7, v5, 3, v7")
    a("s_lshl_b32 s13, s3, 9"); a("v_add_u32 v7, s13, v7")
    a("v_lshl_add_u32 v16, v0, 3, s12")
    def block_reduce(sbase, Gb, dst, nmat, mstride, sleep, name):
        items = []
        for m in range(nmat):
            a(f"s_add_u32 s{44+2*m if False else 76+0}, s{sbase}, 0") if False else None
            a(f"s_add_u32 s{32+2*m}, s{sbase}, {m*mstride}"); a(f"s_add_u32 s{33+2*m}, s{32+2*m}, 4096")
            for k2 in range(4):
                def ld(m=m, k2=k2):
                    for k in (2 * k2, 2 * k2 + 1):
                        a(f"buffer_load_dwordx4 v[{Gb+32*m+4*k}:{Gb+32*m+4*k+3}], v1, s[60:63], s{32+2*m+(k>>2)} offen offset:{1024*(k&3)} sc1")
                items.append((ld, "tag", [Gb + 32 * m + 8 * k2, Gb + 32 * m + 8 * k2 + 4]))
        sel_gather(items, name, sleep)
        for m in range(nmat):
            for k in range(1, 8):
                a(f"v_pk_add_f32 v[{Gb+32*m}:{Gb+32*m+1}], v[{Gb+32*m}:{Gb+32*m+1}], v[{Gb+32*m+4*k}:{Gb+32*m+4*k+1}]")
        for m in range(nmat):
            a(f"v_mov_b32 v{dst+2*m}, v{Gb+32*m}"); a(f"v_mov_b32 v{dst+2*m+1}, v{Gb+32*m+1}")
        bfly("v_add_f32", list(range(dst, dst + 2 * nmat)), list(range(Gb + 8, Gb + 8 + 2 * nmat)), 32)
    if cfg.get("adelay", 8): a(f"s_sleep {cfg.get('adelay', 8)}")
    block_reduce(86, GE, XV, 2, 8 * BS, cfg.get("asleep", 4), "A")
    stamp_to(13)
    bf16rn(XV, 4, GE + 4)
    a(f"v_add_f32 v{XV+2}, 1.0, v{XV+2}"); a(f"v_add_f32 v{XV+3}, 1.0, v{XV+3}"); bf16rn(XV + 2, 2, GE + 4)
    a(f"v_mul_f32 v{XV+2}, v{LN0}, v{XV+2}"); a(f"v_mul_f32 v{XV+3}, v{LN1}, v{XV+3}"); bf16rn(XV + 2, 2, GE + 4)
    a(f"v_add_f32 v{XV}, v{XV+2}, v{XV}"); a(f"v_add_f32 v{XV+1}, v{XV+3}, v{XV+1}")
    a(f"v_cvt_pk_bf16_f32 v{GE+4}, v{XV}, v{XV+1}")
    setexec(-1, 0)
    a(f"ds_write_b32 v6, v{GE+4} offset:{HLD}")
    fullexec()
    for aa in range(4): a(f"ds_read_b64 v[{GE+8+2*aa}:{GE+9+2*aa}], v4 offset:{HLD + 32*aa}")
    for aa in range(4):
        a(f"s_waitcnt lgkmcnt({3-aa})")
        coef4(GE + 8 + 2 * aa, GE + 16 + 8 * aa, GE + 20 + 8 * aa)
        gemv_dot(ACC, WQ + 16 * aa, 4, GE + 16 + 8 * aa, GE + 20 + 8 * aa, first=(aa == 0))
    rscatter8(ACC)
    a(f"ds_write_b64 v7, v[{ACC}:{ACC+1}] offset:{QR}")
    lds_signal(F_QR, VZ, VONE)
    a(f"v_mov_b32 v{ACC+2}, s96"); a(f"v_mov_b32 v{ACC+3}, s97")
    lds_wait(F_QR, 4, VZ, TA, 14, sleep=0)
    setexec("0xffff", 0)
    for w in range(4): a(f"ds_read_b64 v[{GE+2*w}:{GE+2*w+1}], v16 offset:{QR + 512*w}")
    a("s_waitcnt lgkmcnt(0)")
    a(f"v_pk_add_f32 v[{GE}:{GE+1}], v[{GE}:{GE+1}], v[{GE+2}:{GE+3}]")
    a(f"v_pk_add_f32 v[{GE+4}:{GE+5}], v[{GE+4}:{GE+5}], v[{GE+6}:{GE+7}]")
    a(f"v_pk_add_f32 v[{ACC}:{ACC+1}], v[{GE}:{GE+1}], v[{GE+4}:{GE+5}]")
    a(f"buffer_store_dwordx4 v[{ACC}:{ACC+3}], v1, s[60:63], s84 offen sc1")
    fullexec()
    stamp_to(2)
    a("v_lshlrev_b32 v4, 3, v17")
    a("s_lshl_b32 s12, s5, 2"); a("s_add_u32 s12, s12, s3")
    a("s_and_b32 s10, s12, 31"); a("s_add_u32 s10, s10, 16"); a("s_lshr_b32 s99, s12, 5")
    a("s_lshl_b32 s12, s99, 6")
    a(f"s_mul_i32 s13, s99, {32*6144}"); a("s_lshl_b32 s14, s10, 7"); a("s_add_u32 s13, s13, s14")
    a(f"buffer_load_dwordx2 v[{C2}:{C2+1}], v4, s[48:51], s12 offen")
    a(f"buffer_load_dwordx2 v[{C3}:{C3+1}], v4, s[48:51], s12 offen offset:512")
    for hf in range(2):
        for i in range(4):
            a(f"s_add_u32 s12, s13, {hf*256*6144 + i*6144}")
            a(f"buffer_load_dwordx4 v[{GW+16*hf+4*i}:{GW+16*hf+4*i+3}], v68, s[52:55], s12 offen{WT}")
    a(f"s_mul_i32 s89, s10, {BS}"); a("s_lshl_b32 s12, s99, 9"); a("s_add_u32 s89, s89, s12"); a(f"s_add_u32 s89, s89, {MODP}")
    a("s_add_u32 s99, s89, 4096")
    a("v_lshlrev_b32 v18, 4, v18")
    a("v_lshl_add_u32 v4, v17, 13, v18")
    a("v_lshl_add_u32 v6, v17, 10, v18")
    a("s_lshl_b32 s12, s6, 17"); a("s_lshl_b32 s13, s7, 9"); a("s_add_u32 s12, s12, s13")
    a("s_lshl_b32 s13, s3, 11"); a("s_add_u32 s12, s12, s13")
    for i in range(4):
        a(f"s_add_u32 s13, s12, {(64*(i&1) + (i>>1)) * 1024}")
        for cb in range(4):
            a(f"buffer_load_dwordx4 v[{WOF+16*cb+4*i}:{WOF+16*cb+4*i+3}], v4, s[68:71], s13 offen offset:{128*cb}{WT}")
    a("s_cmp_eq_u32 s8, 0"); a("s_cbranch_scc1 L_xnotM")
    a("v_lshrrev_b32 v7, 2, v0"); a("v_mul_u32_u24 v7, 3584, v7")
    a("v_and_b32 v16, 3, v0"); a("v_lshl_add_u32 v7, v16, 4, v7")
    a(f"s_mul_i32 s12, s3, {128*3584}"); a("s_lshl_b32 s13, s5, 6"); a("s_add_u32 s12, s12, s13")
    for i in range(8):
        a(f"buffer_load_dwordx4 v[{W1F+4*i}:{W1F+4*i+3}], v7, s[72:75], s12 offen{WT}")
        if i < 7: a(f"s_add_u32 s12, s12, {16*3584}")
    a("s_lshl_b32 s12, s5, 15"); a("s_lshl_b32 s13, s3, 8"); a("s_add_u32 s12, s12, s13")
    for hh in range(2):
        for i in range(4):
            a(f"s_add_u32 s13, s12, {8192*i}")
            a(f"buffer_load_dwordx4 v[{W2F+16*hh+4*i}:{W2F+16*hh+4*i+3}], v6, s[76:79], s13 offen offset:{128*hh}{WT}")
    a("v_and_b32 v7, 31, v0"); a("v_lshlrev_b32 v7, 3, v7"); a("s_lshl_b32 s12, s3, 8")
    a(f"buffer_load_dwordx2 v[{XQR}:{XQR+1}], v7, s[44:47], s12 offen")
    a.label("L_xnotM")
    for r in range(8, 12): a(f"v_mov_b32 v{r}, -1")
    setexec("0xffff", 0)
    a("buffer_store_dwordx4 v[8:11], v1, s[60:63], s87 offen sc1")
    a("s_cmp_eq_u32 s8, 0"); a("s_cbranch_scc1 L_nz")
    setexec(-1, 0)
    a("buffer_store_dwordx4 v[8:11], v1, s[60:63], s88 offen sc1")
    a.label("L_nz")
    fullexec()
    a("s_waitcnt vmcnt(0)")
    unit(C2, GW, "s89")
    unit(C3, GW + 16, "s99")
    a("s_lshl_b32 s12, s3, 12")
    a("v_add_u32 v19, s12, v1")
    a("v_lshrrev_b32 v17, 4, v0"); a("v_and_b32 v18, 15, v0"); a("v_lshl_add_u32 v18, v18, 1, s12")
    a("v_lshl_add_u32 v4, v17, 10, v18"); a("v_lshl_add_u32 v5, v17, 9, v18")
    a("v_lshlrev_b32 v17, 4, v17")
    a("s_waitcnt vmcnt(0)")
    arrive(VZ, VONE, TA)
    def transpose4(dst, rb):
        for q in range(4): a(f"ds_write_b128 v19, v[{dst+4*q}:{dst+4*q+3}] offset:{STG + 1024*q}")
        for f in range(4):
            for e in range(8):
                if rb == 128: off = e * 128 + f * 32; vb = 4
                else: off = (f >> 1) * 2048 + e * 64 + (f & 1) * 32; vb = 5
                a(f"ds_read_u16 v{GW+8*f+e}, v{vb} offset:{STG + off}")
        a("s_waitcnt lgkmcnt(0)")
        for f in range(4):
            for q in range(4): a(f"v_lshl_or_b32 v{dst+4*f+q}, v{GW+8*f+2*q+1}, 16, v{GW+8*f+2*q}")
    for cb in range(4): transpose4(WOF + 16 * cb, 128)
    a("s_cmp_eq_u32 s8, 0"); a("s_cbranch_scc1 L_notM05")
    transpose4(W1F, 64); transpose4(W1F + 16, 64)
    transpose4(W2F, 128); transpose4(W2F + 16, 128)
    a.label("L_notM05")
    a("s_cmp_ge_u32 s5, 32"); a("s_cbranch_scc1 L_nored")
    a("s_cmp_lg_u32 s3, 1"); a("s_cbranch_scc1 L_nored")
    a("s_add_u32 s14, s5, 16"); a(f"s_mul_i32 s86, s14, {BS}"); a(f"s_add_u32 s86, s86, {MODP}")
    a(f"s_mul_i32 s89, s14, 640"); a(f"s_add_u32 s89, s89, {MODF}")
    block_reduce(86, GW, ACC, 1, 0, 8, "R")
    bf16rn(ACC, 2, GW + 4)
    a(f"v_mov_b32 v{ACC+2}, s96"); a(f"v_mov_b32 v{ACC+3}, s97")
    setexec(-1, 0)
    a(f"buffer_store_dwordx4 v[{ACC}:{ACC+3}], v1, s[60:63], s89 offen sc1")
    fullexec()
    a.label("L_nored")
    a("s_cmp_lg_u32 s3, 0"); a("s_cbranch_scc1 L_gow")
    a(f"s_mov_b32 s15, {TMO}")
    setexec(1, 0)
    a.label("L_go")
    a(f"s_sleep {cfg.get('gosleep', 64)}")
    a(f"buffer_load_dword v{TA}, v{VZ}, s[64:67], 0 offen offset:128 sc1")
    a("s_sub_u32 s15, s15, 1"); a("s_cbranch_scc1 L_end")
    a("s_waitcnt vmcnt(0)")
    a(f"v_readfirstlane_b32 s14, v{TA}")
    a("s_cmp_eq_u32 s14, 0"); a("s_cbranch_scc1 L_go")
    a(f"ds_add_u32 v{VZ}, v{VONE} offset:{F_GO}")
    fullexec()
    a.label("L_gow")
    lds_wait(F_GO, 1, VZ, TA, 14, sleep=8)
    stamp_to(3)
    a("s_cmp_eq_u32 s8, 0"); a("s_cbranch_scc1 L_notM1")
    unpack(XQ, XQ + 1, XQR); unpack(XQ + 2, XQ + 3, XQR + 1)
    a("v_and_b32 v4, 15, v0"); a("v_lshlrev_b32 v4, 5, v4"); a("v_bfe_u32 v6, v0, 4, 1"); a("v_mul_u32_u24 v6, 640, v6"); a("v_add_u32 v4, v4, v6")
    a("v_and_b32 v6, 3, v0"); a("v_lshlrev_b32 v6, 5, v6")
    a(f"s_mul_i32 s32, s3, 1280"); a(f"s_add_u32 s32, s32, {MODF + 16*640}")
    a(f"s_add_u32 s33, s32, {8*640}"); a(f"s_add_u32 s34, s32, {16*640}")
    a(f"s_mul_i32 s35, s4, 640"); a("s_lshl_b32 s12, s3, 7"); a("s_add_u32 s35, s35, s12"); a(f"s_add_u32 s35, s35, {MODF + 40*640}")
    items = []
    for k in range(4):
        def ld(k=k):
            va = 4 if k < 3 else 6
            a(f"buffer_load_dwordx4 v[{GW+8*k}:{GW+8*k+3}], v{va}, s[60:63], s{32+k} offen sc1")
            a(f"buffer_load_dwordx4 v[{GW+8*k+4}:{GW+8*k+7}], v{va}, s[60:63], s{32+k} offen offset:16 sc1")
        items.append((ld, "tag", [GW + 8 * k, GW + 8 * k + 4]))
    sel_gather(items, "MF", 16)
    for k, dst in enumerate((GA, SBV, CB1, GB)):
        a(f"v_mov_b32 v{dst}, v{GW+8*k}"); a(f"v_mov_b32 v{dst+1}, v{GW+8*k+1}")
        a(f"v_mov_b32 v{dst+2}, v{GW+8*k+4}"); a(f"v_mov_b32 v{dst+3}, v{GW+8*k+5}")
    for i in range(4): a(f"v_add_f32 v{CB1+i}, 1.0, v{CB1+i}")
    bf16rn(CB1, 4, TA)
    a.label("L_notM1")
    stamp_to(8)
    a("v_lshrrev_b32 v18, 5, v0"); a("v_and_b32 v7, 31, v0"); a("v_lshlrev_b32 v7, 4, v7"); a("v_lshl_add_u32 v7, v18, 11, v7")
    a("v_lshrrev_b32 v8, 3, v0"); a("v_mul_u32_u24 v9, 640, v8")
    a("v_and_b32 v10, 7, v0"); a("v_lshl_add_u32 v8, v10, 4, v9")
    a("s_lshl_b32 s13, s3, 7"); a("v_add_u32 v8, s13, v8")
    a("s_lshl_b32 s12, s3, 6"); a("v_lshl_add_u32 v10, v0, 3, s12")
    a("v_add_u32 v11, s12, v17")
    a("s_lshl_b32 s12, s3, 10"); a("v_add_u32 v12, s12, v17")
    a("s_lshl_b32 s12, s3, 8"); a("v_add_u32 v13, s12, v1")
    a("v_add_u32 v6, s12, v17")
    a("v_lshl_add_u32 v14, v0, 3, s12")
    a("s_lshl_b32 s12, s3, 3"); a("v_mov_b32 v15, s12")
    a("s_lshl_b32 s12, s3, 7"); a("v_add_u32 v16, s12, v17")
    a("v_lshlrev_b32 v4, 1, v17")
    a(f"s_mul_i32 s32, s6, {NSP*640}"); a(f"s_add_u32 s32, s32, {R1}")
    a(f"s_add_u32 s33, s32, {8*640}"); a(f"s_add_u32 s34, s32, {16*640}")
    a("s_lshl_b32 s56, s3, 9"); a(f"s_add_u32 s56, s56, {YO}")
    a("s_lshl_b32 s57, s4, 8"); a("s_lshl_b32 s13, s3, 6"); a("s_add_u32 s57, s57, s13"); a(f"s_add_u32 s57, s57, {ZO}")
    for _ in range(cfg.get("wdelay_n", 5)): a("s_sleep 127")
    G = GW; LS = GW + 12
    items = []
    for i in range(3):
        def ld(i=i):
            a(f"buffer_load_dwordx4 v[{G+4*i}:{G+4*i+3}], v8, s[60:63], s{32+i} offen sc1")
            a(f"buffer_load_dword v{LS+i}, v9, s[60:63], s{32+i} offen offset:512 sc1")
        items.append((ld, "sent", [G + 4 * i, G + 4 * i + 1, G + 4 * i + 2, G + 4 * i + 3, LS + i]))
    sel_gather(items, "W", cfg.get("wsleep", 2), chk=TA)
    stamp_to(6)
    MX = G + 16; MT = G + 17
    a(f"v_max3_f32 v{MX}, v{LS}, v{LS+1}, v{LS+2}")
    rowreduce("v_max_f32", [MX], [8])
    bfly("v_max_f32", [MX], [MT], 16); bfly("v_max_f32", [MX], [MT], 32)
    for i in range(3): a(f"v_sub_f32 v{LS+i}, v{LS+i}, v{MX}")
    for i in range(3): a(f"v_exp_f32 v{LS+i}, v{LS+i}")
    for k in range(4): a(f"v_mul_f32 v{G+k}, v{G+k}, v{LS}")
    for i in range(1, 3):
        for k in range(4): a(f"v_fmac_f32 v{G+k}, v{G+4*i+k}, v{LS+i}")
    a(f"v_add_f32 v{G+4}, v{LS}, v{LS+1}"); a(f"v_add_f32 v{G+4}, v{G+4}, v{LS+2}")
    five = [G, G + 1, G + 2, G + 3, G + 4]; five_t = [G + 8, G + 9, G + 10, G + 11, G + 12]
    rowreduce("v_add_f32", five, [8])
    bfly("v_add_f32", five, five_t, 16); bfly("v_add_f32", five, five_t, 32)
    a(f"v_rcp_f32 v{G+4}, v{G+4}")
    for k in range(4): a(f"v_mul_f32 v{G+k}, v{G+k}, v{G+4}")
    a(f"v_cvt_pk_bf16_f32 v{G+6}, v{G}, v{G+1}"); a(f"v_cvt_pk_bf16_f32 v{G+7}, v{G+2}, v{G+3}")
    setexec("0xff", 0)
    a(f"ds_write_b64 v10, v[{G+6}:{G+7}] offset:{OL}")
    fullexec()
    a(f"ds_read_b128 v[{G+16}:{G+19}], v11 offset:{OL}")
    a("s_waitcnt lgkmcnt(0)")
    def ydst(ct): return G + 20 if ct == 0 else WOF + 4 * (ct - 1)
    for ct in range(16):
        d = ydst(ct)
        a(f"v_mfma_f32_16x16x32_bf16 v[{d}:{d+3}], v[{WOF+4*ct}:{WOF+4*ct+3}], v[{G+16}:{G+19}], 0")
    setexec("0x00010001", "0x00010001")
    for ct in range(16):
        d = ydst(ct)
        a(f"ds_write_b128 v12, v[{d}:{d+3}] offset:{YPL + 64*ct}")
    lds_signal(F_O, VZ, VONE)
    lds_wait(F_O, 4, VZ, TA, 14, sleep=0)
    setexec("0xffff", 0)
    for w in range(4): a(f"ds_read_b128 v[{G+4*w}:{G+4*w+3}], v13 offset:{YPL + 1024*w}")
    a("s_waitcnt lgkmcnt(0)")
    pk_sum_quads(G, 4)
    a(f"buffer_store_dwordx4 v[{G}:{G+3}], v1, s[60:63], s87 offen sc1")
    fullexec()
    stamp_to(7)
    a("s_cmp_eq_u32 s8, 0"); a("s_cbranch_scc1 L_end")
    G = GE
    items = []
    for i in range(16):
        def ld(i=i):
            a(f"s_add_u32 s12, s56, {4096*i}")
            a(f"buffer_load_dwordx4 v[{G+4*i}:{G+4*i+3}], v7, s[60:63], s12 offen sc1")
        items.append((ld, "sent", [G + 4 * i + k for k in range(4)]))
    sel_gather(items, "Y", cfg.get("ysleep", 0), chk=TA)
    pk_sum_quads(G, 16)
    stamp_to(9)
    bfly("v_add_f32", [G, G + 1, G + 2, G + 3], [G + 4, G + 5, G + 6, G + 7], 32)
    bf16rn(G, 4, G + 4)
    for k in range(4): a(f"v_mul_f32 v{G+k}, v{G+k}, v{GA+k}")
    bf16rn(G, 4, G + 4)
    for k in range(4): a(f"v_add_f32 v{G+k}, v{G+k}, v{XQ+k}")
    a(f"v_cvt_pk_bf16_f32 v{G+4}, v{G}, v{G+1}"); a(f"v_cvt_pk_bf16_f32 v{G+5}, v{G+2}, v{G+3}")
    unpack(XV, XV + 1, G + 4); unpack(XV + 2, XV + 3, G + 5)
    setexec(-1, 0)
    a(f"ds_write_b64 v14, v[{G+4}:{G+5}] offset:{X1L}")
    fullexec()
    a(f"v_readfirstlane_b32 s14, v{XV}")
    for k in range(4): a(f"v_subrev_f32 v{G+k}, s14, v{XV+k}")
    S1 = G + 6; S2 = G + 7
    a(f"v_add_f32 v{S1}, v{G}, v{G+1}"); a(f"v_mul_f32 v{S2}, v{G}, v{G}"); a(f"v_fmac_f32 v{S2}, v{G+1}, v{G+1}")
    a(f"v_add_f32 v{S1}, v{S1}, v{G+2}"); a(f"v_fmac_f32 v{S2}, v{G+2}, v{G+2}")
    a(f"v_add_f32 v{S1}, v{S1}, v{G+3}"); a(f"v_fmac_f32 v{S2}, v{G+3}, v{G+3}")
    rowreduce("v_add_f32", [S1, S2], [1, 2, 4, 8])
    bfly("v_add_f32", [S1, S2], [G + 8, G + 9], 16)
    a(f"v_mul_f32 v{G+8}, {f32bits(1/128):#x}, v{S1}")
    a(f"v_fma_f32 v{S2}, -v{G+8}, v{S1}, v{S2}")
    a(f"v_add_f32 v{S1}, s14, v{G+8}")
    setexec(1, 0)
    a(f"ds_write_b64 v15, v[{S1}:{S2}] offset:{STL}")
    a("s_waitcnt lgkmcnt(0)")
    a(f"ds_add_u32 v{VZ}, v{VONE} offset:{F_X1}")
    fullexec()
    lds_wait(F_X1, 4, VZ, TA, 14, sleep=0)
    a(f"ds_read_b128 v[{G}:{G+3}], v{VZ} offset:{STL}")
    a(f"ds_read_b128 v[{G+4}:{G+7}], v{VZ} offset:{STL+16}")
    a("s_waitcnt lgkmcnt(0)")
    a(f"v_add_f32 v{MEAN}, v{G}, v{G+2}"); a(f"v_add_f32 v{TA}, v{G+4}, v{G+6}")
    a(f"v_add_f32 v{RDEN}, v{G+1}, v{G+3}"); a(f"v_add_f32 v{TB}, v{G+5}, v{G+7}")
    a(f"v_add_f32 v{MEAN}, v{MEAN}, v{TA}"); a(f"v_add_f32 v{RDEN}, v{RDEN}, v{TB}")
    a(f"v_mul_f32 v{MEAN}, {f32bits(0.25):#x}, v{MEAN}")
    for w in range(4): a(f"v_sub_f32 v{G+2*w}, v{G+2*w}, v{MEAN}")
    a(f"v_mul_f32 v{TA}, v{G}, v{G}"); a(f"v_mul_f32 v{TB}, v{G+2}, v{G+2}")
    a(f"v_fmac_f32 v{TA}, v{G+4}, v{G+4}"); a(f"v_fmac_f32 v{TB}, v{G+6}, v{G+6}")
    a(f"v_add_f32 v{TA}, v{TA}, v{TB}")
    a(f"v_mul_f32 v{RDEN}, {f32bits(1/512):#x}, v{RDEN}")
    a(f"v_fmac_f32 v{RDEN}, {f32bits(0.25):#x}, v{TA}")
    ln_finish(MEAN, RDEN, TA)
    for i in range(4): a(f"v_sub_f32 v{XV+i}, v{XV+i}, v{MEAN}")
    bf16rn(XV, 4, G)
    for i in range(4): a(f"v_mul_f32 v{XV+i}, v{XV+i}, v{RDEN}")
    bf16rn(XV, 4, G)
    for i in range(4): a(f"v_mul_f32 v{XV+i}, v{XV+i}, v{CB1+i}")
    bf16rn(XV, 4, G)
    for i in range(4): a(f"v_add_f32 v{XV+i}, v{XV+i}, v{SBV+i}")
    a(f"v_cvt_pk_bf16_f32 v{G}, v{XV}, v{XV+1}"); a(f"v_cvt_pk_bf16_f32 v{G+1}, v{XV+2}, v{XV+3}")
    setexec(-1, 0)
    a(f"ds_write_b64 v14, v[{G}:{G+1}] offset:{H2L}")
    fullexec()
    for ks in range(4): a(f"ds_read_b128 v[{G+16+4*ks}:{G+19+4*ks}], v6 offset:{H2L + 64*ks}")
    for ks in range(4):
        a(f"s_waitcnt lgkmcnt({3-ks})")
        for ct in range(2):
            acc = G + 4 + 4 * ct
            c = "0" if ks == 0 else f"v[{acc}:{acc+3}]"
            f = W1F + 4 * (2 * ks + ct)
            a(f"v_mfma_f32_16x16x32_bf16 v[{acc}:{acc+3}], v[{f}:{f+3}], v[{G+16+4*ks}:{G+19+4*ks}], {c}")
    setexec("0x00010001", "0x00010001")
    a(f"ds_write_b128 v16, v[{G+4}:{G+7}] offset:{A1L}")
    a(f"ds_write_b128 v16, v[{G+8}:{G+11}] offset:{A1L+64}")
    lds_signal(F_A1, VZ, VONE)
    lds_wait(F_A1, 4, VZ, TA, 14, sleep=0)
    for w in range(4):
        a(f"ds_read_b128 v[{G+8*w}:{G+8*w+3}], v4 offset:{A1L + 128*w}")
        a(f"ds_read_b128 v[{G+8*w+4}:{G+8*w+7}], v4 offset:{A1L + 128*w + 16}")
    a("s_waitcnt lgkmcnt(4)")
    for i in range(0, 8, 2): a(f"v_pk_add_f32 v[{G+i}:{G+i+1}], v[{G+i}:{G+i+1}], v[{G+8+i}:{G+9+i}]")
    a("s_waitcnt lgkmcnt(0)")
    for i in range(0, 8, 2): a(f"v_pk_add_f32 v[{G+16+i}:{G+17+i}], v[{G+16+i}:{G+17+i}], v[{G+24+i}:{G+25+i}]")
    for i in range(0, 8, 2): a(f"v_pk_add_f32 v[{G+i}:{G+i+1}], v[{G+i}:{G+i+1}], v[{G+16+i}:{G+17+i}]")
    bf16rn(G, 8, G + 8)
    silu_f32(G, 8, G + 8)
    for i in range(4): a(f"v_cvt_pk_bf16_f32 v{G+16+i}, v{G+2*i}, v{G+2*i+1}")
    ZD = G + 20
    for u in range(8):
        a(f"v_mfma_f32_16x16x32_bf16 v[{ZD+4*u}:{ZD+4*u+3}], v[{W2F+4*u}:{W2F+4*u+3}], v[{G+16}:{G+19}], 0")
    setexec("0x00010001", "0x00010001")
    for u in range(8):
        a(f"buffer_store_dwordx4 v[{ZD+4*u}:{ZD+4*u+3}], v17, s[60:63], s88 offen offset:{64*u} sc1")
    fullexec()
    stamp_to(10)
    a("s_cmp_ge_u32 s5, 8"); a("s_cbranch_scc1 L_end")
    a("v_lshrrev_b32 v8, 2, v0"); a("v_lshlrev_b32 v18, 11, v8")
    a("v_and_b32 v9, 3, v0"); a("v_lshl_add_u32 v18, v9, 4, v18")
    a("v_and_b32 v8, 7, v8"); a("v_lshlrev_b32 v10, 11, v8"); a("v_lshl_add_u32 v10, v9, 4, v10")
    a("s_lshl_b32 s12, s4, 7"); a("s_lshl_b32 s13, s3, 5"); a("s_add_u32 s14, s12, s13")
    a("v_lshlrev_b32 v9, 3, v9"); a("v_add_u32 v9, s14, v9")
    a(f"ds_read_b64 v[{XQ+2}:{XQ+3}], v9 offset:{X1L}")
    srd(44, 90, 1024)
    items = []
    for i in range(4):
        def ld(i=i):
            a(f"s_add_u32 s12, s57, {32768*i}")
            a(f"buffer_load_dwordx4 v[{G+4*i}:{G+4*i+3}], v{18 if i < 3 else 10}, s[60:63], s12 offen sc1")
        items.append((ld, "sent", [G + 4 * i + k for k in range(4)]))
    sel_gather(items, "Z", 0, chk=TA)
    setexec(0, -1)
    for k in range(4): a(f"v_mov_b32 v{G+12+k}, 0")
    fullexec()
    pk_sum_quads(G, 4)
    four = [G, G + 1, G + 2, G + 3]; four_t = [G + 4, G + 5, G + 6, G + 7]
    rowreduce("v_add_f32", four, [4, 8])
    bfly("v_add_f32", four, four_t, 16); bfly("v_add_f32", four, four_t, 32)
    a("s_waitcnt lgkmcnt(0)")
    unpack(XQ, XQ + 1, XQ + 2); unpack(XQ + 2, XQ + 3, XQ + 3)
    bf16rn(G, 4, G + 4)
    for k in range(4): a(f"v_mul_f32 v{G+k}, v{G+k}, v{GB+k}")
    bf16rn(G, 4, G + 4)
    for k in range(4): a(f"v_add_f32 v{G+k}, v{G+k}, v{XQ+k}")
    a(f"v_cvt_pk_bf16_f32 v{G+4}, v{G}, v{G+1}"); a(f"v_cvt_pk_bf16_f32 v{G+5}, v{G+2}, v{G+3}")
    setexec("0xf", 0)
    a(f"buffer_store_dwordx2 v[{G+4}:{G+5}], v9, s[44:47], 0 offen")
    a("s_or_b32 s12, s5, s3"); a("s_cmp_lg_u32 s12, 0"); a("s_cbranch_scc1 L_noep")
    setexec(1, 0)
    a(f"buffer_store_dword v{TAG}, v{VZ}, s[60:63], 0 offen offset:{EPOCH} sc1")
    a.label("L_noep")
    fullexec()
    stamp_to(11)
    a.label("L_end")
    if stamp:
        fullexec()
        stamp_to(15)
        for i in range(16): a(f"v_writelane_b32 v2, s{16+i}, {i}")
        a("v_mbcnt_lo_u32_b32 v3, -1, 0"); a("v_lshlrev_b32 v3, 2, v3")
        setexec("0xffff", 0)
        a("buffer_store_dword v2, v3, s[60:63], s94 offen")
    a.label("L_exit")
    a("s_endpgm")
    a.raw('.section .rodata,"a"')
    a.raw(".p2align 6")
    a.raw(f".amdhsa_kernel {NAME}_kernel")
    a.raw("  .amdhsa_next_free_vgpr 256")
    a.raw("  .amdhsa_next_free_sgpr 100")
    a.raw("  .amdhsa_accum_offset 256")
    a.raw("  .amdhsa_group_segment_fixed_size 0")
    a.raw("  .amdhsa_kernarg_size 104")
    a.raw("  .amdhsa_user_sgpr_count 2")
    a.raw("  .amdhsa_user_sgpr_kernarg_segment_ptr 1")
    a.raw("  .amdhsa_system_sgpr_workgroup_id_x 1")
    a.raw(".end_amdhsa_kernel")
    assert a.maxv <= 256 and a.maxs <= 100, (a.maxv, a.maxs)
    return a.text()

if __name__ == "__main__":
    import json
    out = sys.argv[1]
    cfg = json.loads(sys.argv[2]) if len(sys.argv) > 2 else {}
    open(out, "w").write(gen(cfg))
```

```python
import sys, struct
from dsl import Asm
NAME = "adaLN_cond__gqa_block_cached__dense_activation_silu__decode"

EPOCH = 0
QP = 0x1000
QS = 1152
MODF = 0x20000
R1 = 0x30000
YO = 0xB0000
ZO = 0xC0000
MODP = 0xE0000
BS = 8320
WS_END = 0x142000
DBGWS = 0x300000
F_Q, F_SP, F_O, F_X1, F_A1, F_RST, F_GO, F_QR, F_TK = 4, 8, 12, 16, 20, 24, 28, 40, 64
HLD = 256
QL = 1536
ML = 2560
OL = 2688
X1L = 2944
STL = 3968
A1L = 5120
H2L = 5632
QR = 8192
SP = 8192
YPL = 12288
STG = 16384
KVL = 32768
LOG2E = 0x3fb8aa3b
SCALE = 0x3db504f3
OOB = 0x10000000
NSP = 24

def f32bits(x): return struct.unpack("<I", struct.pack("<f", x))[0]

def gen(cfg):
    a = Asm()
    def fl(name, d):
        v = cfg.get(name, d); return (" " + v) if v else ""
    KF = fl("kflags", "nt"); VF = fl("vflags", "nt"); WT = fl("wflags", "nt")
    TMO = cfg.get("timeout", 1 << 15)
    stamp = cfg.get("stamp", False)
    Wp = cfg.get("wp", 60)
    a.raw(f"; @launch grid=(256,1,1) block=(512,1,1) lds=163840")
    a.raw('.amdgcn_target "amdgcn-amd-amdhsa--gfx950"')
    a.raw(".text")
    a.raw(f".globl {NAME}_kernel")
    a.raw(".p2align 8")
    a.raw(f".type {NAME}_kernel,@function")
    a.raw(f"{NAME}_kernel:")

    def srd(d, p, size):
        a(f"s_mov_b32 s{d}, s{p}"); a(f"s_mov_b32 s{d+1}, s{p+1}")
        a(f"s_mov_b32 s{d+2}, {size:#x}"); a(f"s_mov_b32 s{d+3}, 0x20000")
    def setexec(lo, hi):
        a(f"s_mov_b32 exec_lo, {lo}"); a(f"s_mov_b32 exec_hi, {hi}")
    def fullexec(): a("s_mov_b64 exec, -1")
    def bf16r(d, s):
        a(f"v_cvt_pk_bf16_f32 v{d}, v{s}, v{s}"); a(f"v_lshlrev_b32 v{d}, 16, v{d}")
    def bf16r2(d0, d1, s0, s1, t):
        a(f"v_cvt_pk_bf16_f32 v{t}, v{s0}, v{s1}")
        a(f"v_lshlrev_b32 v{d0}, 16, v{t}"); a(f"v_and_b32 v{d1}, s83, v{t}")
    def bf16rn(r, n, t):
        for i in range(0, n, 2): a(f"v_cvt_pk_bf16_f32 v{t+i//2}, v{r+i}, v{r+i+1}")
        for i in range(0, n, 2):
            a(f"v_lshlrev_b32 v{r+i}, 16, v{t+i//2}"); a(f"v_and_b32 v{r+i+1}, s83, v{t+i//2}")
    def unpack(d0, d1, s):
        a(f"v_lshlrev_b32 v{d0}, 16, v{s}"); a(f"v_and_b32 v{d1}, s83, v{s}")
    def rowreduce(op, regs, rors):
        for k in rors:
            for r in regs: a(f"{op} v{r}, v{r}, v{r} row_ror:{k}")
    def bfly(op, regs, tmps, width):
        for r, t in zip(regs, tmps): a(f"v_mov_b32 v{t}, v{r}")
        for r, t in zip(regs, tmps): a(f"v_permlane{width}_swap_b32 v{r}, v{t}")
        for r, t in zip(regs, tmps): a(f"{op} v{r}, v{r}, v{t}")
    def lds_signal(flag, vz, vone):
        a("s_waitcnt lgkmcnt(0)")
        setexec(1, 0)
        a(f"ds_add_u32 v{vz}, v{vone} offset:{flag}")
        fullexec()
    def lds_wait(flag, target, vz, vt, st=14, sleep=1):
        L = a.newlabel("Lw"); L2 = a.newlabel("Lwd")
        a(f"s_mov_b32 s{st+1}, {TMO*16}")
        a.label(L)
        a(f"ds_read_b32 v{vt}, v{vz} offset:{flag}")
        a(f"s_sub_u32 s{st+1}, s{st+1}, 1")
        a("s_cbranch_scc1 L_end")
        a("s_waitcnt lgkmcnt(0)")
        a(f"v_readfirstlane_b32 s{st}, v{vt}")
        a(f"s_cmp_ge_u32 s{st}, {target}")
        if sleep:
            a(f"s_cbranch_scc1 {L2}"); a(f"s_sleep {sleep}"); a(f"s_branch {L}")
            a.label(L2)
        else:
            a(f"s_cbranch_scc0 {L}")
    def stamp_to(slot):
        if not stamp: return
        a(f"s_memrealtime s[92:93]"); a("s_waitcnt lgkmcnt(0)"); a(f"s_mov_b32 s{16+slot}, s92")
    def stamp_init():
        if not stamp: return
        for i in range(1, 16): a(f"s_mov_b32 s{16+i}, 0")
        a("s_mov_b32 s16, s95")
    def silu_f32(dst, n, t):
        for i in range(n): a(f"v_mul_f32 v{t+i}, {f32bits(-1.4426950408889634):#x}, v{dst+i}")
        for i in range(n): a(f"v_exp_f32 v{t+i}, v{t+i}")
        for i in range(n): a(f"v_add_f32 v{t+i}, 1.0, v{t+i}")
        for i in range(n): a(f"v_rcp_f32 v{t+i}, v{t+i}")
        for i in range(n): a(f"v_mul_f32 v{dst+i}, v{dst+i}, v{t+i}")
    def gemv_dot(acc, w0, n, sc, scl, wait=None, first=True):
        for i in range(n):
            if wait: wait(i)
            for u in range(4):
                if i == 0 and first:
                    a(f"v_dot2_f32_bf16 v{acc+2*u}, v{w0+4*i+u}, v{scl+i}, 0")
                    a(f"v_dot2_f32_bf16 v{acc+2*u+1}, v{w0+4*i+u}, v{sc+i}, 0")
                else:
                    a(f"v_dot2c_f32_bf16 v{acc+2*u}, v{w0+4*i+u}, v{scl+i}")
                    a(f"v_dot2c_f32_bf16 v{acc+2*u+1}, v{w0+4*i+u}, v{sc+i}")
    def coef4(src, hc, hl):
        for k in range(2):
            a(f"v_lshlrev_b32 v{hc+2*k}, 16, v{src+k}"); a(f"v_and_b32 v{hc+2*k+1}, s83, v{src+k}")
            a(f"v_and_b32 v{hl+2*k}, 0xffff, v{src+k}"); a(f"v_lshrrev_b32 v{hl+2*k+1}, 16, v{src+k}")
    def ln_finish(s1, s2, t1):
        a(f"v_max_f32 v{s2}, 0, v{s2}")
        bf16r2(s1, s2, s1, s2, t1)
        a(f"v_add_f32 v{s2}, {f32bits(1e-5):#x}, v{s2}")
        bf16r(s2, s2)
        a(f"v_sqrt_f32 v{s2}, v{s2}")
        bf16r(s2, s2)
        a(f"v_rcp_f32 v{s2}, v{s2}")
    def rscatter8(acc):
        for k in range(4): a(f"v_permlane32_swap_b32 v{acc+k}, v{acc+4+k}")
        for k in range(4): a(f"v_add_f32 v{acc+k}, v{acc+k}, v{acc+4+k}")
        a(f"v_permlane16_swap_b32 v{acc}, v{acc+2}"); a(f"v_permlane16_swap_b32 v{acc+1}, v{acc+3}")
        a(f"v_add_f32 v{acc}, v{acc}, v{acc+2}"); a(f"v_add_f32 v{acc+1}, v{acc+1}, v{acc+3}")
    def pk_sum_quads(dst, n):
        step = 1
        while step < n:
            for i in range(0, n, 2 * step):
                if i + step < n:
                    for k in (0, 2):
                        a(f"v_pk_add_f32 v[{dst+4*i+k}:{dst+4*i+k+1}], v[{dst+4*i+k}:{dst+4*i+k+1}], v[{dst+4*(i+step)+k}:{dst+4*(i+step)+k+1}]")
            step *= 2
    TAG = 102
    def make_tag():
        a("s_add_u32 s96, s42, 1")
        a("s_mul_i32 s97, s96, 0x9E3779B1"); a("s_add_u32 s97, s97, 0x7F4A7C15")
        a(f"v_mov_b32 v{TAG}, s96"); a(f"v_mov_b32 v{TAG+1}, s97")
    def sel_gather(items, name, sleep=0, chk=None, sleep_all=0):
        L = a.newlabel("Lsg" + name)
        n = len(items)
        a(f"s_mov_b32 s58, {(1 << n) - 1:#x}")
        a(f"s_mov_b32 s15, {TMO}")
        for ld, kind, regs in items: ld()
        a(f"s_branch {L}_chk")
        a.label(L)
        if sleep_all:
            La = a.newlabel("Lsa")
            a(f"s_cmp_lg_u32 s58, {(1 << n) - 1:#x}"); a(f"s_cbranch_scc1 {La}")
            a(f"s_sleep {sleep_all}")
            a.label(La)
        if sleep: a(f"s_sleep {sleep}")
        for i, (ld, kind, regs) in enumerate(items):
            Ls = a.newlabel("Lsk")
            a(f"s_bitcmp1_b32 s58, {i}"); a(f"s_cbranch_scc0 {Ls}")
            ld()
            a.label(Ls)
        a.label(L + "_chk")
        a("s_sub_u32 s15, s15, 1"); a("s_cbranch_scc1 L_end")
        a("s_waitcnt vmcnt(0)")
        for i, (ld, kind, regs) in enumerate(items):
            Ls = a.newlabel("Lsc")
            a(f"s_bitcmp1_b32 s58, {i}"); a(f"s_cbranch_scc0 {Ls}")
            if kind == "tag":
                a(f"v_cmp_ne_u64 vcc, v[{regs[0]+2}:{regs[0]+3}], v[{TAG}:{TAG+1}]")
                for q in regs[1:]:
                    a(f"v_cmp_ne_u64 s[80:81], v[{q+2}:{q+3}], v[{TAG}:{TAG+1}]")
                    a("s_or_b64 vcc, vcc, s[80:81]")
            else:
                a(f"v_max3_u32 v{chk}, v{regs[0]}, v{regs[1]}, v{regs[2]}")
                rest = regs[3:]
                while rest:
                    if len(rest) >= 2: a(f"v_max3_u32 v{chk}, v{chk}, v{rest[0]}, v{rest[1]}"); rest = rest[2:]
                    else: a(f"v_max_u32 v{chk}, v{chk}, v{rest[0]}"); rest = rest[1:]
                a(f"v_cmp_eq_u32 vcc, -1, v{chk}")
            a(f"s_cbranch_vccnz {Ls}")
            a(f"s_bitset0_b32 s58, {i}")
            a.label(Ls)
        a("s_cmp_lg_u32 s58, 0"); a(f"s_cbranch_scc1 {L}")
    def arrive(VZ, VONE, TA):
        Ln = a.newlabel("Lnarr")
        setexec(1, 0)
        a(f"ds_add_rtn_u32 v{TA}, v{VZ}, v{VONE} offset:{F_RST}")
        a("s_waitcnt lgkmcnt(0)")
        a(f"v_readfirstlane_b32 s14, v{TA}")
        a("s_cmp_lg_u32 s14, 3"); a(f"s_cbranch_scc1 {Ln}")
        a(f"v_mov_b32 v{TA}, 1")
        a(f"buffer_atomic_add v{TA}, v{VZ}, s[64:67], 0 offen sc0 sc1")
        a("s_waitcnt vmcnt(0)")
        a(f"v_readfirstlane_b32 s14, v{TA}")
        a("s_cmp_lg_u32 s14, 255"); a(f"s_cbranch_scc1 {Ln}")
        a(f"buffer_store_dword v{VONE}, v{VZ}, s[64:67], 0 offen offset:128 sc1")
        a.label(Ln)
        fullexec()

    a("s_cmp_ge_u32 s2, 256")
    a("s_cbranch_scc1 L_exit")
    a("v_lshrrev_b32 v1, 6, v0")
    a("v_and_b32 v0, 63, v0")
    a("v_readfirstlane_b32 s82, v1")
    a("v_mov_b32 v2, 0")
    a("s_cmp_lg_u32 s82, 3"); a("s_cbranch_scc1 L_noinit")
    a("v_lshlrev_b32 v1, 2, v0")
    a(f"v_cmp_eq_u32 vcc, {F_TK//4}, v0")
    a(f"v_mov_b32 v3, {16*16}")
    a("v_cndmask_b32 v3, v2, v3, vcc")
    a("ds_write_b32 v1, v3")
    a("s_waitcnt lgkmcnt(0)")
    a.label("L_noinit")
    if stamp:
        a("s_memrealtime s[92:93]"); a("s_waitcnt lgkmcnt(0)"); a("s_mov_b32 s95, s92")
    a("s_load_dwordx16 s[16:31], s[0:1], 0")
    a("s_load_dwordx8 s[32:39], s[0:1], 64")
    a("s_load_dwordx2 s[40:41], s[0:1], 96")
    a("s_barrier")
    a("s_and_b32 s3, s82, 3")
    a("s_and_b32 s4, s2, 7")
    a("s_lshr_b32 s5, s2, 3")
    a("s_mov_b32 s83, 0xffff0000")
    if stamp:
        a("s_lshl_b32 s94, s2, 3"); a("s_add_u32 s94, s94, s82"); a("s_lshl_b32 s94, s94, 6"); a(f"s_add_u32 s94, s94, {DBGWS}")
    a("v_lshlrev_b32 v1, 4, v0")
    a("s_cmp_ge_u32 s82, 4"); a("s_cbranch_scc1 L_T")
    a(f"s_cmp_ge_u32 s2, {NSP*8}"); a("s_cbranch_scc1 L_exit")

    VV, VTK, VML, VL, T0, T1, T2 = 1, 2, 3, 4, 5, 6, 7
    KX = 8; KA = 12; D = 16; QF = 24; OA = 40; KT = 72; VR = 104
    a(f"s_setprio {cfg.get('sprio0', 3)}")
    a("v_and_b32 v5, 15, v0"); a("v_lshrrev_b32 v6, 4, v0")
    a("v_and_b32 v7, 3, v0"); a("v_lshlrev_b32 v7, 8, v7"); a("v_lshl_add_u32 v7, v6, 4, v7")
    a("v_lshlrev_b32 v2, 2, v6"); a("v_xor_b32 v2, v2, v5"); a("v_lshlrev_b32 v2, 4, v2"); a(f"v_lshl_add_u32 v{KX}, v6, 8, v2")
    for k in range(1, 4): a(f"v_xor_b32 v{KX+k}, {16*k}, v{KX}")
    a("s_lshl_b32 s87, s3, 15"); a(f"s_add_u32 s87, s87, {KVL}")
    a("v_and_b32 v2, 3, v5"); a("v_lshrrev_b32 v3, 2, v5"); a("v_lshl_add_u32 v2, v2, 2, v3"); a("v_lshlrev_b32 v2, 8, v2")
    a("v_xor_b32 v3, v5, v6"); a("v_lshl_add_u32 v2, v3, 4, v2"); a(f"v_add_u32 v{KA}, s87, v2")
    for k in range(1, 4): a(f"v_xor_b32 v{KA+k}, {64*k}, v{KA}") if 64 * k <= 64 else a(f"v_xor_b32 v{KA+k}, {64*k:#x}, v{KA}")
    M_ = -(-2048 * 1024 // NSP)
    for k in range(NSP + 1): assert (k * M_) >> 10 == k * 2048 // NSP
    a(f"s_mul_i32 s89, s5, {M_}"); a("s_lshr_b32 s89, s89, 10")
    a("s_add_u32 s14, s5, 1"); a(f"s_mul_i32 s14, s14, {M_}"); a("s_lshr_b32 s14, s14, 10")
    a("s_sub_u32 s81, s14, s89"); a("s_lshl_b32 s81, s81, 4")
    a("s_lshl_b32 s89, s89, 13"); a("s_lshl_b32 s91, s4, 24"); a("s_add_u32 s89, s89, s91")
    a("s_lshl_b32 s91, s3, 13"); a("s_add_u32 s90, s89, s91"); a("s_add_u32 s91, s90, 4096")
    a(f"s_mov_b32 s10, {LOG2E:#x}"); a(f"s_mov_b32 s11, {SCALE:#x}")
    a("s_mov_b32 s12, 0x05040100"); a("s_mov_b32 s13, 0x07060302")
    for r in (6, 7, 8, 9): a(f"s_mov_b32 s{r}, 1")
    a("v_mov_b32 v5, 0")
    a("s_waitcnt lgkmcnt(0)")
    srd(44, 18, 0x8000000); srd(48, 20, 0x8000000)
    if stamp: srd(60, 40, 0x400000)
    stamp_init(); stamp_to(3)
    def tile_loads(slot):
        out = []
        for i in range(8):
            pre = [f"s_add_u32 m0, s87, {slot*8192 + (i>>2)*4096}"] if (i & 3) == 0 else []
            out.append(pre + [f"buffer_load_dwordx4 v{KX+(i&3)}, s[44:47], {'s90' if i < 4 else 's91'} offen offset:{1024*(i&3)}{KF} lds"])
        r = VR + 32 * slot
        for i in range(8):
            out.append([f"buffer_load_dwordx4 v[{r+4*i}:{r+4*i+3}], v{VV}, s[48:51], {'s90' if i < 4 else 's91'} offen offset:{1024*(i&3)}{VF}"])
        return out
    def req_ticket():
        setexec(2, 0)
        a(f"ds_add_rtn_u32 v{VTK}, v{VV}, v{VV} offset:{F_TK-16}")
        fullexec()
    seq = []
    for t in range(4):
        l = tile_loads(t)
        if t < 3: l[-1] = l[-1] + ["s_add_u32 s90, s90, 32768", "s_add_u32 s91, s91, 32768"]
        seq += l
    NL = 64; GRP = 4
    for i in range(Wp):
        for ins in seq[i]: a(ins)
        if i == cfg.get("nfirst", 2) - 1: a("s_setprio 0")
    stamp_to(1)
    a(f"v_mov_b32 v{VML}, 0xff800000"); a(f"v_mov_b32 v{VL}, 0")
    for r in range(OA, OA + 32): a(f"v_mov_b32 v{r}, 0")
    pos = list(range(Wp, NL, GRP))
    for p in pos:
        a(f"ds_read_b32 v6, v5 offset:{F_Q}")
        for i in range(p, min(p + GRP, NL)):
            if (i - p) % 2 == 0: a(f"s_waitcnt vmcnt({Wp-2})")
            for ins in seq[i]: a(ins)
        if p + GRP < NL:
            a("s_waitcnt lgkmcnt(0)")
            a("v_readfirstlane_b32 s14, v6")
            a("s_cmp_ge_u32 s14, 4")
            a(f"s_cbranch_scc1 L_U{p+GRP}")
    a("s_branch L_Pdone")
    for p in pos[1:]:
        a.label(f"L_U{p}")
        for i in range(p, min(p + GRP, NL)):
            for ins in seq[i]: a(ins)
    a.label("L_Pdone")
    stamp_to(12)
    lds_wait(F_Q, 4, 5, 6, 14, sleep=2)
    for j in range(4): a(f"ds_read_b128 v[{QF+4*j}:{QF+4*j+3}], v7 offset:{QL + 64*j}")
    req_ticket()
    stamp_to(8)
    a.label("L_Sloop")
    for slot in range(4):
        VB = VR + 32 * slot
        a(f"s_cmp_eq_u32 s{6+slot}, 0"); a("s_cbranch_scc1 L_Sdone")
        a("s_waitcnt vmcnt(56)")
        for j in range(4):
            for T in range(2):
                kr = KT + (T * 4 + j) * 4
                a(f"ds_read_b128 v[{kr}:{kr+3}], v{KA+j} offset:{slot*8192 + T*4096}")
        for j in range(4):
            a(f"s_waitcnt lgkmcnt({6-2*j})")
            for T in range(2):
                kr = KT + (T * 4 + j) * 4
                c = "0" if j == 0 else f"v[{D+4*T}:{D+4*T+3}]"
                a(f"v_mfma_f32_16x16x32_bf16 v[{D+4*T}:{D+4*T+3}], v[{kr}:{kr+3}], v[{QF+4*j}:{QF+4*j+3}], {c}")
        Li = a.newlabel("Lti"); Lk = a.newlabel("Ltk")
        a(f"v_readlane_b32 s14, v{VTK}, 1")
        a("s_lshl_b32 s15, s14, 9"); a("s_add_u32 s90, s89, s15")
        a("s_cmp_lt_u32 s14, s81")
        a(f"s_cselect_b32 s{6+slot}, 1, 0")
        a("s_add_u32 s91, s90, 4096")
        req_ticket()
        for i in range(0, 8, 2): bf16r2(D + i, D + i + 1, D + i, D + i + 1, T0 + (i // 2) % 3)
        for i in range(8): a(f"v_mul_f32 v{D+i}, s11, v{D+i}")
        for i in range(0, 8, 2): bf16r2(D + i, D + i + 1, D + i, D + i + 1, T0 + (i // 2) % 3)
        a(f"v_max3_f32 v{T0}, v{D}, v{D+1}, v{D+2}")
        a(f"v_max3_f32 v{T1}, v{D+3}, v{D+4}, v{D+5}")
        a(f"v_max3_f32 v{T0}, v{T0}, v{D+6}, v{D+7}")
        a(f"v_max_f32 v{T0}, v{T0}, v{T1}")
        a(f"v_mul_f32 v{T0}, s10, v{T0}")
        a(f"v_cmp_gt_f32 vcc, v{T0}, v{VML}")
        Ls = a.newlabel("Lnomax")
        a(f"s_cbranch_vccz {Ls}")
        bfly("v_max_f32", [T0], [T1], 16)
        bfly("v_max_f32", [T0], [T1], 32)
        a(f"v_ceil_f32 v{T0}, v{T0}")
        a(f"v_max_f32 v{T0}, v{T0}, v{VML}")
        a(f"v_sub_f32 v{T1}, v{VML}, v{T0}")
        a(f"v_exp_f32 v{T1}, v{T1}")
        a(f"v_mov_b32 v{VML}, v{T0}")
        a(f"v_mul_f32 v{VL}, v{VL}, v{T1}")
        for r in range(OA, OA + 32): a(f"v_mul_f32 v{r}, v{r}, v{T1}")
        a.label(Ls)
        for i in range(8): a(f"v_fma_f32 v{D+i}, v{D+i}, s10, -v{VML}")
        for i in range(8): a(f"v_exp_f32 v{D+i}, v{D+i}")
        a(f"v_add_f32 v{T0}, v{D}, v{D+1}"); a(f"v_add_f32 v{T1}, v{D+2}, v{D+3}"); a(f"v_add_f32 v{T2}, v{D+4}, v{D+5}")
        a(f"v_add_f32 v{VL}, v{VL}, v{D+6}"); a(f"v_add_f32 v{T0}, v{T0}, v{T1}"); a(f"v_add_f32 v{T2}, v{T2}, v{D+7}")
        a(f"v_add_f32 v{VL}, v{VL}, v{T0}"); a(f"v_add_f32 v{VL}, v{VL}, v{T2}")
        for q in range(4): a(f"v_cvt_pk_bf16_f32 v{D+q}, v{D+2*q}, v{D+2*q+1}")
        a("s_waitcnt vmcnt(48)")
        for t in range(8):
            u = t >> 1; sel = "s12" if (t & 1) == 0 else "s13"
            for q in range(4):
                a(f"v_perm_b32 v{KT+4*t+q}, v{VB+4*(2*q+1)+u}, v{VB+4*(2*q)+u}, {sel}")
            if t >= 1:
                tt = t - 1
                a(f"v_mfma_f32_16x16x32_bf16 v[{OA+4*tt}:{OA+4*tt+3}], v[{KT+4*tt}:{KT+4*tt+3}], v[{D}:{D+3}], v[{OA+4*tt}:{OA+4*tt+3}]")
        tt = 7
        a(f"v_mfma_f32_16x16x32_bf16 v[{OA+4*tt}:{OA+4*tt+3}], v[{KT+4*tt}:{KT+4*tt+3}], v[{D}:{D+3}], v[{OA+4*tt}:{OA+4*tt+3}]")
        a(f"s_cmp_eq_u32 s{6+slot}, 0"); a(f"s_cbranch_scc0 {Li}")
        a("s_waitcnt vmcnt(0)")
        a(f"s_branch {Lk}")
        a.label(Li)
        if cfg.get("sw"): a(f"s_waitcnt vmcnt({cfg['sw']})")
        for l in tile_loads(slot):
            for ins in l: a(ins)
        a.label(Lk)
    a("s_branch L_Sloop")
    a.label("L_Sdone")
    stamp_to(5)
    bfly("v_add_f32", [VL], [T0], 16)
    bfly("v_add_f32", [VL], [T0], 32)
    a(f"v_lshrrev_b32 v{T0}, 4, v{VV}")
    a(f"v_and_b32 v{T1}, 15, v{T0}"); a(f"v_lshrrev_b32 v{T2}, 4, v{T0}")
    a(f"v_lshlrev_b32 v{D}, 9, v{T1}"); a(f"v_lshl_add_u32 v{D}, v{T2}, 4, v{D}")
    a("s_lshl_b32 s14, s3, 11"); a(f"v_add_u32 v{D}, s14, v{D}")
    a(f"v_lshlrev_b32 v{D+1}, 5, v{T1}"); a("s_lshl_b32 s14, s3, 3"); a(f"v_add_u32 v{D+1}, s14, v{D+1}")
    a(f"v_mov_b32 v6, v{VML}"); a(f"v_mov_b32 v7, v{VL}")
    setexec("0x000f000f", "0x000f000f")
    for t in range(8): a(f"ds_write_b128 v{D}, v[{OA+4*t}:{OA+4*t+3}] offset:{SP + 64*t}")
    setexec("0xf", "0")
    a(f"ds_write_b64 v{D+1}, v[6:7] offset:{ML}")
    fullexec()
    a(f"v_mov_b32 v{T0}, 0"); a(f"v_mov_b32 v4, 1")
    lds_signal(F_SP, T0, 4)
    a("s_branch L_end")

    a.label("L_T")
    a("s_setprio 2")
    VZ, VONE = 2, 3
    TA = 80; TB = 81
    a("v_mov_b32 v3, 1")
    a(f"s_cmp_ge_u32 s2, {NSP*8}"); a("s_cbranch_scc1 L_TW")
    G = 20
    a("s_lshl_b32 s85, s4, 2"); a("s_add_u32 s85, s85, s3")
    a(f"s_mul_i32 s98, s85, {2*QS}"); a(f"s_add_u32 s98, s98, {QP}")
    a(f"s_mul_i32 s85, s85, {NSP}"); a("s_add_u32 s85, s85, s5"); a("s_mul_i32 s85, s85, 640"); a(f"s_add_u32 s85, s85, {R1}")
    for r in range(8, 12): a(f"v_mov_b32 v{r}, -1")
    a("v_lshlrev_b32 v18, 2, v0"); a("s_lshl_b32 s12, s3, 8"); a("v_add_u32 v18, s12, v18")
    a("v_lshrrev_b32 v17, 5, v0"); a("v_and_b32 v7, 31, v0"); a("v_lshlrev_b32 v7, 4, v7"); a("v_lshl_add_u32 v7, v17, 11, v7")
    a("s_lshl_b32 s12, s3, 9"); a("v_add_u32 v7, s12, v7")
    a("s_lshl_b32 s12, s3, 5"); a("v_mov_b32 v19, s12")
    a("s_waitcnt lgkmcnt(0)")
    a(f"s_load_dword s42, s[40:41], {EPOCH}")
    srd(60, 40, 0x400000 if stamp else WS_END); srd(64, 38, 256)
    stamp_init()
    if cfg.get("tdummy"):
        a("v_mov_b32 v5, 0x3c003c00"); a(f"ds_write_b32 v18, v5 offset:{QL}")
        lds_signal(F_Q, VZ, VONE); a("s_branch L_exit")
    if cfg.get("ldelay", 40): a(f"s_sleep {cfg.get('ldelay', 40)}")
    setexec(-1, 0)
    a("buffer_store_dwordx4 v[8:11], v1, s[60:63], s85 offen sc1")
    setexec(1, 0)
    a("buffer_store_dword v8, v1, s[60:63], s85 offen offset:512 sc1")
    fullexec()
    a("s_waitcnt lgkmcnt(0)")
    make_tag()
    for _ in range(cfg.get("qdelay_n", 1)): a(f"s_sleep {cfg.get('qdelay', 60)}")
    items = []
    for i in range(2):
        def ld(i=i): a(f"buffer_load_dwordx4 v[{G+4*i}:{G+4*i+3}], v1, s[60:63], s98 offen offset:{QS*i} sc1")
        items.append((ld, "tag", [G + 4 * i]))
    sel_gather(items, "Q", cfg.get("qsleep", 12))
    a(f"v_pk_add_f32 v[{G}:{G+1}], v[{G}:{G+1}], v[{G+4}:{G+5}]")
    a(f"v_cvt_pk_bf16_f32 v{G+4}, v{G}, v{G+1}")
    a(f"ds_write_b32 v18, v{G+4} offset:{QL}")
    lds_signal(F_Q, VZ, VONE)
    stamp_to(4)
    arrive(VZ, VONE, TA)
    a("v_cmp_le_u32 s[80:81], 32, v0")
    a("s_setprio 0")
    lds_wait(F_SP, 4, VZ, TA, 14, sleep=cfg.get("spsleep", 1))
    a("s_setprio 3")
    stamp_to(5)
    MLR = 20; OA_ = 28; OB_ = 32
    a(f"ds_read_b128 v[{MLR}:{MLR+3}], v19 offset:{ML}")
    a(f"ds_read_b128 v[{MLR+4}:{MLR+7}], v19 offset:{ML+16}")
    a(f"ds_read_b128 v[{OA_}:{OA_+3}], v7 offset:{SP}")
    a(f"ds_read_b128 v[{OB_}:{OB_+3}], v7 offset:{SP+4096}")
    a("s_waitcnt lgkmcnt(2)")
    a(f"v_max3_f32 v36, v{MLR}, v{MLR+2}, v{MLR+4}"); a(f"v_max_f32 v36, v36, v{MLR+6}")
    for w in range(4): a(f"v_sub_f32 v{MLR+2*w}, v{MLR+2*w}, v36")
    for w in range(4): a(f"v_exp_f32 v{MLR+2*w}, v{MLR+2*w}")
    a(f"v_mul_f32 v37, v{MLR}, v{MLR+1}")
    for w in range(1, 4): a(f"v_fmac_f32 v37, v{MLR+2*w}, v{MLR+2*w+1}")
    a(f"v_cndmask_b32 v38, v{MLR}, v{MLR+2}, s[80:81]")
    a(f"v_cndmask_b32 v39, v{MLR+4}, v{MLR+6}, s[80:81]")
    a("v_rcp_f32 v40, v37"); a("v_log_f32 v41, v37")
    a("s_waitcnt lgkmcnt(0)")
    a("v_mul_f32 v38, v38, v40"); a("v_mul_f32 v39, v39, v40")
    a("v_add_f32 v41, v41, v36")
    for k in range(4): a(f"v_mul_f32 v{OA_+k}, v{OA_+k}, v38")
    for k in range(4): a(f"v_fmac_f32 v{OA_+k}, v{OB_+k}, v39")
    bfly("v_add_f32", [OA_, OA_ + 1, OA_ + 2, OA_ + 3], [OB_, OB_ + 1, OB_ + 2, OB_ + 3], 32)
    setexec(-1, 0)
    a(f"buffer_store_dwordx4 v[{OA_}:{OA_+3}], v1, s[60:63], s85 offen sc1")
    setexec(1, 0)
    a("buffer_store_dword v41, v2, s[60:63], s85 offen offset:512 sc1")
    fullexec()
    stamp_to(6)
    a("s_branch L_end")

    a.label("L_TW")
    if cfg.get("tdummy"): a("s_branch L_exit")
    XA = 8; CC = 12; XJ = 16; GW = 20; GA = 52; XQ = 56; CB1 = 60; SBV = 64
    XV = 70; MEAN = 78; RDEN = 79; SC = 82; SCL = 90; XQR = 98; C2 = 100
    WOF = 104; GE = 104; W1F = 168; W2F = 200; WQ = 168; ACC = 232; GB = 240; C3 = 244
    a(f"s_sub_u32 s5, s2, {NSP*8}")
    a("s_lshr_b32 s6, s5, 3"); a("s_and_b32 s6, s6, 3"); a("s_lshl_b32 s7, s4, 2"); a("s_add_u32 s6, s6, s7")
    a("s_lshr_b32 s7, s5, 5")
    a("s_cmp_lt_u32 s5, 56"); a("s_cselect_b32 s8, 1, 0")
    a("s_and_b32 s10, s5, 15"); a("s_lshr_b32 s99, s5, 4"); a("s_lshl_b32 s99, s99, 2"); a("s_add_u32 s99, s99, s3")
    a("v_lshrrev_b32 v17, 3, v0"); a("v_and_b32 v18, 7, v0"); a("v_lshrrev_b32 v5, 4, v0"); a("v_and_b32 v19, 15, v0")
    a("v_lshlrev_b32 v4, 3, v17")
    a("v_mul_u32_u24 v68, 24576, v17"); a("v_lshl_add_u32 v68, v18, 4, v68")
    a("v_lshlrev_b32 v69, 4, v5"); a("v_lshl_add_u32 v69, v18, 6, v69")
    a("v_and_b32 v6, 31, v0"); a("v_lshlrev_b32 v6, 2, v6")
    a("v_lshlrev_b32 v7, 15, v5"); a("v_lshl_add_u32 v7, v19, 4, v7")
    a("s_lshl_b32 s12, s99, 6")
    a(f"s_mul_i32 s13, s99, {32*6144}"); a("s_lshl_b32 s14, s10, 7"); a("s_add_u32 s13, s13, s14")
    a("s_lshl_b32 s9, s7, 2"); a("s_add_u32 s9, s9, s3")
    a("s_lshl_b32 s14, s9, 7")
    a("s_lshl_b32 s15, s9, 19"); a("s_lshl_b32 s90, s6, 8"); a("s_add_u32 s15, s15, s90")
    a("s_waitcnt lgkmcnt(0)")
    a(f"s_load_dword s42, s[40:41], {EPOCH}")
    srd(48, 32, 1024); srd(52, 34, 512 * 6144)
    a(f"buffer_load_dwordx2 v[{CC}:{CC+1}], v4, s[48:51], s12 offen")
    for i in range(4):
        a(f"buffer_load_dwordx4 v[{GW+4*i}:{GW+4*i+3}], v68, s[52:55], s13 offen{WT}")
        if i < 3: a("s_add_u32 s13, s13, 6144")
    srd(44, 16, 1024)
    a(f"buffer_load_dwordx4 v[{XA}:{XA+3}], v1, s[44:47], 0 offen")
    a(f"buffer_load_dword v{XJ}, v6, s[44:47], s14 offen")
    srd(56, 22, 512 * 8192)
    for aa in range(4):
        for i in range(4):
            a(f"s_add_u32 s12, s15, {(16*aa + i) * 8192}")
            a(f"buffer_load_dwordx4 v[{WQ+16*aa+4*i}:{WQ+16*aa+4*i+3}], v7, s[56:59], s12 offen{WT}")
    srd(60, 40, 0x400000 if stamp else WS_END); srd(64, 38, 256)
    srd(68, 24, 4096 * 1024); srd(72, 28, 512 * 3584); srd(76, 30, 1792 * 1024)
    a("s_mov_b32 s90, s36"); a("s_mov_b32 s91, s37")
    stamp_init()
    a(f"s_mul_i32 s89, s10, {BS}"); a("s_lshl_b32 s12, s99, 9"); a("s_add_u32 s89, s89, s12"); a(f"s_add_u32 s89, s89, {MODP}")
    a(f"s_mul_i32 s86, s9, {BS}"); a(f"s_add_u32 s86, s86, {MODP}")
    a("s_lshl_b32 s84, s6, 1"); a("s_add_u32 s84, s84, s7"); a(f"s_mul_i32 s84, s84, {QS}")
    a("s_lshl_b32 s12, s3, 8"); a("s_add_u32 s84, s84, s12"); a(f"s_add_u32 s84, s84, {QP}")
    a("s_lshl_b32 s87, s6, 11"); a("s_lshl_b32 s13, s7, 10"); a("s_add_u32 s87, s87, s13")
    a("s_add_u32 s87, s87, s12"); a(f"s_add_u32 s87, s87, {YO}")
    a("s_lshl_b32 s88, s5, 11"); a("s_lshl_b32 s12, s3, 9"); a("s_add_u32 s88, s88, s12"); a(f"s_add_u32 s88, s88, {ZO}")
    def unit(csrc, wsrc, sdst, wait=None):
        for i in range(2): unpack(SC + 2 * i, SC + 2 * i + 1, csrc + i)
        silu_f32(SC, 4, SC + 4)
        for i in range(2): a(f"v_cvt_pk_bf16_f32 v{TA+i}, v{SC+2*i}, v{SC+2*i+1}")
        coef4(TA, SC, SCL)
        gemv_dot(ACC, wsrc, 4, SC, SCL, wait=wait)
        rscatter8(ACC)
        rowreduce("v_add_f32", [ACC, ACC + 1], [8])
        a(f"v_mov_b32 v{ACC+2}, s96"); a(f"v_mov_b32 v{ACC+3}, s97")
        setexec("0x00ff00ff", "0x00ff00ff")
        a(f"buffer_store_dwordx4 v[{ACC}:{ACC+3}], v69, s[60:63], {sdst} offen sc1")
        fullexec()
    a("s_waitcnt lgkmcnt(0)")
    make_tag()
    a("s_waitcnt vmcnt(22)")
    unit(CC, GW, "s89", wait=lambda i: a(f"s_waitcnt vmcnt({21-i})"))
    stamp_to(1)
    a("s_waitcnt vmcnt(17)")
    for i in range(4): unpack(XV + 2 * i, XV + 2 * i + 1, XA + i)
    a(f"v_readfirstlane_b32 s14, v{XV}")
    for i in range(8): a(f"v_subrev_f32 v{XV+i}, s14, v{XV+i}")
    a(f"v_add_f32 v{MEAN}, v{XV}, v{XV+1}"); a(f"v_mul_f32 v{RDEN}, v{XV}, v{XV}"); a(f"v_fmac_f32 v{RDEN}, v{XV+1}, v{XV+1}")
    for i in range(2, 8):
        a(f"v_add_f32 v{MEAN}, v{MEAN}, v{XV+i}"); a(f"v_fmac_f32 v{RDEN}, v{XV+i}, v{XV+i}")
    rowreduce("v_add_f32", [MEAN, RDEN], [1, 2, 4, 8])
    bfly("v_add_f32", [MEAN, RDEN], [TA, TB], 16)
    bfly("v_add_f32", [MEAN, RDEN], [TA, TB], 32)
    a(f"v_mul_f32 v{MEAN}, {f32bits(1/512):#x}, v{MEAN}")
    a(f"v_mul_f32 v{RDEN}, {f32bits(1/512):#x}, v{RDEN}")
    a(f"v_fma_f32 v{RDEN}, -v{MEAN}, v{MEAN}, v{RDEN}")
    a(f"v_add_f32 v{MEAN}, s14, v{MEAN}")
    ln_finish(MEAN, RDEN, TA)
    LN0 = CC; LN1 = CC + 1
    unpack(LN0, LN1, XJ)
    a(f"v_sub_f32 v{LN0}, v{LN0}, v{MEAN}"); a(f"v_sub_f32 v{LN1}, v{LN1}, v{MEAN}"); bf16rn(LN0, 2, TA)
    a(f"v_mul_f32 v{LN0}, v{LN0}, v{RDEN}"); a(f"v_mul_f32 v{LN1}, v{LN1}, v{RDEN}"); bf16rn(LN0, 2, TA)
    a("s_lshl_b32 s12, s3, 7"); a("v_add_u32 v6, s12, v6")
    a("v_lshl_add_u32 v4, v5, 3, s12")
    a("v_lshlrev_b32 v7, 5, v19"); a("v_lshl_add_u32 v7, v5, 3, v7")
    a("s_lshl_b32 s13, s3, 9"); a("v_add_u32 v7, s13, v7")
    a("v_lshl_add_u32 v16, v0, 3, s12")
    def block_reduce(sbase, Gb, dst, nmat, mstride, sleep, name):
        items = []
        for m in range(nmat):
            a(f"s_add_u32 s{44+2*m if False else 76+0}, s{sbase}, 0") if False else None
            a(f"s_add_u32 s{32+2*m}, s{sbase}, {m*mstride}"); a(f"s_add_u32 s{33+2*m}, s{32+2*m}, 4096")
            for k2 in range(4):
                def ld(m=m, k2=k2):
                    for k in (2 * k2, 2 * k2 + 1):
                        a(f"buffer_load_dwordx4 v[{Gb+32*m+4*k}:{Gb+32*m+4*k+3}], v1, s[60:63], s{32+2*m+(k>>2)} offen offset:{1024*(k&3)} sc1")
                items.append((ld, "tag", [Gb + 32 * m + 8 * k2, Gb + 32 * m + 8 * k2 + 4]))
        sel_gather(items, name, sleep)
        for m in range(nmat):
            for k in range(1, 8):
                a(f"v_pk_add_f32 v[{Gb+32*m}:{Gb+32*m+1}], v[{Gb+32*m}:{Gb+32*m+1}], v[{Gb+32*m+4*k}:{Gb+32*m+4*k+1}]")
        for m in range(nmat):
            a(f"v_mov_b32 v{dst+2*m}, v{Gb+32*m}"); a(f"v_mov_b32 v{dst+2*m+1}, v{Gb+32*m+1}")
        bfly("v_add_f32", list(range(dst, dst + 2 * nmat)), list(range(Gb + 8, Gb + 8 + 2 * nmat)), 32)
    if cfg.get("adelay", 8): a(f"s_sleep {cfg.get('adelay', 8)}")
    block_reduce(86, GE, XV, 2, 8 * BS, cfg.get("asleep", 4), "A")
    stamp_to(13)
    bf16rn(XV, 4, GE + 4)
    a(f"v_add_f32 v{XV+2}, 1.0, v{XV+2}"); a(f"v_add_f32 v{XV+3}, 1.0, v{XV+3}"); bf16rn(XV + 2, 2, GE + 4)
    a(f"v_mul_f32 v{XV+2}, v{LN0}, v{XV+2}"); a(f"v_mul_f32 v{XV+3}, v{LN1}, v{XV+3}"); bf16rn(XV + 2, 2, GE + 4)
    a(f"v_add_f32 v{XV}, v{XV+2}, v{XV}"); a(f"v_add_f32 v{XV+1}, v{XV+3}, v{XV+1}")
    a(f"v_cvt_pk_bf16_f32 v{GE+4}, v{XV}, v{XV+1}")
    setexec(-1, 0)
    a(f"ds_write_b32 v6, v{GE+4} offset:{HLD}")
    fullexec()
    for aa in range(4): a(f"ds_read_b64 v[{GE+8+2*aa}:{GE+9+2*aa}], v4 offset:{HLD + 32*aa}")
    for aa in range(4):
        a(f"s_waitcnt lgkmcnt({3-aa})")
        coef4(GE + 8 + 2 * aa, GE + 16 + 8 * aa, GE + 20 + 8 * aa)
        gemv_dot(ACC, WQ + 16 * aa, 4, GE + 16 + 8 * aa, GE + 20 + 8 * aa, first=(aa == 0))
    rscatter8(ACC)
    a(f"ds_write_b64 v7, v[{ACC}:{ACC+1}] offset:{QR}")
    lds_signal(F_QR, VZ, VONE)
    a(f"v_mov_b32 v{ACC+2}, s96"); a(f"v_mov_b32 v{ACC+3}, s97")
    lds_wait(F_QR, 4, VZ, TA, 14, sleep=0)
    setexec("0xffff", 0)
    for w in range(4): a(f"ds_read_b64 v[{GE+2*w}:{GE+2*w+1}], v16 offset:{QR + 512*w}")
    a("s_waitcnt lgkmcnt(0)")
    a(f"v_pk_add_f32 v[{GE}:{GE+1}], v[{GE}:{GE+1}], v[{GE+2}:{GE+3}]")
    a(f"v_pk_add_f32 v[{GE+4}:{GE+5}], v[{GE+4}:{GE+5}], v[{GE+6}:{GE+7}]")
    a(f"v_pk_add_f32 v[{ACC}:{ACC+1}], v[{GE}:{GE+1}], v[{GE+4}:{GE+5}]")
    a(f"buffer_store_dwordx4 v[{ACC}:{ACC+3}], v1, s[60:63], s84 offen sc1")
    fullexec()
    stamp_to(2)
    if cfg.get("stop") == "q": a("s_branch L_exit")
    a("v_lshlrev_b32 v4, 3, v17")
    a("s_lshl_b32 s12, s5, 2"); a("s_add_u32 s12, s12, s3")
    a("s_and_b32 s10, s12, 31"); a("s_add_u32 s10, s10, 16"); a("s_lshr_b32 s99, s12, 5")
    a("s_lshl_b32 s12, s99, 6")
    a(f"s_mul_i32 s13, s99, {32*6144}"); a("s_lshl_b32 s14, s10, 7"); a("s_add_u32 s13, s13, s14")
    a(f"buffer_load_dwordx2 v[{C2}:{C2+1}], v4, s[48:51], s12 offen")
    a(f"buffer_load_dwordx2 v[{C3}:{C3+1}], v4, s[48:51], s12 offen offset:512")
    for hf in range(2):
        for i in range(4):
            a(f"s_add_u32 s12, s13, {hf*256*6144 + i*6144}")
            a(f"buffer_load_dwordx4 v[{GW+16*hf+4*i}:{GW+16*hf+4*i+3}], v68, s[52:55], s12 offen{WT}")
    a(f"s_mul_i32 s89, s10, {BS}"); a("s_lshl_b32 s12, s99, 9"); a("s_add_u32 s89, s89, s12"); a(f"s_add_u32 s89, s89, {MODP}")
    a("s_add_u32 s99, s89, 4096")
    a("v_lshlrev_b32 v18, 4, v18")
    a("v_lshl_add_u32 v4, v17, 13, v18")
    a("v_lshl_add_u32 v6, v17, 10, v18")
    a("s_lshl_b32 s12, s6, 17"); a("s_lshl_b32 s13, s7, 9"); a("s_add_u32 s12, s12, s13")
    a("s_lshl_b32 s13, s3, 7"); a("s_add_u32 s12, s12, s13")
    for ks in range(4):
        for i in range(4):
            a(f"s_add_u32 s13, s12, {(64*(i&1) + (i>>1) + 2*ks) * 1024}")
            a(f"buffer_load_dwordx4 v[{WOF+16*ks+4*i}:{WOF+16*ks+4*i+3}], v4, s[68:71], s13 offen{WT}")
    a("s_cmp_eq_u32 s8, 0"); a("s_cbranch_scc1 L_xnotM")
    a("v_lshrrev_b32 v7, 2, v0"); a("v_mul_u32_u24 v7, 3584, v7")
    a("v_and_b32 v16, 3, v0"); a("v_lshl_add_u32 v7, v16, 4, v7")
    a(f"s_mul_i32 s12, s3, {128*3584}"); a("s_lshl_b32 s13, s5, 6"); a("s_add_u32 s12, s12, s13")
    for i in range(8):
        a(f"buffer_load_dwordx4 v[{W1F+4*i}:{W1F+4*i+3}], v7, s[72:75], s12 offen{WT}")
        if i < 7: a(f"s_add_u32 s12, s12, {16*3584}")
    a("s_lshl_b32 s12, s5, 15"); a("s_lshl_b32 s13, s3, 8"); a("s_add_u32 s12, s12, s13")
    for hh in range(2):
        for i in range(4):
            a(f"s_add_u32 s13, s12, {8192*i}")
            a(f"buffer_load_dwordx4 v[{W2F+16*hh+4*i}:{W2F+16*hh+4*i+3}], v6, s[76:79], s13 offen offset:{128*hh}{WT}")
    a("v_and_b32 v7, 31, v0"); a("v_lshlrev_b32 v7, 3, v7"); a("s_lshl_b32 s12, s3, 8")
    a(f"buffer_load_dwordx2 v[{XQR}:{XQR+1}], v7, s[44:47], s12 offen")
    a.label("L_xnotM")
    for r in range(8, 12): a(f"v_mov_b32 v{r}, -1")
    setexec("0xffff", 0)
    a("buffer_store_dwordx4 v[8:11], v1, s[60:63], s87 offen sc1")
    a("s_cmp_eq_u32 s8, 0"); a("s_cbranch_scc1 L_nz")
    setexec(-1, 0)
    a("buffer_store_dwordx4 v[8:11], v1, s[60:63], s88 offen sc1")
    a.label("L_nz")
    fullexec()
    a("s_waitcnt vmcnt(0)")
    unit(C2, GW, "s89")
    unit(C3, GW + 16, "s99")
    a("s_lshl_b32 s12, s3, 12")
    a("v_add_u32 v19, s12, v1")
    a("v_lshrrev_b32 v17, 4, v0"); a("v_and_b32 v18, 15, v0"); a("v_lshl_add_u32 v18, v18, 1, s12")
    a("v_lshl_add_u32 v4, v17, 10, v18"); a("v_lshl_add_u32 v5, v17, 9, v18")
    a("v_lshlrev_b32 v17, 4, v17")
    a("s_waitcnt vmcnt(0)")
    if cfg.get("stop") == "ld": a("s_branch L_exit")
    arrive(VZ, VONE, TA)
    def transpose4(dst, rb):
        for q in range(4): a(f"ds_write_b128 v19, v[{dst+4*q}:{dst+4*q+3}] offset:{STG + 1024*q}")
        for f in range(4):
            for e in range(8):
                if rb == 128: off = e * 128 + f * 32; vb = 4
                else: off = (f >> 1) * 2048 + e * 64 + (f & 1) * 32; vb = 5
                a(f"ds_read_u16 v{GW+8*f+e}, v{vb} offset:{STG + off}")
        a("s_waitcnt lgkmcnt(0)")
        for f in range(4):
            for q in range(4): a(f"v_lshl_or_b32 v{dst+4*f+q}, v{GW+8*f+2*q+1}, 16, v{GW+8*f+2*q}")
    for cb in range(4): transpose4(WOF + 16 * cb, 128)
    a("s_cmp_eq_u32 s8, 0"); a("s_cbranch_scc1 L_notM05")
    transpose4(W1F, 64); transpose4(W1F + 16, 64)
    transpose4(W2F, 128); transpose4(W2F + 16, 128)
    a.label("L_notM05")
    a("s_cmp_ge_u32 s5, 32"); a("s_cbranch_scc1 L_nored")
    a("s_cmp_lg_u32 s3, 1"); a("s_cbranch_scc1 L_nored")
    a("s_add_u32 s14, s5, 16"); a(f"s_mul_i32 s86, s14, {BS}"); a(f"s_add_u32 s86, s86, {MODP}")
    a(f"s_mul_i32 s89, s14, 640"); a(f"s_add_u32 s89, s89, {MODF}")
    block_reduce(86, GW, ACC, 1, 0, 8, "R")
    bf16rn(ACC, 2, GW + 4)
    a(f"v_mov_b32 v{ACC+2}, s96"); a(f"v_mov_b32 v{ACC+3}, s97")
    setexec(-1, 0)
    a(f"buffer_store_dwordx4 v[{ACC}:{ACC+3}], v1, s[60:63], s89 offen sc1")
    fullexec()
    a.label("L_nored")
    a("s_cmp_lg_u32 s3, 0"); a("s_cbranch_scc1 L_gow")
    a(f"s_mov_b32 s15, {TMO}")
    setexec(1, 0)
    a.label("L_go")
    a(f"s_sleep {cfg.get('gosleep', 64)}")
    a(f"buffer_load_dword v{TA}, v{VZ}, s[64:67], 0 offen offset:128 sc1")
    a("s_sub_u32 s15, s15, 1"); a("s_cbranch_scc1 L_end")
    a("s_waitcnt vmcnt(0)")
    a(f"v_readfirstlane_b32 s14, v{TA}")
    a("s_cmp_eq_u32 s14, 0"); a("s_cbranch_scc1 L_go")
    a(f"ds_add_u32 v{VZ}, v{VONE} offset:{F_GO}")
    fullexec()
    a.label("L_gow")
    lds_wait(F_GO, 1, VZ, TA, 14, sleep=8)
    stamp_to(3)
    a("s_cmp_eq_u32 s8, 0"); a("s_cbranch_scc1 L_notM1")
    unpack(XQ, XQ + 1, XQR); unpack(XQ + 2, XQ + 3, XQR + 1)
    a("v_and_b32 v4, 15, v0"); a("v_lshlrev_b32 v4, 5, v4"); a("v_bfe_u32 v6, v0, 4, 1"); a("v_mul_u32_u24 v6, 640, v6"); a("v_add_u32 v4, v4, v6")
    a("v_and_b32 v6, 3, v0"); a("v_lshlrev_b32 v6, 5, v6")
    a(f"s_mul_i32 s32, s3, 1280"); a(f"s_add_u32 s32, s32, {MODF + 16*640}")
    a(f"s_add_u32 s33, s32, {8*640}"); a(f"s_add_u32 s34, s32, {16*640}")
    a(f"s_mul_i32 s35, s4, 640"); a("s_lshl_b32 s12, s3, 7"); a("s_add_u32 s35, s35, s12"); a(f"s_add_u32 s35, s35, {MODF + 40*640}")
    items = []
    for k in range(4):
        def ld(k=k):
            va = 4 if k < 3 else 6
            a(f"buffer_load_dwordx4 v[{GW+8*k}:{GW+8*k+3}], v{va}, s[60:63], s{32+k} offen sc1")
            a(f"buffer_load_dwordx4 v[{GW+8*k+4}:{GW+8*k+7}], v{va}, s[60:63], s{32+k} offen offset:16 sc1")
        items.append((ld, "tag", [GW + 8 * k, GW + 8 * k + 4]))
    sel_gather(items, "MF", 16)
    for k, dst in enumerate((GA, SBV, CB1, GB)):
        a(f"v_mov_b32 v{dst}, v{GW+8*k}"); a(f"v_mov_b32 v{dst+1}, v{GW+8*k+1}")
        a(f"v_mov_b32 v{dst+2}, v{GW+8*k+4}"); a(f"v_mov_b32 v{dst+3}, v{GW+8*k+5}")
    for i in range(4): a(f"v_add_f32 v{CB1+i}, 1.0, v{CB1+i}")
    bf16rn(CB1, 4, TA)
    a.label("L_notM1")
    stamp_to(8)
    if cfg.get("stop") == "t1": a("s_branch L_exit")
    a("v_lshrrev_b32 v18, 5, v0"); a("v_and_b32 v7, 31, v0"); a("v_lshlrev_b32 v7, 4, v7"); a("v_lshl_add_u32 v7, v18, 11, v7")
    a("v_lshrrev_b32 v8, 3, v0"); a("v_mul_u32_u24 v9, 640, v8")
    a("v_and_b32 v10, 7, v0"); a("v_lshl_add_u32 v8, v10, 4, v9")
    a("s_lshl_b32 s13, s3, 7"); a("v_add_u32 v8, s13, v8")
    a("s_lshl_b32 s12, s3, 6"); a("v_lshl_add_u32 v10, v0, 3, s12")
    a("v_add_u32 v11, s12, v17")
    a("v_and_b32 v12, 15, v0"); a("v_lshl_add_u32 v12, v12, 6, v17")
    a("s_lshl_b32 s12, s3, 8"); a("v_add_u32 v13, s12, v1")
    a("v_add_u32 v6, s12, v17")
    a("v_lshl_add_u32 v14, v0, 3, s12")
    a("s_lshl_b32 s12, s3, 3"); a("v_mov_b32 v15, s12")
    a("s_lshl_b32 s12, s3, 7"); a("v_add_u32 v16, s12, v17")
    a("v_lshlrev_b32 v4, 1, v17")
    a(f"s_mul_i32 s32, s6, {NSP*640}"); a(f"s_add_u32 s32, s32, {R1}")
    a(f"s_add_u32 s33, s32, {8*640}"); a(f"s_add_u32 s34, s32, {16*640}")
    a("s_lshl_b32 s56, s3, 9"); a(f"s_add_u32 s56, s56, {YO}")
    a("s_lshl_b32 s57, s4, 8"); a("s_lshl_b32 s13, s3, 6"); a("s_add_u32 s57, s57, s13"); a(f"s_add_u32 s57, s57, {ZO}")
    for _ in range(cfg.get("wdelay_n", 5)): a("s_sleep 127")
    G = GW; LS = GW + 12
    items = []
    for i in range(3):
        def ld(i=i):
            a(f"buffer_load_dwordx4 v[{G+4*i}:{G+4*i+3}], v8, s[60:63], s{32+i} offen sc1")
            a(f"buffer_load_dword v{LS+i}, v9, s[60:63], s{32+i} offen offset:512 sc1")
        items.append((ld, "sent", [G + 4 * i, G + 4 * i + 1, G + 4 * i + 2, G + 4 * i + 3, LS + i]))
    sel_gather(items, "W", cfg.get("wsleep", 0), chk=TA, sleep_all=cfg.get("wsleep_all", 24))
    stamp_to(6)
    MX = G + 16; MT = G + 17
    a(f"v_max3_f32 v{MX}, v{LS}, v{LS+1}, v{LS+2}")
    rowreduce("v_max_f32", [MX], [8])
    bfly("v_max_f32", [MX], [MT], 16); bfly("v_max_f32", [MX], [MT], 32)
    for i in range(3): a(f"v_sub_f32 v{LS+i}, v{LS+i}, v{MX}")
    for i in range(3): a(f"v_exp_f32 v{LS+i}, v{LS+i}")
    for k in range(4): a(f"v_mul_f32 v{G+k}, v{G+k}, v{LS}")
    for i in range(1, 3):
        for k in range(4): a(f"v_fmac_f32 v{G+k}, v{G+4*i+k}, v{LS+i}")
    a(f"v_add_f32 v{G+4}, v{LS}, v{LS+1}"); a(f"v_add_f32 v{G+4}, v{G+4}, v{LS+2}")
    five = [G, G + 1, G + 2, G + 3, G + 4]; five_t = [G + 8, G + 9, G + 10, G + 11, G + 12]
    rowreduce("v_add_f32", five, [8])
    bfly("v_add_f32", five, five_t, 16); bfly("v_add_f32", five, five_t, 32)
    a(f"v_rcp_f32 v{G+4}, v{G+4}")
    for k in range(4): a(f"v_mul_f32 v{G+k}, v{G+k}, v{G+4}")
    a(f"v_cvt_pk_bf16_f32 v{G+6}, v{G}, v{G+1}"); a(f"v_cvt_pk_bf16_f32 v{G+7}, v{G+2}, v{G+3}")
    setexec("0xff", 0)
    a(f"ds_write_b64 v10, v[{G+6}:{G+7}] offset:{OL}")
    fullexec()
    lds_signal(F_O, VZ, VONE)
    lds_wait(F_O, 4, VZ, TA, 14, sleep=0)
    for ks in range(4): a(f"ds_read_b128 v[{G+16+4*ks}:{G+19+4*ks}], v17 offset:{OL + 64*ks}")
    for ks in range(4):
        a(f"s_waitcnt lgkmcnt({3-ks})")
        for ct in range(4):
            c = "0" if ks == 0 else f"v[{G+4*ct}:{G+4*ct+3}]"
            f = WOF + 16 * ks + 4 * ct
            a(f"v_mfma_f32_16x16x32_bf16 v[{G+4*ct}:{G+4*ct+3}], v[{f}:{f+3}], v[{G+16+4*ks}:{G+19+4*ks}], {c}")
    if cfg.get("yfull", True):
        for ct in range(1, 4):
            m = f"{(1 << ct) | (1 << (16 + ct)):#x}"
            setexec(m, m)
            for k in (0, 2): a(f"v_pk_mov_b32 v[{G+k}:{G+k+1}], v[{G+4*ct+k}:{G+4*ct+k+1}], v[{G+4*ct+k}:{G+4*ct+k+1}] op_sel:[0,1]")
        setexec("0x000f000f", "0x000f000f")
        a(f"buffer_store_dwordx4 v[{G}:{G+3}], v12, s[60:63], s87 offen sc1")
        fullexec()
    else:
        setexec("0x00010001", "0x00010001")
        for ct in range(4):
            a(f"buffer_store_dwordx4 v[{G+4*ct}:{G+4*ct+3}], v17, s[60:63], s87 offen offset:{64*ct} sc1")
        fullexec()
    stamp_to(7)
    a("s_cmp_eq_u32 s8, 0"); a("s_cbranch_scc1 L_end")
    G = GE
    items = []
    for i in range(16):
        def ld(i=i):
            a(f"s_add_u32 s12, s56, {4096*i}")
            a(f"buffer_load_dwordx4 v[{G+4*i}:{G+4*i+3}], v7, s[60:63], s12 offen sc1")
        items.append((ld, "sent", [G + 4 * i + k for k in range(4)]))
    sel_gather(items, "Y", cfg.get("ysleep", 0), chk=TA, sleep_all=cfg.get("ysleep_all", 0))
    pk_sum_quads(G, 16)
    stamp_to(9)
    bfly("v_add_f32", [G, G + 1, G + 2, G + 3], [G + 4, G + 5, G + 6, G + 7], 32)
    bf16rn(G, 4, G + 4)
    for k in range(4): a(f"v_mul_f32 v{G+k}, v{G+k}, v{GA+k}")
    bf16rn(G, 4, G + 4)
    for k in range(4): a(f"v_add_f32 v{G+k}, v{G+k}, v{XQ+k}")
    a(f"v_cvt_pk_bf16_f32 v{G+4}, v{G}, v{G+1}"); a(f"v_cvt_pk_bf16_f32 v{G+5}, v{G+2}, v{G+3}")
    unpack(XV, XV + 1, G + 4); unpack(XV + 2, XV + 3, G + 5)
    setexec(-1, 0)
    a(f"ds_write_b64 v14, v[{G+4}:{G+5}] offset:{X1L}")
    fullexec()
    a(f"v_readfirstlane_b32 s14, v{XV}")
    for k in range(4): a(f"v_subrev_f32 v{G+k}, s14, v{XV+k}")
    S1 = G + 6; S2 = G + 7
    a(f"v_add_f32 v{S1}, v{G}, v{G+1}"); a(f"v_mul_f32 v{S2}, v{G}, v{G}"); a(f"v_fmac_f32 v{S2}, v{G+1}, v{G+1}")
    a(f"v_add_f32 v{S1}, v{S1}, v{G+2}"); a(f"v_fmac_f32 v{S2}, v{G+2}, v{G+2}")
    a(f"v_add_f32 v{S1}, v{S1}, v{G+3}"); a(f"v_fmac_f32 v{S2}, v{G+3}, v{G+3}")
    rowreduce("v_add_f32", [S1, S2], [1, 2, 4, 8])
    bfly("v_add_f32", [S1, S2], [G + 8, G + 9], 16)
    a(f"v_mul_f32 v{G+8}, {f32bits(1/128):#x}, v{S1}")
    a(f"v_fma_f32 v{S2}, -v{G+8}, v{S1}, v{S2}")
    a(f"v_add_f32 v{S1}, s14, v{G+8}")
    setexec(1, 0)
    a(f"ds_write_b64 v15, v[{S1}:{S2}] offset:{STL}")
    a("s_waitcnt lgkmcnt(0)")
    a(f"ds_add_u32 v{VZ}, v{VONE} offset:{F_X1}")
    fullexec()
    lds_wait(F_X1, 4, VZ, TA, 14, sleep=0)
    a(f"ds_read_b128 v[{G}:{G+3}], v{VZ} offset:{STL}")
    a(f"ds_read_b128 v[{G+4}:{G+7}], v{VZ} offset:{STL+16}")
    a("s_waitcnt lgkmcnt(0)")
    a(f"v_add_f32 v{MEAN}, v{G}, v{G+2}"); a(f"v_add_f32 v{TA}, v{G+4}, v{G+6}")
    a(f"v_add_f32 v{RDEN}, v{G+1}, v{G+3}"); a(f"v_add_f32 v{TB}, v{G+5}, v{G+7}")
    a(f"v_add_f32 v{MEAN}, v{MEAN}, v{TA}"); a(f"v_add_f32 v{RDEN}, v{RDEN}, v{TB}")
    a(f"v_mul_f32 v{MEAN}, {f32bits(0.25):#x}, v{MEAN}")
    for w in range(4): a(f"v_sub_f32 v{G+2*w}, v{G+2*w}, v{MEAN}")
    a(f"v_mul_f32 v{TA}, v{G}, v{G}"); a(f"v_mul_f32 v{TB}, v{G+2}, v{G+2}")
    a(f"v_fmac_f32 v{TA}, v{G+4}, v{G+4}"); a(f"v_fmac_f32 v{TB}, v{G+6}, v{G+6}")
    a(f"v_add_f32 v{TA}, v{TA}, v{TB}")
    a(f"v_mul_f32 v{RDEN}, {f32bits(1/512):#x}, v{RDEN}")
    a(f"v_fmac_f32 v{RDEN}, {f32bits(0.25):#x}, v{TA}")
    ln_finish(MEAN, RDEN, TA)
    for i in range(4): a(f"v_sub_f32 v{XV+i}, v{XV+i}, v{MEAN}")
    bf16rn(XV, 4, G)
    for i in range(4): a(f"v_mul_f32 v{XV+i}, v{XV+i}, v{RDEN}")
    bf16rn(XV, 4, G)
    for i in range(4): a(f"v_mul_f32 v{XV+i}, v{XV+i}, v{CB1+i}")
    bf16rn(XV, 4, G)
    for i in range(4): a(f"v_add_f32 v{XV+i}, v{XV+i}, v{SBV+i}")
    a(f"v_cvt_pk_bf16_f32 v{G}, v{XV}, v{XV+1}"); a(f"v_cvt_pk_bf16_f32 v{G+1}, v{XV+2}, v{XV+3}")
    setexec(-1, 0)
    a(f"ds_write_b64 v14, v[{G}:{G+1}] offset:{H2L}")
    fullexec()
    for ks in range(4): a(f"ds_read_b128 v[{G+16+4*ks}:{G+19+4*ks}], v6 offset:{H2L + 64*ks}")
    for ks in range(4):
        a(f"s_waitcnt lgkmcnt({3-ks})")
        for ct in range(2):
            acc = G + 4 + 4 * ct
            c = "0" if ks == 0 else f"v[{acc}:{acc+3}]"
            f = W1F + 4 * (2 * ks + ct)
            a(f"v_mfma_f32_16x16x32_bf16 v[{acc}:{acc+3}], v[{f}:{f+3}], v[{G+16+4*ks}:{G+19+4*ks}], {c}")
    setexec("0x00010001", "0x00010001")
    a(f"ds_write_b128 v16, v[{G+4}:{G+7}] offset:{A1L}")
    a(f"ds_write_b128 v16, v[{G+8}:{G+11}] offset:{A1L+64}")
    lds_signal(F_A1, VZ, VONE)
    lds_wait(F_A1, 4, VZ, TA, 14, sleep=0)
    for w in range(4):
        a(f"ds_read_b128 v[{G+8*w}:{G+8*w+3}], v4 offset:{A1L + 128*w}")
        a(f"ds_read_b128 v[{G+8*w+4}:{G+8*w+7}], v4 offset:{A1L + 128*w + 16}")
    a("s_waitcnt lgkmcnt(4)")
    for i in range(0, 8, 2): a(f"v_pk_add_f32 v[{G+i}:{G+i+1}], v[{G+i}:{G+i+1}], v[{G+8+i}:{G+9+i}]")
    a("s_waitcnt lgkmcnt(0)")
    for i in range(0, 8, 2): a(f"v_pk_add_f32 v[{G+16+i}:{G+17+i}], v[{G+16+i}:{G+17+i}], v[{G+24+i}:{G+25+i}]")
    for i in range(0, 8, 2): a(f"v_pk_add_f32 v[{G+i}:{G+i+1}], v[{G+i}:{G+i+1}], v[{G+16+i}:{G+17+i}]")
    bf16rn(G, 8, G + 8)
    silu_f32(G, 8, G + 8)
    for i in range(4): a(f"v_cvt_pk_bf16_f32 v{G+16+i}, v{G+2*i}, v{G+2*i+1}")
    ZD = G + 20
    for u in range(8):
        a(f"v_mfma_f32_16x16x32_bf16 v[{ZD+4*u}:{ZD+4*u+3}], v[{W2F+4*u}:{W2F+4*u+3}], v[{G+16}:{G+19}], 0")
    if cfg.get("zfull", True):
        for u in range(1, 8):
            m = f"{(1 << u) | (1 << (16 + u)):#x}"
            setexec(m, m)
            for k in (0, 2): a(f"v_pk_mov_b32 v[{ZD+k}:{ZD+k+1}], v[{ZD+4*u+k}:{ZD+4*u+k+1}], v[{ZD+4*u+k}:{ZD+4*u+k+1}] op_sel:[0,1]")
        setexec("0x00ff00ff", "0x00ff00ff")
        a(f"buffer_store_dwordx4 v[{ZD}:{ZD+3}], v12, s[60:63], s88 offen sc1")
        fullexec()
    else:
        setexec("0x00010001", "0x00010001")
        for u in range(8):
            a(f"buffer_store_dwordx4 v[{ZD+4*u}:{ZD+4*u+3}], v17, s[60:63], s88 offen offset:{64*u} sc1")
        fullexec()
    stamp_to(10)
    a("s_cmp_ge_u32 s5, 8"); a("s_cbranch_scc1 L_end")
    a("v_lshrrev_b32 v8, 2, v0"); a("v_lshlrev_b32 v18, 11, v8")
    a("v_and_b32 v9, 3, v0"); a("v_lshl_add_u32 v18, v9, 4, v18")
    a("v_and_b32 v8, 7, v8"); a("v_lshlrev_b32 v10, 11, v8"); a("v_lshl_add_u32 v10, v9, 4, v10")
    a("s_lshl_b32 s12, s4, 7"); a("s_lshl_b32 s13, s3, 5"); a("s_add_u32 s14, s12, s13")
    a("v_lshlrev_b32 v9, 3, v9"); a("v_add_u32 v9, s14, v9")
    a(f"ds_read_b64 v[{XQ+2}:{XQ+3}], v9 offset:{X1L}")
    srd(44, 90, 1024)
    items = []
    for i in range(4):
        def ld(i=i):
            a(f"s_add_u32 s12, s57, {32768*i}")
            a(f"buffer_load_dwordx4 v[{G+4*i}:{G+4*i+3}], v{18 if i < 3 else 10}, s[60:63], s12 offen sc1")
        items.append((ld, "sent", [G + 4 * i + k for k in range(4)]))
    sel_gather(items, "Z", 0, chk=TA)
    setexec(0, -1)
    for k in range(4): a(f"v_mov_b32 v{G+12+k}, 0")
    fullexec()
    pk_sum_quads(G, 4)
    four = [G, G + 1, G + 2, G + 3]; four_t = [G + 4, G + 5, G + 6, G + 7]
    rowreduce("v_add_f32", four, [4, 8])
    bfly("v_add_f32", four, four_t, 16); bfly("v_add_f32", four, four_t, 32)
    a("s_waitcnt lgkmcnt(0)")
    unpack(XQ, XQ + 1, XQ + 2); unpack(XQ + 2, XQ + 3, XQ + 3)
    bf16rn(G, 4, G + 4)
    for k in range(4): a(f"v_mul_f32 v{G+k}, v{G+k}, v{GB+k}")
    bf16rn(G, 4, G + 4)
    for k in range(4): a(f"v_add_f32 v{G+k}, v{G+k}, v{XQ+k}")
    a(f"v_cvt_pk_bf16_f32 v{G+4}, v{G}, v{G+1}"); a(f"v_cvt_pk_bf16_f32 v{G+5}, v{G+2}, v{G+3}")
    setexec("0xf", 0)
    a(f"buffer_store_dwordx2 v[{G+4}:{G+5}], v9, s[44:47], 0 offen {cfg.get('outflags', '')}")
    a("s_or_b32 s12, s5, s3"); a("s_cmp_lg_u32 s12, 0"); a("s_cbranch_scc1 L_noep")
    setexec(1, 0)
    a(f"buffer_store_dword v{TAG}, v{VZ}, s[60:63], 0 offen offset:{EPOCH} sc1")
    a.label("L_noep")
    fullexec()
    stamp_to(11)
    a.label("L_end")
    if stamp:
        fullexec()
        stamp_to(15)
        for i in range(16): a(f"v_writelane_b32 v2, s{16+i}, {i}")
        a("v_mbcnt_lo_u32_b32 v3, -1, 0"); a("v_lshlrev_b32 v3, 2, v3")
        setexec("0xffff", 0)
        a("buffer_store_dword v2, v3, s[60:63], s94 offen")
    a.label("L_exit")
    a("s_endpgm")
    a.raw('.section .rodata,"a"')
    a.raw(".p2align 6")
    a.raw(f".amdhsa_kernel {NAME}_kernel")
    a.raw("  .amdhsa_next_free_vgpr 256")
    a.raw("  .amdhsa_next_free_sgpr 100")
    a.raw("  .amdhsa_accum_offset 256")
    a.raw("  .amdhsa_group_segment_fixed_size 0")
    a.raw("  .amdhsa_kernarg_size 104")
    a.raw("  .amdhsa_user_sgpr_count 2")
    a.raw("  .amdhsa_user_sgpr_kernarg_segment_ptr 1")
    a.raw("  .amdhsa_system_sgpr_workgroup_id_x 1")
    a.raw(".end_amdhsa_kernel")
    assert a.maxv <= 256 and a.maxs <= 100, (a.maxv, a.maxs)
    return a.text()

if __name__ == "__main__":
    import json
    out = sys.argv[1]
    cfg = json.loads(sys.argv[2]) if len(sys.argv) > 2 else {}
    open(out, "w").write(gen(cfg))
```

```python
import sys, struct
from dsl import Asm
NAME = "adaLN_cond__gqa_block_cached__dense_activation_silu__decode"

EPOCH = 0
QP = 0x1000
QS = 1152
MODF = 0x20000
R1 = 0x30000
YO = 0xB0000
ZO = 0xC0000
MODP = 0xE0000
BS = 8320
WS_END = 0x142000
DBGWS = 0x300000
F_Q, F_SP, F_O, F_X1, F_A1, F_RST, F_GO, F_QR, F_TK = 4, 8, 12, 16, 20, 24, 28, 40, 64
HLD = 256
QL = 1536
ML = 2560
OL = 2688
X1L = 2944
STL = 3968
A1L = 5120
H2L = 5632
QR = 8192
SP = 8192
YPL = 12288
STG = 16384
KVL = 32768
LOG2E = 0x3fb8aa3b
SCALE = 0x3db504f3
OOB = 0x10000000
NSP = 24

def f32bits(x): return struct.unpack("<I", struct.pack("<f", x))[0]

def gen(cfg):
    a = Asm()
    def fl(name, d):
        v = cfg.get(name, d); return (" " + v) if v else ""
    KF = fl("kflags", "nt"); VF = fl("vflags", "nt"); WT = fl("wflags", "nt")
    TMO = cfg.get("timeout", 1 << 15)
    stamp = cfg.get("stamp", False)
    Wp = cfg.get("wp", 60)
    a.raw(f"; @launch grid=(256,1,1) block=(512,1,1) lds=163840")
    a.raw('.amdgcn_target "amdgcn-amd-amdhsa--gfx950"')
    a.raw(".text")
    a.raw(f".globl {NAME}_kernel")
    a.raw(".p2align 8")
    a.raw(f".type {NAME}_kernel,@function")
    a.raw(f"{NAME}_kernel:")

    def srd(d, p, size):
        a(f"s_mov_b32 s{d}, s{p}"); a(f"s_mov_b32 s{d+1}, s{p+1}")
        a(f"s_mov_b32 s{d+2}, {size:#x}"); a(f"s_mov_b32 s{d+3}, 0x20000")
    def setexec(lo, hi):
        a(f"s_mov_b32 exec_lo, {lo}"); a(f"s_mov_b32 exec_hi, {hi}")
    def fullexec(): a("s_mov_b64 exec, -1")
    def bf16r(d, s):
        a(f"v_cvt_pk_bf16_f32 v{d}, v{s}, v{s}"); a(f"v_lshlrev_b32 v{d}, 16, v{d}")
    def bf16r2(d0, d1, s0, s1, t):
        a(f"v_cvt_pk_bf16_f32 v{t}, v{s0}, v{s1}")
        a(f"v_lshlrev_b32 v{d0}, 16, v{t}"); a(f"v_and_b32 v{d1}, s83, v{t}")
    def bf16rn(r, n, t):
        for i in range(0, n, 2): a(f"v_cvt_pk_bf16_f32 v{t+i//2}, v{r+i}, v{r+i+1}")
        for i in range(0, n, 2):
            a(f"v_lshlrev_b32 v{r+i}, 16, v{t+i//2}"); a(f"v_and_b32 v{r+i+1}, s83, v{t+i//2}")
    def unpack(d0, d1, s):
        a(f"v_lshlrev_b32 v{d0}, 16, v{s}"); a(f"v_and_b32 v{d1}, s83, v{s}")
    def rowreduce(op, regs, rors):
        for k in rors:
            for r in regs: a(f"{op} v{r}, v{r}, v{r} row_ror:{k}")
    def bfly(op, regs, tmps, width):
        for r, t in zip(regs, tmps): a(f"v_mov_b32 v{t}, v{r}")
        for r, t in zip(regs, tmps): a(f"v_permlane{width}_swap_b32 v{r}, v{t}")
        for r, t in zip(regs, tmps): a(f"{op} v{r}, v{r}, v{t}")
    def lds_signal(flag, vz, vone):
        a("s_waitcnt lgkmcnt(0)")
        setexec(1, 0)
        a(f"ds_add_u32 v{vz}, v{vone} offset:{flag}")
        fullexec()
    def lds_wait(flag, target, vz, vt, st=14, sleep=1):
        L = a.newlabel("Lw"); L2 = a.newlabel("Lwd")
        a(f"s_mov_b32 s{st+1}, {TMO*16}")
        a.label(L)
        a(f"ds_read_b32 v{vt}, v{vz} offset:{flag}")
        a(f"s_sub_u32 s{st+1}, s{st+1}, 1")
        a("s_cbranch_scc1 L_end")
        a("s_waitcnt lgkmcnt(0)")
        a(f"v_readfirstlane_b32 s{st}, v{vt}")
        a(f"s_cmp_ge_u32 s{st}, {target}")
        if sleep:
            a(f"s_cbranch_scc1 {L2}"); a(f"s_sleep {sleep}"); a(f"s_branch {L}")
            a.label(L2)
        else:
            a(f"s_cbranch_scc0 {L}")
    def stamp_to(slot):
        if not stamp: return
        a(f"s_memrealtime s[92:93]"); a("s_waitcnt lgkmcnt(0)"); a(f"s_mov_b32 s{16+slot}, s92")
    def stamp_init():
        if not stamp: return
        for i in range(1, 16): a(f"s_mov_b32 s{16+i}, 0")
        a("s_mov_b32 s16, s95")
    def silu_f32(dst, n, t):
        for i in range(n): a(f"v_mul_f32 v{t+i}, {f32bits(-1.4426950408889634):#x}, v{dst+i}")
        for i in range(n): a(f"v_exp_f32 v{t+i}, v{t+i}")
        for i in range(n): a(f"v_add_f32 v{t+i}, 1.0, v{t+i}")
        for i in range(n): a(f"v_rcp_f32 v{t+i}, v{t+i}")
        for i in range(n): a(f"v_mul_f32 v{dst+i}, v{dst+i}, v{t+i}")
    def gemv_dot(acc, w0, n, sc, scl, wait=None, first=True):
        for i in range(n):
            if wait: wait(i)
            for u in range(4):
                if i == 0 and first:
                    a(f"v_dot2_f32_bf16 v{acc+2*u}, v{w0+4*i+u}, v{scl+i}, 0")
                    a(f"v_dot2_f32_bf16 v{acc+2*u+1}, v{w0+4*i+u}, v{sc+i}, 0")
                else:
                    a(f"v_dot2c_f32_bf16 v{acc+2*u}, v{w0+4*i+u}, v{scl+i}")
                    a(f"v_dot2c_f32_bf16 v{acc+2*u+1}, v{w0+4*i+u}, v{sc+i}")
    def coef4(src, hc, hl):
        for k in range(2):
            a(f"v_lshlrev_b32 v{hc+2*k}, 16, v{src+k}"); a(f"v_and_b32 v{hc+2*k+1}, s83, v{src+k}")
            a(f"v_and_b32 v{hl+2*k}, 0xffff, v{src+k}"); a(f"v_lshrrev_b32 v{hl+2*k+1}, 16, v{src+k}")
    def ln_finish(s1, s2, t1):
        a(f"v_max_f32 v{s2}, 0, v{s2}")
        bf16r2(s1, s2, s1, s2, t1)
        a(f"v_add_f32 v{s2}, {f32bits(1e-5):#x}, v{s2}")
        bf16r(s2, s2)
        a(f"v_sqrt_f32 v{s2}, v{s2}")
        bf16r(s2, s2)
        a(f"v_rcp_f32 v{s2}, v{s2}")
    def rscatter8(acc):
        for k in range(4): a(f"v_permlane32_swap_b32 v{acc+k}, v{acc+4+k}")
        for k in range(4): a(f"v_add_f32 v{acc+k}, v{acc+k}, v{acc+4+k}")
        a(f"v_permlane16_swap_b32 v{acc}, v{acc+2}"); a(f"v_permlane16_swap_b32 v{acc+1}, v{acc+3}")
        a(f"v_add_f32 v{acc}, v{acc}, v{acc+2}"); a(f"v_add_f32 v{acc+1}, v{acc+1}, v{acc+3}")
    def pk_sum_quads(dst, n):
        step = 1
        while step < n:
            for i in range(0, n, 2 * step):
                if i + step < n:
                    for k in (0, 2):
                        a(f"v_pk_add_f32 v[{dst+4*i+k}:{dst+4*i+k+1}], v[{dst+4*i+k}:{dst+4*i+k+1}], v[{dst+4*(i+step)+k}:{dst+4*(i+step)+k+1}]")
            step *= 2
    TAG = 102
    def make_tag():
        a("s_add_u32 s96, s42, 1")
        a("s_mul_i32 s97, s96, 0x9E3779B1"); a("s_add_u32 s97, s97, 0x7F4A7C15")
        a(f"v_mov_b32 v{TAG}, s96"); a(f"v_mov_b32 v{TAG+1}, s97")
    def sel_gather(items, name, sleep=0, chk=None, sleep_all=0):
        L = a.newlabel("Lsg" + name)
        n = len(items)
        def check(kind, regs):
            if kind == "tag":
                a(f"v_cmp_ne_u64 vcc, v[{regs[0]+2}:{regs[0]+3}], v[{TAG}:{TAG+1}]")
                for q in regs[1:]:
                    a(f"v_cmp_ne_u64 s[80:81], v[{q+2}:{q+3}], v[{TAG}:{TAG+1}]")
                    a("s_or_b64 vcc, vcc, s[80:81]")
            else:
                a(f"v_max3_u32 v{chk}, v{regs[0]}, v{regs[1]}, v{regs[2]}")
                rest = regs[3:]
                while rest:
                    if len(rest) >= 2: a(f"v_max3_u32 v{chk}, v{chk}, v{rest[0]}, v{rest[1]}"); rest = rest[2:]
                    else: a(f"v_max_u32 v{chk}, v{chk}, v{rest[0]}"); rest = rest[1:]
                a(f"v_cmp_eq_u32 vcc, -1, v{chk}")
        a(f"s_mov_b32 s58, 0")
        a(f"s_mov_b32 s15, {TMO}")
        a.label(L + "_all")
        for ld, kind, regs in items: ld()
        a("s_sub_u32 s15, s15, 1"); a("s_cbranch_scc1 L_end")
        a("s_waitcnt vmcnt(0)")
        a(f"s_mov_b32 s58, 0")
        for i, (ld, kind, regs) in enumerate(items):
            check(kind, regs)
            a("s_cmp_lg_u64 vcc, 0")
            a(f"s_cselect_b32 s14, {1 << i:#x}, 0")
            a("s_or_b32 s58, s58, s14")
        a(f"s_cmp_eq_u32 s58, 0"); a(f"s_cbranch_scc1 {L}_done")
        if sleep_all:
            a(f"s_cmp_lg_u32 s58, {(1 << n) - 1:#x}"); a(f"s_cbranch_scc1 {L}")
            a(f"s_sleep {sleep_all}")
            a(f"s_branch {L}_all")
        a.label(L)
        if sleep: a(f"s_sleep {sleep}")
        for i in range(n):
            a(f"s_bitcmp1_b32 s58, {i}"); a(f"s_cbranch_scc1 {L}_ld{i}")
            a.label(f"{L}_ldr{i}")
        a("s_sub_u32 s15, s15, 1"); a("s_cbranch_scc1 L_end")
        a("s_waitcnt vmcnt(0)")
        for i in range(n):
            a(f"s_bitcmp1_b32 s58, {i}"); a(f"s_cbranch_scc1 {L}_ck{i}")
            a.label(f"{L}_ckr{i}")
        a("s_cmp_lg_u32 s58, 0"); a(f"s_cbranch_scc1 {L}")
        a(f"s_branch {L}_done")
        for i, (ld, kind, regs) in enumerate(items):
            a.label(f"{L}_ld{i}")
            ld()
            a(f"s_branch {L}_ldr{i}")
            a.label(f"{L}_ck{i}")
            check(kind, regs)
            a(f"s_cbranch_vccnz {L}_ckr{i}")
            a(f"s_bitset0_b32 s58, {i}")
            a(f"s_branch {L}_ckr{i}")
        a.label(L + "_done")
    def arrive(VZ, VONE, TA):
        Ln = a.newlabel("Lnarr")
        setexec(1, 0)
        a(f"ds_add_rtn_u32 v{TA}, v{VZ}, v{VONE} offset:{F_RST}")
        a("s_waitcnt lgkmcnt(0)")
        a(f"v_readfirstlane_b32 s14, v{TA}")
        a("s_cmp_lg_u32 s14, 3"); a(f"s_cbranch_scc1 {Ln}")
        a(f"v_mov_b32 v{TA}, 1")
        a(f"buffer_atomic_add v{TA}, v{VZ}, s[64:67], 0 offen sc0 sc1")
        a("s_waitcnt vmcnt(0)")
        a(f"v_readfirstlane_b32 s14, v{TA}")
        a("s_cmp_lg_u32 s14, 255"); a(f"s_cbranch_scc1 {Ln}")
        a(f"buffer_store_dword v{VONE}, v{VZ}, s[64:67], 0 offen offset:128 sc1")
        a.label(Ln)
        fullexec()

    a("s_cmp_ge_u32 s2, 256")
    a("s_cbranch_scc1 L_exit")
    a("v_lshrrev_b32 v1, 6, v0")
    a("v_and_b32 v0, 63, v0")
    a("v_readfirstlane_b32 s82, v1")
    a("v_mov_b32 v2, 0")
    a("s_cmp_lg_u32 s82, 3"); a("s_cbranch_scc1 L_noinit")
    a("v_lshlrev_b32 v1, 2, v0")
    a(f"v_cmp_eq_u32 vcc, {F_TK//4}, v0")
    a(f"v_mov_b32 v3, {16*16}")
    a("v_cndmask_b32 v3, v2, v3, vcc")
    a("ds_write_b32 v1, v3")
    a("s_waitcnt lgkmcnt(0)")
    a.label("L_noinit")
    if stamp:
        a("s_memrealtime s[92:93]"); a("s_waitcnt lgkmcnt(0)"); a("s_mov_b32 s95, s92")
    a("s_load_dwordx16 s[16:31], s[0:1], 0")
    a("s_load_dwordx8 s[32:39], s[0:1], 64")
    a("s_load_dwordx2 s[40:41], s[0:1], 96")
    a("s_barrier")
    a("s_and_b32 s3, s82, 3")
    a("s_and_b32 s4, s2, 7")
    a("s_lshr_b32 s5, s2, 3")
    a("s_mov_b32 s83, 0xffff0000")
    if stamp:
        a("s_lshl_b32 s94, s2, 3"); a("s_add_u32 s94, s94, s82"); a("s_lshl_b32 s94, s94, 6"); a(f"s_add_u32 s94, s94, {DBGWS}")
    a("v_lshlrev_b32 v1, 4, v0")
    a("s_cmp_ge_u32 s82, 4"); a("s_cbranch_scc1 L_T")
    a(f"s_cmp_ge_u32 s2, {NSP*8}"); a("s_cbranch_scc1 L_exit")

    VV, VTK, VML, VL, T0, T1, T2 = 1, 2, 3, 4, 5, 6, 7
    KX = 8; KA = 12; D = 16; QF = 24; OA = 40; KT = 72; VR = 104
    a(f"s_setprio {cfg.get('sprio0', 3)}")
    a("v_and_b32 v5, 15, v0"); a("v_lshrrev_b32 v6, 4, v0")
    a("v_and_b32 v7, 3, v0"); a("v_lshlrev_b32 v7, 8, v7"); a("v_lshl_add_u32 v7, v6, 4, v7")
    a("v_lshlrev_b32 v2, 2, v6"); a("v_xor_b32 v2, v2, v5"); a("v_lshlrev_b32 v2, 4, v2"); a(f"v_lshl_add_u32 v{KX}, v6, 8, v2")
    for k in range(1, 4): a(f"v_xor_b32 v{KX+k}, {16*k}, v{KX}")
    a("s_lshl_b32 s87, s3, 15"); a(f"s_add_u32 s87, s87, {KVL}")
    a("v_and_b32 v2, 3, v5"); a("v_lshrrev_b32 v3, 2, v5"); a("v_lshl_add_u32 v2, v2, 2, v3"); a("v_lshlrev_b32 v2, 8, v2")
    a("v_xor_b32 v3, v5, v6"); a("v_lshl_add_u32 v2, v3, 4, v2"); a(f"v_add_u32 v{KA}, s87, v2")
    for k in range(1, 4): a(f"v_xor_b32 v{KA+k}, {64*k}, v{KA}") if 64 * k <= 64 else a(f"v_xor_b32 v{KA+k}, {64*k:#x}, v{KA}")
    M_ = -(-2048 * 1024 // NSP)
    for k in range(NSP + 1): assert (k * M_) >> 10 == k * 2048 // NSP
    a(f"s_mul_i32 s89, s5, {M_}"); a("s_lshr_b32 s89, s89, 10")
    a("s_add_u32 s14, s5, 1"); a(f"s_mul_i32 s14, s14, {M_}"); a("s_lshr_b32 s14, s14, 10")
    a("s_sub_u32 s81, s14, s89"); a("s_lshl_b32 s81, s81, 4")
    a("s_lshl_b32 s89, s89, 13"); a("s_lshl_b32 s91, s4, 24"); a("s_add_u32 s89, s89, s91")
    a("s_lshl_b32 s91, s3, 13"); a("s_add_u32 s90, s89, s91"); a("s_add_u32 s91, s90, 4096")
    a(f"s_mov_b32 s10, {LOG2E:#x}"); a(f"s_mov_b32 s11, {SCALE:#x}")
    a("s_mov_b32 s12, 0x05040100"); a("s_mov_b32 s13, 0x07060302")
    for r in (6, 7, 8, 9): a(f"s_mov_b32 s{r}, 1")
    a("v_mov_b32 v5, 0")
    a("s_waitcnt lgkmcnt(0)")
    srd(44, 18, 0x8000000); srd(48, 20, 0x8000000)
    if stamp: srd(60, 40, 0x400000)
    stamp_init(); stamp_to(3)
    def tile_loads(slot):
        out = []
        for i in range(8):
            pre = [f"s_add_u32 m0, s87, {slot*8192 + (i>>2)*4096}"] if (i & 3) == 0 else []
            out.append(pre + [f"buffer_load_dwordx4 v{KX+(i&3)}, s[44:47], {'s90' if i < 4 else 's91'} offen offset:{1024*(i&3)}{KF} lds"])
        r = VR + 32 * slot
        for i in range(8):
            out.append([f"buffer_load_dwordx4 v[{r+4*i}:{r+4*i+3}], v{VV}, s[48:51], {'s90' if i < 4 else 's91'} offen offset:{1024*(i&3)}{VF}"])
        return out
    def req_ticket():
        setexec(2, 0)
        a(f"ds_add_rtn_u32 v{VTK}, v{VV}, v{VV} offset:{F_TK-16}")
        fullexec()
    seq = []
    for t in range(4):
        l = tile_loads(t)
        if t < 3: l[-1] = l[-1] + ["s_add_u32 s90, s90, 32768", "s_add_u32 s91, s91, 32768"]
        seq += l
    NL = 64; GRP = 4
    for i in range(Wp):
        for ins in seq[i]: a(ins)
        if i == cfg.get("nfirst", 2) - 1: a("s_setprio 0")
    stamp_to(1)
    a(f"v_mov_b32 v{VML}, 0xff800000"); a(f"v_mov_b32 v{VL}, 0")
    for r in range(OA, OA + 32): a(f"v_mov_b32 v{r}, 0")
    pos = list(range(Wp, NL, GRP))
    for p in pos:
        a(f"ds_read_b32 v6, v5 offset:{F_Q}")
        for i in range(p, min(p + GRP, NL)):
            if (i - p) % 2 == 0: a(f"s_waitcnt vmcnt({Wp-2})")
            for ins in seq[i]: a(ins)
        if p + GRP < NL:
            a("s_waitcnt lgkmcnt(0)")
            a("v_readfirstlane_b32 s14, v6")
            a("s_cmp_ge_u32 s14, 4")
            a(f"s_cbranch_scc1 L_U{p+GRP}")
    a("s_branch L_Pdone")
    for p in pos[1:]:
        a.label(f"L_U{p}")
        for i in range(p, min(p + GRP, NL)):
            for ins in seq[i]: a(ins)
    a.label("L_Pdone")
    stamp_to(12)
    lds_wait(F_Q, 4, 5, 6, 14, sleep=2)
    for j in range(4): a(f"ds_read_b128 v[{QF+4*j}:{QF+4*j+3}], v7 offset:{QL + 64*j}")
    req_ticket()
    stamp_to(8)
    a.label("L_Sloop")
    for slot in range(4):
        VB = VR + 32 * slot
        a(f"s_cmp_eq_u32 s{6+slot}, 0"); a("s_cbranch_scc1 L_Sdone")
        a("s_waitcnt vmcnt(56)")
        for j in range(4):
            for T in range(2):
                kr = KT + (T * 4 + j) * 4
                a(f"ds_read_b128 v[{kr}:{kr+3}], v{KA+j} offset:{slot*8192 + T*4096}")
        for j in range(4):
            a(f"s_waitcnt lgkmcnt({6-2*j})")
            for T in range(2):
                kr = KT + (T * 4 + j) * 4
                c = "0" if j == 0 else f"v[{D+4*T}:{D+4*T+3}]"
                a(f"v_mfma_f32_16x16x32_bf16 v[{D+4*T}:{D+4*T+3}], v[{kr}:{kr+3}], v[{QF+4*j}:{QF+4*j+3}], {c}")
        Li = a.newlabel("Lti"); Lk = a.newlabel("Ltk")
        a(f"v_readlane_b32 s14, v{VTK}, 1")
        a("s_lshl_b32 s15, s14, 9"); a("s_add_u32 s90, s89, s15")
        a("s_cmp_lt_u32 s14, s81")
        a(f"s_cselect_b32 s{6+slot}, 1, 0")
        a("s_add_u32 s91, s90, 4096")
        req_ticket()
        for i in range(0, 8, 2): bf16r2(D + i, D + i + 1, D + i, D + i + 1, T0 + (i // 2) % 3)
        for i in range(8): a(f"v_mul_f32 v{D+i}, s11, v{D+i}")
        for i in range(0, 8, 2): bf16r2(D + i, D + i + 1, D + i, D + i + 1, T0 + (i // 2) % 3)
        a(f"v_max3_f32 v{T0}, v{D}, v{D+1}, v{D+2}")
        a(f"v_max3_f32 v{T1}, v{D+3}, v{D+4}, v{D+5}")
        a(f"v_max3_f32 v{T0}, v{T0}, v{D+6}, v{D+7}")
        a(f"v_max_f32 v{T0}, v{T0}, v{T1}")
        a(f"v_mul_f32 v{T0}, s10, v{T0}")
        a(f"v_cmp_gt_f32 vcc, v{T0}, v{VML}")
        Ls = a.newlabel("Lnomax")
        a(f"s_cbranch_vccz {Ls}")
        bfly("v_max_f32", [T0], [T1], 16)
        bfly("v_max_f32", [T0], [T1], 32)
        a(f"v_ceil_f32 v{T0}, v{T0}")
        a(f"v_max_f32 v{T0}, v{T0}, v{VML}")
        a(f"v_sub_f32 v{T1}, v{VML}, v{T0}")
        a(f"v_exp_f32 v{T1}, v{T1}")
        a(f"v_mov_b32 v{VML}, v{T0}")
        a(f"v_mul_f32 v{VL}, v{VL}, v{T1}")
        for r in range(OA, OA + 32): a(f"v_mul_f32 v{r}, v{r}, v{T1}")
        a.label(Ls)
        for i in range(8): a(f"v_fma_f32 v{D+i}, v{D+i}, s10, -v{VML}")
        for i in range(8): a(f"v_exp_f32 v{D+i}, v{D+i}")
        a(f"v_add_f32 v{T0}, v{D}, v{D+1}"); a(f"v_add_f32 v{T1}, v{D+2}, v{D+3}"); a(f"v_add_f32 v{T2}, v{D+4}, v{D+5}")
        a(f"v_add_f32 v{VL}, v{VL}, v{D+6}"); a(f"v_add_f32 v{T0}, v{T0}, v{T1}"); a(f"v_add_f32 v{T2}, v{T2}, v{D+7}")
        a(f"v_add_f32 v{VL}, v{VL}, v{T0}"); a(f"v_add_f32 v{VL}, v{VL}, v{T2}")
        for q in range(4): a(f"v_cvt_pk_bf16_f32 v{D+q}, v{D+2*q}, v{D+2*q+1}")
        a("s_waitcnt vmcnt(48)")
        for t in range(8):
            u = t >> 1; sel = "s12" if (t & 1) == 0 else "s13"
            for q in range(4):
                a(f"v_perm_b32 v{KT+4*t+q}, v{VB+4*(2*q+1)+u}, v{VB+4*(2*q)+u}, {sel}")
            if t >= 1:
                tt = t - 1
                a(f"v_mfma_f32_16x16x32_bf16 v[{OA+4*tt}:{OA+4*tt+3}], v[{KT+4*tt}:{KT+4*tt+3}], v[{D}:{D+3}], v[{OA+4*tt}:{OA+4*tt+3}]")
        tt = 7
        a(f"v_mfma_f32_16x16x32_bf16 v[{OA+4*tt}:{OA+4*tt+3}], v[{KT+4*tt}:{KT+4*tt+3}], v[{D}:{D+3}], v[{OA+4*tt}:{OA+4*tt+3}]")
        a(f"s_cmp_eq_u32 s{6+slot}, 0"); a(f"s_cbranch_scc0 {Li}")
        a("s_waitcnt vmcnt(0)")
        a(f"s_branch {Lk}")
        a.label(Li)
        if cfg.get("sw"): a(f"s_waitcnt vmcnt({cfg['sw']})")
        for l in tile_loads(slot):
            for ins in l: a(ins)
        a.label(Lk)
    a("s_branch L_Sloop")
    a.label("L_Sdone")
    stamp_to(5)
    bfly("v_add_f32", [VL], [T0], 16)
    bfly("v_add_f32", [VL], [T0], 32)
    a(f"v_lshrrev_b32 v{T0}, 4, v{VV}")
    a(f"v_and_b32 v{T1}, 15, v{T0}"); a(f"v_lshrrev_b32 v{T2}, 4, v{T0}")
    a(f"v_lshlrev_b32 v{D}, 9, v{T1}"); a(f"v_lshl_add_u32 v{D}, v{T2}, 4, v{D}")
    a("s_lshl_b32 s14, s3, 11"); a(f"v_add_u32 v{D}, s14, v{D}")
    a(f"v_lshlrev_b32 v{D+1}, 5, v{T1}"); a("s_lshl_b32 s14, s3, 3"); a(f"v_add_u32 v{D+1}, s14, v{D+1}")
    a(f"v_mov_b32 v6, v{VML}"); a(f"v_mov_b32 v7, v{VL}")
    setexec("0x000f000f", "0x000f000f")
    for t in range(8): a(f"ds_write_b128 v{D}, v[{OA+4*t}:{OA+4*t+3}] offset:{SP + 64*t}")
    setexec("0xf", "0")
    a(f"ds_write_b64 v{D+1}, v[6:7] offset:{ML}")
    fullexec()
    a(f"v_mov_b32 v{T0}, 0"); a(f"v_mov_b32 v4, 1")
    lds_signal(F_SP, T0, 4)
    a("s_branch L_end")

    a.label("L_T")
    a("s_setprio 2")
    VZ, VONE = 2, 3
    TA = 80; TB = 81
    a("v_mov_b32 v3, 1")
    a(f"s_cmp_ge_u32 s2, {NSP*8}"); a("s_cbranch_scc1 L_TW")
    G = 20
    a("s_lshl_b32 s85, s4, 2"); a("s_add_u32 s85, s85, s3")
    a(f"s_mul_i32 s98, s85, {2*QS}"); a(f"s_add_u32 s98, s98, {QP}")
    a(f"s_mul_i32 s85, s85, {NSP}"); a("s_add_u32 s85, s85, s5"); a("s_mul_i32 s85, s85, 640"); a(f"s_add_u32 s85, s85, {R1}")
    for r in range(8, 12): a(f"v_mov_b32 v{r}, -1")
    a("v_lshlrev_b32 v18, 2, v0"); a("s_lshl_b32 s12, s3, 8"); a("v_add_u32 v18, s12, v18")
    a("v_lshrrev_b32 v17, 5, v0"); a("v_and_b32 v7, 31, v0"); a("v_lshlrev_b32 v7, 4, v7"); a("v_lshl_add_u32 v7, v17, 11, v7")
    a("s_lshl_b32 s12, s3, 9"); a("v_add_u32 v7, s12, v7")
    a("s_lshl_b32 s12, s3, 5"); a("v_mov_b32 v19, s12")
    a("s_waitcnt lgkmcnt(0)")
    a(f"s_load_dword s42, s[40:41], {EPOCH}")
    srd(60, 40, 0x400000 if stamp else WS_END); srd(64, 38, 256)
    stamp_init()
    if cfg.get("tdummy"):
        a("v_mov_b32 v5, 0x3c003c00"); a(f"ds_write_b32 v18, v5 offset:{QL}")
        lds_signal(F_Q, VZ, VONE); a("s_branch L_exit")
    if cfg.get("ldelay", 40): a(f"s_sleep {cfg.get('ldelay', 40)}")
    setexec(-1, 0)
    a("buffer_store_dwordx4 v[8:11], v1, s[60:63], s85 offen sc1")
    setexec(1, 0)
    a("buffer_store_dword v8, v1, s[60:63], s85 offen offset:512 sc1")
    fullexec()
    a("s_waitcnt lgkmcnt(0)")
    make_tag()
    for _ in range(cfg.get("qdelay_n", 1)): a(f"s_sleep {cfg.get('qdelay', 60)}")
    items = []
    for i in range(2):
        def ld(i=i): a(f"buffer_load_dwordx4 v[{G+4*i}:{G+4*i+3}], v1, s[60:63], s98 offen offset:{QS*i} sc1")
        items.append((ld, "tag", [G + 4 * i]))
    sel_gather(items, "Q", cfg.get("qsleep", 12))
    a(f"v_pk_add_f32 v[{G}:{G+1}], v[{G}:{G+1}], v[{G+4}:{G+5}]")
    a(f"v_cvt_pk_bf16_f32 v{G+4}, v{G}, v{G+1}")
    a(f"ds_write_b32 v18, v{G+4} offset:{QL}")
    lds_signal(F_Q, VZ, VONE)
    stamp_to(4)
    arrive(VZ, VONE, TA)
    a("v_cmp_le_u32 s[80:81], 32, v0")
    a("s_setprio 0")
    lds_wait(F_SP, 4, VZ, TA, 14, sleep=cfg.get("spsleep", 1))
    a("s_setprio 3")
    stamp_to(5)
    MLR = 20; OA_ = 28; OB_ = 32
    a(f"ds_read_b128 v[{MLR}:{MLR+3}], v19 offset:{ML}")
    a(f"ds_read_b128 v[{MLR+4}:{MLR+7}], v19 offset:{ML+16}")
    a(f"ds_read_b128 v[{OA_}:{OA_+3}], v7 offset:{SP}")
    a(f"ds_read_b128 v[{OB_}:{OB_+3}], v7 offset:{SP+4096}")
    a("s_waitcnt lgkmcnt(2)")
    a(f"v_max3_f32 v36, v{MLR}, v{MLR+2}, v{MLR+4}"); a(f"v_max_f32 v36, v36, v{MLR+6}")
    for w in range(4): a(f"v_sub_f32 v{MLR+2*w}, v{MLR+2*w}, v36")
    for w in range(4): a(f"v_exp_f32 v{MLR+2*w}, v{MLR+2*w}")
    a(f"v_mul_f32 v37, v{MLR}, v{MLR+1}")
    for w in range(1, 4): a(f"v_fmac_f32 v37, v{MLR+2*w}, v{MLR+2*w+1}")
    a(f"v_cndmask_b32 v38, v{MLR}, v{MLR+2}, s[80:81]")
    a(f"v_cndmask_b32 v39, v{MLR+4}, v{MLR+6}, s[80:81]")
    a("v_rcp_f32 v40, v37"); a("v_log_f32 v41, v37")
    a("s_waitcnt lgkmcnt(0)")
    a("v_mul_f32 v38, v38, v40"); a("v_mul_f32 v39, v39, v40")
    a("v_add_f32 v41, v41, v36")
    for k in range(4): a(f"v_mul_f32 v{OA_+k}, v{OA_+k}, v38")
    for k in range(4): a(f"v_fmac_f32 v{OA_+k}, v{OB_+k}, v39")
    bfly("v_add_f32", [OA_, OA_ + 1, OA_ + 2, OA_ + 3], [OB_, OB_ + 1, OB_ + 2, OB_ + 3], 32)
    setexec(-1, 0)
    a(f"buffer_store_dwordx4 v[{OA_}:{OA_+3}], v1, s[60:63], s85 offen sc1")
    setexec(1, 0)
    a("buffer_store_dword v41, v2, s[60:63], s85 offen offset:512 sc1")
    fullexec()
    stamp_to(6)
    a("s_branch L_end")

    a.label("L_TW")
    if cfg.get("tdummy"): a("s_branch L_exit")
    XA = 8; CC = 12; XJ = 16; GW = 20; GA = 52; XQ = 56; CB1 = 60; SBV = 64
    XV = 70; MEAN = 78; RDEN = 79; SC = 82; SCL = 90; XQR = 98; C2 = 100
    WOF = 104; GE = 104; W1F = 168; W2F = 200; WQ = 168; ACC = 232; GB = 240; C3 = 244
    a(f"s_sub_u32 s5, s2, {NSP*8}")
    a("s_lshr_b32 s6, s5, 3"); a("s_and_b32 s6, s6, 3"); a("s_lshl_b32 s7, s4, 2"); a("s_add_u32 s6, s6, s7")
    a("s_lshr_b32 s7, s5, 5")
    a("s_cmp_lt_u32 s5, 56"); a("s_cselect_b32 s8, 1, 0")
    a("s_and_b32 s10, s5, 15"); a("s_lshr_b32 s99, s5, 4"); a("s_lshl_b32 s99, s99, 2"); a("s_add_u32 s99, s99, s3")
    a("v_lshrrev_b32 v17, 3, v0"); a("v_and_b32 v18, 7, v0"); a("v_lshrrev_b32 v5, 4, v0"); a("v_and_b32 v19, 15, v0")
    a("v_lshlrev_b32 v4, 3, v17")
    a("v_mul_u32_u24 v68, 24576, v17"); a("v_lshl_add_u32 v68, v18, 4, v68")
    a("v_lshlrev_b32 v69, 4, v5"); a("v_lshl_add_u32 v69, v18, 6, v69")
    a("v_and_b32 v6, 31, v0"); a("v_lshlrev_b32 v6, 2, v6")
    a("v_lshlrev_b32 v7, 15, v5"); a("v_lshl_add_u32 v7, v19, 4, v7")
    a("s_lshl_b32 s12, s99, 6")
    a(f"s_mul_i32 s13, s99, {32*6144}"); a("s_lshl_b32 s14, s10, 7"); a("s_add_u32 s13, s13, s14")
    a("s_lshl_b32 s9, s7, 2"); a("s_add_u32 s9, s9, s3")
    a("s_lshl_b32 s14, s9, 7")
    a("s_lshl_b32 s15, s9, 19"); a("s_lshl_b32 s90, s6, 8"); a("s_add_u32 s15, s15, s90")
    a("s_waitcnt lgkmcnt(0)")
    a(f"s_load_dword s42, s[40:41], {EPOCH}")
    srd(48, 32, 1024); srd(52, 34, 512 * 6144)
    a(f"buffer_load_dwordx2 v[{CC}:{CC+1}], v4, s[48:51], s12 offen")
    for i in range(4):
        a(f"buffer_load_dwordx4 v[{GW+4*i}:{GW+4*i+3}], v68, s[52:55], s13 offen{WT}")
        if i < 3: a("s_add_u32 s13, s13, 6144")
    srd(44, 16, 1024)
    a(f"buffer_load_dwordx4 v[{XA}:{XA+3}], v1, s[44:47], 0 offen")
    a(f"buffer_load_dword v{XJ}, v6, s[44:47], s14 offen")
    srd(56, 22, 512 * 8192)
    for aa in range(4):
        for i in range(4):
            a(f"s_add_u32 s12, s15, {(16*aa + i) * 8192}")
            a(f"buffer_load_dwordx4 v[{WQ+16*aa+4*i}:{WQ+16*aa+4*i+3}], v7, s[56:59], s12 offen{WT}")
    srd(60, 40, 0x400000 if stamp else WS_END); srd(64, 38, 256)
    srd(68, 24, 4096 * 1024); srd(72, 28, 512 * 3584); srd(76, 30, 1792 * 1024)
    a("s_mov_b32 s90, s36"); a("s_mov_b32 s91, s37")
    stamp_init()
    a(f"s_mul_i32 s89, s10, {BS}"); a("s_lshl_b32 s12, s99, 9"); a("s_add_u32 s89, s89, s12"); a(f"s_add_u32 s89, s89, {MODP}")
    a(f"s_mul_i32 s86, s9, {BS}"); a(f"s_add_u32 s86, s86, {MODP}")
    a("s_lshl_b32 s84, s6, 1"); a("s_add_u32 s84, s84, s7"); a(f"s_mul_i32 s84, s84, {QS}")
    a("s_lshl_b32 s12, s3, 8"); a("s_add_u32 s84, s84, s12"); a(f"s_add_u32 s84, s84, {QP}")
    a("s_lshl_b32 s87, s6, 11"); a("s_lshl_b32 s13, s7, 10"); a("s_add_u32 s87, s87, s13")
    a("s_add_u32 s87, s87, s12"); a(f"s_add_u32 s87, s87, {YO}")
    a("s_lshl_b32 s88, s5, 11"); a("s_lshl_b32 s12, s3, 9"); a("s_add_u32 s88, s88, s12"); a(f"s_add_u32 s88, s88, {ZO}")
    def unit(csrc, wsrc, sdst, wait=None):
        for i in range(2): unpack(SC + 2 * i, SC + 2 * i + 1, csrc + i)
        silu_f32(SC, 4, SC + 4)
        for i in range(2): a(f"v_cvt_pk_bf16_f32 v{TA+i}, v{SC+2*i}, v{SC+2*i+1}")
        coef4(TA, SC, SCL)
        gemv_dot(ACC, wsrc, 4, SC, SCL, wait=wait)
        rscatter8(ACC)
        rowreduce("v_add_f32", [ACC, ACC + 1], [8])
        a(f"v_mov_b32 v{ACC+2}, s96"); a(f"v_mov_b32 v{ACC+3}, s97")
        setexec("0x00ff00ff", "0x00ff00ff")
        a(f"buffer_store_dwordx4 v[{ACC}:{ACC+3}], v69, s[60:63], {sdst} offen sc1")
        fullexec()
    a("s_waitcnt lgkmcnt(0)")
    make_tag()
    a("s_waitcnt vmcnt(22)")
    unit(CC, GW, "s89", wait=lambda i: a(f"s_waitcnt vmcnt({21-i})"))
    stamp_to(1)
    a("s_waitcnt vmcnt(17)")
    for i in range(4): unpack(XV + 2 * i, XV + 2 * i + 1, XA + i)
    a(f"v_readfirstlane_b32 s14, v{XV}")
    for i in range(8): a(f"v_subrev_f32 v{XV+i}, s14, v{XV+i}")
    a(f"v_add_f32 v{MEAN}, v{XV}, v{XV+1}"); a(f"v_mul_f32 v{RDEN}, v{XV}, v{XV}"); a(f"v_fmac_f32 v{RDEN}, v{XV+1}, v{XV+1}")
    for i in range(2, 8):
        a(f"v_add_f32 v{MEAN}, v{MEAN}, v{XV+i}"); a(f"v_fmac_f32 v{RDEN}, v{XV+i}, v{XV+i}")
    rowreduce("v_add_f32", [MEAN, RDEN], [1, 2, 4, 8])
    bfly("v_add_f32", [MEAN, RDEN], [TA, TB], 16)
    bfly("v_add_f32", [MEAN, RDEN], [TA, TB], 32)
    a(f"v_mul_f32 v{MEAN}, {f32bits(1/512):#x}, v{MEAN}")
    a(f"v_mul_f32 v{RDEN}, {f32bits(1/512):#x}, v{RDEN}")
    a(f"v_fma_f32 v{RDEN}, -v{MEAN}, v{MEAN}, v{RDEN}")
    a(f"v_add_f32 v{MEAN}, s14, v{MEAN}")
    ln_finish(MEAN, RDEN, TA)
    LN0 = CC; LN1 = CC + 1
    unpack(LN0, LN1, XJ)
    a(f"v_sub_f32 v{LN0}, v{LN0}, v{MEAN}"); a(f"v_sub_f32 v{LN1}, v{LN1}, v{MEAN}"); bf16rn(LN0, 2, TA)
    a(f"v_mul_f32 v{LN0}, v{LN0}, v{RDEN}"); a(f"v_mul_f32 v{LN1}, v{LN1}, v{RDEN}"); bf16rn(LN0, 2, TA)
    a("s_lshl_b32 s12, s3, 7"); a("v_add_u32 v6, s12, v6")
    a("v_lshl_add_u32 v4, v5, 3, s12")
    a("v_lshlrev_b32 v7, 5, v19"); a("v_lshl_add_u32 v7, v5, 3, v7")
    a("s_lshl_b32 s13, s3, 9"); a("v_add_u32 v7, s13, v7")
    a("v_lshl_add_u32 v16, v0, 3, s12")
    def block_reduce(sbase, Gb, dst, nmat, mstride, sleep, name):
        items = []
        for m in range(nmat):
            a(f"s_add_u32 s{44+2*m if False else 76+0}, s{sbase}, 0") if False else None
            a(f"s_add_u32 s{32+2*m}, s{sbase}, {m*mstride}"); a(f"s_add_u32 s{33+2*m}, s{32+2*m}, 4096")
            for k2 in range(4):
                def ld(m=m, k2=k2):
                    for k in (2 * k2, 2 * k2 + 1):
                        a(f"buffer_load_dwordx4 v[{Gb+32*m+4*k}:{Gb+32*m+4*k+3}], v1, s[60:63], s{32+2*m+(k>>2)} offen offset:{1024*(k&3)} sc1")
                items.append((ld, "tag", [Gb + 32 * m + 8 * k2, Gb + 32 * m + 8 * k2 + 4]))
        sel_gather(items, name, sleep)
        for m in range(nmat):
            for k in range(1, 8):
                a(f"v_pk_add_f32 v[{Gb+32*m}:{Gb+32*m+1}], v[{Gb+32*m}:{Gb+32*m+1}], v[{Gb+32*m+4*k}:{Gb+32*m+4*k+1}]")
        for m in range(nmat):
            a(f"v_mov_b32 v{dst+2*m}, v{Gb+32*m}"); a(f"v_mov_b32 v{dst+2*m+1}, v{Gb+32*m+1}")
        bfly("v_add_f32", list(range(dst, dst + 2 * nmat)), list(range(Gb + 8, Gb + 8 + 2 * nmat)), 32)
    if cfg.get("adelay", 8): a(f"s_sleep {cfg.get('adelay', 8)}")
    block_reduce(86, GE, XV, 2, 8 * BS, cfg.get("asleep", 4), "A")
    stamp_to(13)
    bf16rn(XV, 4, GE + 4)
    a(f"v_add_f32 v{XV+2}, 1.0, v{XV+2}"); a(f"v_add_f32 v{XV+3}, 1.0, v{XV+3}"); bf16rn(XV + 2, 2, GE + 4)
    a(f"v_mul_f32 v{XV+2}, v{LN0}, v{XV+2}"); a(f"v_mul_f32 v{XV+3}, v{LN1}, v{XV+3}"); bf16rn(XV + 2, 2, GE + 4)
    a(f"v_add_f32 v{XV}, v{XV+2}, v{XV}"); a(f"v_add_f32 v{XV+1}, v{XV+3}, v{XV+1}")
    a(f"v_cvt_pk_bf16_f32 v{GE+4}, v{XV}, v{XV+1}")
    setexec(-1, 0)
    a(f"ds_write_b32 v6, v{GE+4} offset:{HLD}")
    fullexec()
    for aa in range(4): a(f"ds_read_b64 v[{GE+8+2*aa}:{GE+9+2*aa}], v4 offset:{HLD + 32*aa}")
    for aa in range(4):
        a(f"s_waitcnt lgkmcnt({3-aa})")
        coef4(GE + 8 + 2 * aa, GE + 16 + 8 * aa, GE + 20 + 8 * aa)
        gemv_dot(ACC, WQ + 16 * aa, 4, GE + 16 + 8 * aa, GE + 20 + 8 * aa, first=(aa == 0))
    rscatter8(ACC)
    a(f"ds_write_b64 v7, v[{ACC}:{ACC+1}] offset:{QR}")
    lds_signal(F_QR, VZ, VONE)
    a(f"v_mov_b32 v{ACC+2}, s96"); a(f"v_mov_b32 v{ACC+3}, s97")
    lds_wait(F_QR, 4, VZ, TA, 14, sleep=0)
    setexec("0xffff", 0)
    for w in range(4): a(f"ds_read_b64 v[{GE+2*w}:{GE+2*w+1}], v16 offset:{QR + 512*w}")
    a("s_waitcnt lgkmcnt(0)")
    a(f"v_pk_add_f32 v[{GE}:{GE+1}], v[{GE}:{GE+1}], v[{GE+2}:{GE+3}]")
    a(f"v_pk_add_f32 v[{GE+4}:{GE+5}], v[{GE+4}:{GE+5}], v[{GE+6}:{GE+7}]")
    a(f"v_pk_add_f32 v[{ACC}:{ACC+1}], v[{GE}:{GE+1}], v[{GE+4}:{GE+5}]")
    a(f"buffer_store_dwordx4 v[{ACC}:{ACC+3}], v1, s[60:63], s84 offen sc1")
    fullexec()
    stamp_to(2)
    if cfg.get("stop") == "q": a("s_branch L_exit")
    a("v_lshlrev_b32 v4, 3, v17")
    a("s_lshl_b32 s12, s5, 2"); a("s_add_u32 s12, s12, s3")
    a("s_and_b32 s10, s12, 31"); a("s_add_u32 s10, s10, 16"); a("s_lshr_b32 s99, s12, 5")
    a("s_lshl_b32 s12, s99, 6")
    a(f"s_mul_i32 s13, s99, {32*6144}"); a("s_lshl_b32 s14, s10, 7"); a("s_add_u32 s13, s13, s14")
    a(f"buffer_load_dwordx2 v[{C2}:{C2+1}], v4, s[48:51], s12 offen")
    a(f"buffer_load_dwordx2 v[{C3}:{C3+1}], v4, s[48:51], s12 offen offset:512")
    for hf in range(2):
        for i in range(4):
            a(f"s_add_u32 s12, s13, {hf*256*6144 + i*6144}")
            a(f"buffer_load_dwordx4 v[{GW+16*hf+4*i}:{GW+16*hf+4*i+3}], v68, s[52:55], s12 offen{WT}")
    a(f"s_mul_i32 s89, s10, {BS}"); a("s_lshl_b32 s12, s99, 9"); a("s_add_u32 s89, s89, s12"); a(f"s_add_u32 s89, s89, {MODP}")
    a("s_add_u32 s99, s89, 4096")
    a("v_lshlrev_b32 v18, 4, v18")
    a("v_lshl_add_u32 v4, v17, 13, v18")
    a("v_lshl_add_u32 v6, v17, 10, v18")
    a("s_lshl_b32 s12, s6, 17"); a("s_lshl_b32 s13, s7, 9"); a("s_add_u32 s12, s12, s13")
    a("s_lshl_b32 s13, s3, 7"); a("s_add_u32 s12, s12, s13")
    for ks in range(4):
        for i in range(4):
            a(f"s_add_u32 s13, s12, {(64*(i&1) + (i>>1) + 2*ks) * 1024}")
            a(f"buffer_load_dwordx4 v[{WOF+16*ks+4*i}:{WOF+16*ks+4*i+3}], v4, s[68:71], s13 offen{WT}")
    a("s_cmp_eq_u32 s8, 0"); a("s_cbranch_scc1 L_xnotM")
    a("v_lshrrev_b32 v7, 2, v0"); a("v_mul_u32_u24 v7, 3584, v7")
    a("v_and_b32 v16, 3, v0"); a("v_lshl_add_u32 v7, v16, 4, v7")
    a(f"s_mul_i32 s12, s3, {128*3584}"); a("s_lshl_b32 s13, s5, 6"); a("s_add_u32 s12, s12, s13")
    for i in range(8):
        a(f"buffer_load_dwordx4 v[{W1F+4*i}:{W1F+4*i+3}], v7, s[72:75], s12 offen{WT}")
        if i < 7: a(f"s_add_u32 s12, s12, {16*3584}")
    a("s_lshl_b32 s12, s5, 15"); a("s_lshl_b32 s13, s3, 8"); a("s_add_u32 s12, s12, s13")
    for hh in range(2):
        for i in range(4):
            a(f"s_add_u32 s13, s12, {8192*i}")
            a(f"buffer_load_dwordx4 v[{W2F+16*hh+4*i}:{W2F+16*hh+4*i+3}], v6, s[76:79], s13 offen offset:{128*hh}{WT}")
    a("v_and_b32 v7, 31, v0"); a("v_lshlrev_b32 v7, 3, v7"); a("s_lshl_b32 s12, s3, 8")
    a(f"buffer_load_dwordx2 v[{XQR}:{XQR+1}], v7, s[44:47], s12 offen")
    a.label("L_xnotM")
    for r in range(8, 12): a(f"v_mov_b32 v{r}, -1")
    setexec("0xffff", 0)
    a("buffer_store_dwordx4 v[8:11], v1, s[60:63], s87 offen sc1")
    a("s_cmp_eq_u32 s8, 0"); a("s_cbranch_scc1 L_nz")
    setexec(-1, 0)
    a("buffer_store_dwordx4 v[8:11], v1, s[60:63], s88 offen sc1")
    a.label("L_nz")
    fullexec()
    a("s_waitcnt vmcnt(0)")
    unit(C2, GW, "s89")
    unit(C3, GW + 16, "s99")
    a("s_lshl_b32 s12, s3, 12")
    a("v_add_u32 v19, s12, v1")
    a("v_lshrrev_b32 v17, 4, v0"); a("v_and_b32 v18, 15, v0"); a("v_lshl_add_u32 v18, v18, 1, s12")
    a("v_lshl_add_u32 v4, v17, 10, v18"); a("v_lshl_add_u32 v5, v17, 9, v18")
    a("v_lshlrev_b32 v17, 4, v17")
    a("s_waitcnt vmcnt(0)")
    if cfg.get("stop") == "ld": a("s_branch L_exit")
    arrive(VZ, VONE, TA)
    def transpose4(dst, rb):
        for q in range(4): a(f"ds_write_b128 v19, v[{dst+4*q}:{dst+4*q+3}] offset:{STG + 1024*q}")
        for f in range(4):
            for e in range(8):
                if rb == 128: off = e * 128 + f * 32; vb = 4
                else: off = (f >> 1) * 2048 + e * 64 + (f & 1) * 32; vb = 5
                a(f"ds_read_u16 v{GW+8*f+e}, v{vb} offset:{STG + off}")
        a("s_waitcnt lgkmcnt(0)")
        for f in range(4):
            for q in range(4): a(f"v_lshl_or_b32 v{dst+4*f+q}, v{GW+8*f+2*q+1}, 16, v{GW+8*f+2*q}")
    for cb in range(4): transpose4(WOF + 16 * cb, 128)
    a("s_cmp_eq_u32 s8, 0"); a("s_cbranch_scc1 L_notM05")
    transpose4(W1F, 64); transpose4(W1F + 16, 64)
    transpose4(W2F, 128); transpose4(W2F + 16, 128)
    a.label("L_notM05")
    a("s_cmp_ge_u32 s5, 32"); a("s_cbranch_scc1 L_nored")
    a("s_cmp_lg_u32 s3, 1"); a("s_cbranch_scc1 L_nored")
    a("s_add_u32 s14, s5, 16"); a(f"s_mul_i32 s86, s14, {BS}"); a(f"s_add_u32 s86, s86, {MODP}")
    a(f"s_mul_i32 s89, s14, 640"); a(f"s_add_u32 s89, s89, {MODF}")
    block_reduce(86, GW, ACC, 1, 0, 8, "R")
    bf16rn(ACC, 2, GW + 4)
    a(f"v_mov_b32 v{ACC+2}, s96"); a(f"v_mov_b32 v{ACC+3}, s97")
    setexec(-1, 0)
    a(f"buffer_store_dwordx4 v[{ACC}:{ACC+3}], v1, s[60:63], s89 offen sc1")
    fullexec()
    a.label("L_nored")
    a("s_cmp_lg_u32 s3, 0"); a("s_cbranch_scc1 L_gow")
    a(f"s_mov_b32 s15, {TMO}")
    setexec(1, 0)
    a.label("L_go")
    a(f"s_sleep {cfg.get('gosleep', 64)}")
    a(f"buffer_load_dword v{TA}, v{VZ}, s[64:67], 0 offen offset:128 sc1")
    a("s_sub_u32 s15, s15, 1"); a("s_cbranch_scc1 L_end")
    a("s_waitcnt vmcnt(0)")
    a(f"v_readfirstlane_b32 s14, v{TA}")
    a("s_cmp_eq_u32 s14, 0"); a("s_cbranch_scc1 L_go")
    a(f"ds_add_u32 v{VZ}, v{VONE} offset:{F_GO}")
    fullexec()
    a.label("L_gow")
    lds_wait(F_GO, 1, VZ, TA, 14, sleep=8)
    stamp_to(3)
    a("s_cmp_eq_u32 s8, 0"); a("s_cbranch_scc1 L_notM1")
    unpack(XQ, XQ + 1, XQR); unpack(XQ + 2, XQ + 3, XQR + 1)
    a("v_and_b32 v4, 15, v0"); a("v_lshlrev_b32 v4, 5, v4"); a("v_bfe_u32 v6, v0, 4, 1"); a("v_mul_u32_u24 v6, 640, v6"); a("v_add_u32 v4, v4, v6")
    a("v_and_b32 v6, 3, v0"); a("v_lshlrev_b32 v6, 5, v6")
    a(f"s_mul_i32 s32, s3, 1280"); a(f"s_add_u32 s32, s32, {MODF + 16*640}")
    a(f"s_add_u32 s33, s32, {8*640}"); a(f"s_add_u32 s34, s32, {16*640}")
    a(f"s_mul_i32 s35, s4, 640"); a("s_lshl_b32 s12, s3, 7"); a("s_add_u32 s35, s35, s12"); a(f"s_add_u32 s35, s35, {MODF + 40*640}")
    items = []
    for k in range(4):
        def ld(k=k):
            va = 4 if k < 3 else 6
            a(f"buffer_load_dwordx4 v[{GW+8*k}:{GW+8*k+3}], v{va}, s[60:63], s{32+k} offen sc1")
            a(f"buffer_load_dwordx4 v[{GW+8*k+4}:{GW+8*k+7}], v{va}, s[60:63], s{32+k} offen offset:16 sc1")
        items.append((ld, "tag", [GW + 8 * k, GW + 8 * k + 4]))
    sel_gather(items, "MF", 16)
    for k, dst in enumerate((GA, SBV, CB1, GB)):
        a(f"v_mov_b32 v{dst}, v{GW+8*k}"); a(f"v_mov_b32 v{dst+1}, v{GW+8*k+1}")
        a(f"v_mov_b32 v{dst+2}, v{GW+8*k+4}"); a(f"v_mov_b32 v{dst+3}, v{GW+8*k+5}")
    for i in range(4): a(f"v_add_f32 v{CB1+i}, 1.0, v{CB1+i}")
    bf16rn(CB1, 4, TA)
    a.label("L_notM1")
    stamp_to(8)
    if cfg.get("stop") == "t1": a("s_branch L_exit")
    a("v_lshrrev_b32 v18, 5, v0"); a("v_and_b32 v7, 31, v0"); a("v_lshlrev_b32 v7, 4, v7"); a("v_lshl_add_u32 v7, v18, 11, v7")
    a("v_lshrrev_b32 v8, 3, v0"); a("v_mul_u32_u24 v9, 640, v8")
    a("v_and_b32 v10, 7, v0"); a("v_lshl_add_u32 v8, v10, 4, v9")
    a("s_lshl_b32 s13, s3, 7"); a("v_add_u32 v8, s13, v8")
    a("s_lshl_b32 s12, s3, 6"); a("v_lshl_add_u32 v10, v0, 3, s12")
    a("v_add_u32 v11, s12, v17")
    a("v_and_b32 v12, 15, v0"); a("v_lshl_add_u32 v12, v12, 6, v17")
    a("s_lshl_b32 s12, s3, 8"); a("v_add_u32 v13, s12, v1")
    a("v_add_u32 v6, s12, v17")
    a("v_lshl_add_u32 v14, v0, 3, s12")
    a("s_lshl_b32 s12, s3, 3"); a("v_mov_b32 v15, s12")
    a("s_lshl_b32 s12, s3, 7"); a("v_add_u32 v16, s12, v17")
    a("v_lshlrev_b32 v4, 1, v17")
    a(f"s_mul_i32 s32, s6, {NSP*640}"); a(f"s_add_u32 s32, s32, {R1}")
    a(f"s_add_u32 s33, s32, {8*640}"); a(f"s_add_u32 s34, s32, {16*640}")
    a("s_lshl_b32 s56, s3, 9"); a(f"s_add_u32 s56, s56, {YO}")
    a("s_lshl_b32 s57, s4, 8"); a("s_lshl_b32 s13, s3, 6"); a("s_add_u32 s57, s57, s13"); a(f"s_add_u32 s57, s57, {ZO}")
    for _ in range(cfg.get("wdelay_n", 5)): a("s_sleep 127")
    G = GW; LS = GW + 12
    items = []
    for i in range(3):
        def ld(i=i):
            a(f"buffer_load_dwordx4 v[{G+4*i}:{G+4*i+3}], v8, s[60:63], s{32+i} offen sc1")
            a(f"buffer_load_dword v{LS+i}, v9, s[60:63], s{32+i} offen offset:512 sc1")
        items.append((ld, "sent", [G + 4 * i, G + 4 * i + 1, G + 4 * i + 2, G + 4 * i + 3, LS + i]))
    sel_gather(items, "W", cfg.get("wsleep", 0), chk=TA, sleep_all=cfg.get("wsleep_all", 24))
    stamp_to(6)
    MX = G + 16; MT = G + 17
    a(f"v_max3_f32 v{MX}, v{LS}, v{LS+1}, v{LS+2}")
    rowreduce("v_max_f32", [MX], [8])
    bfly("v_max_f32", [MX], [MT], 16); bfly("v_max_f32", [MX], [MT], 32)
    for i in range(3): a(f"v_sub_f32 v{LS+i}, v{LS+i}, v{MX}")
    for i in range(3): a(f"v_exp_f32 v{LS+i}, v{LS+i}")
    for k in range(4): a(f"v_mul_f32 v{G+k}, v{G+k}, v{LS}")
    for i in range(1, 3):
        for k in range(4): a(f"v_fmac_f32 v{G+k}, v{G+4*i+k}, v{LS+i}")
    a(f"v_add_f32 v{G+4}, v{LS}, v{LS+1}"); a(f"v_add_f32 v{G+4}, v{G+4}, v{LS+2}")
    five = [G, G + 1, G + 2, G + 3, G + 4]; five_t = [G + 8, G + 9, G + 10, G + 11, G + 12]
    rowreduce("v_add_f32", five, [8])
    bfly("v_add_f32", five, five_t, 16); bfly("v_add_f32", five, five_t, 32)
    a(f"v_rcp_f32 v{G+4}, v{G+4}")
    for k in range(4): a(f"v_mul_f32 v{G+k}, v{G+k}, v{G+4}")
    a(f"v_cvt_pk_bf16_f32 v{G+6}, v{G}, v{G+1}"); a(f"v_cvt_pk_bf16_f32 v{G+7}, v{G+2}, v{G+3}")
    setexec("0xff", 0)
    a(f"ds_write_b64 v10, v[{G+6}:{G+7}] offset:{OL}")
    fullexec()
    lds_signal(F_O, VZ, VONE)
    lds_wait(F_O, 4, VZ, TA, 14, sleep=0)
    for ks in range(4): a(f"ds_read_b128 v[{G+16+4*ks}:{G+19+4*ks}], v17 offset:{OL + 64*ks}")
    for ks in range(4):
        a(f"s_waitcnt lgkmcnt({3-ks})")
        for ct in range(4):
            c = "0" if ks == 0 else f"v[{G+4*ct}:{G+4*ct+3}]"
            f = WOF + 16 * ks + 4 * ct
            a(f"v_mfma_f32_16x16x32_bf16 v[{G+4*ct}:{G+4*ct+3}], v[{f}:{f+3}], v[{G+16+4*ks}:{G+19+4*ks}], {c}")
    if cfg.get("yfull", True):
        for ct in range(1, 4):
            m = f"{(1 << ct) | (1 << (16 + ct)):#x}"
            setexec(m, m)
            for k in (0, 2): a(f"v_pk_mov_b32 v[{G+k}:{G+k+1}], v[{G+4*ct+k}:{G+4*ct+k+1}], v[{G+4*ct+k}:{G+4*ct+k+1}] op_sel:[0,1]")
        setexec("0x000f000f", "0x000f000f")
        a(f"buffer_store_dwordx4 v[{G}:{G+3}], v12, s[60:63], s87 offen sc1")
        fullexec()
    else:
        setexec("0x00010001", "0x00010001")
        for ct in range(4):
            a(f"buffer_store_dwordx4 v[{G+4*ct}:{G+4*ct+3}], v17, s[60:63], s87 offen offset:{64*ct} sc1")
        fullexec()
    stamp_to(7)
    a("s_cmp_eq_u32 s8, 0"); a("s_cbranch_scc1 L_end")
    G = GE
    items = []
    for i in range(16):
        def ld(i=i):
            a(f"s_add_u32 s12, s56, {4096*i}")
            a(f"buffer_load_dwordx4 v[{G+4*i}:{G+4*i+3}], v7, s[60:63], s12 offen sc1")
        items.append((ld, "sent", [G + 4 * i + k for k in range(4)]))
    sel_gather(items, "Y", cfg.get("ysleep", 0), chk=TA, sleep_all=cfg.get("ysleep_all", 0))
    pk_sum_quads(G, 16)
    stamp_to(9)
    bfly("v_add_f32", [G, G + 1, G + 2, G + 3], [G + 4, G + 5, G + 6, G + 7], 32)
    bf16rn(G, 4, G + 4)
    for k in range(4): a(f"v_mul_f32 v{G+k}, v{G+k}, v{GA+k}")
    bf16rn(G, 4, G + 4)
    for k in range(4): a(f"v_add_f32 v{G+k}, v{G+k}, v{XQ+k}")
    a(f"v_cvt_pk_bf16_f32 v{G+4}, v{G}, v{G+1}"); a(f"v_cvt_pk_bf16_f32 v{G+5}, v{G+2}, v{G+3}")
    unpack(XV, XV + 1, G + 4); unpack(XV + 2, XV + 3, G + 5)
    setexec(-1, 0)
    a(f"ds_write_b64 v14, v[{G+4}:{G+5}] offset:{X1L}")
    fullexec()
    a(f"v_readfirstlane_b32 s14, v{XV}")
    for k in range(4): a(f"v_subrev_f32 v{G+k}, s14, v{XV+k}")
    S1 = G + 6; S2 = G + 7
    a(f"v_add_f32 v{S1}, v{G}, v{G+1}"); a(f"v_mul_f32 v{S2}, v{G}, v{G}"); a(f"v_fmac_f32 v{S2}, v{G+1}, v{G+1}")
    a(f"v_add_f32 v{S1}, v{S1}, v{G+2}"); a(f"v_fmac_f32 v{S2}, v{G+2}, v{G+2}")
    a(f"v_add_f32 v{S1}, v{S1}, v{G+3}"); a(f"v_fmac_f32 v{S2}, v{G+3}, v{G+3}")
    rowreduce("v_add_f32", [S1, S2], [1, 2, 4, 8])
    bfly("v_add_f32", [S1, S2], [G + 8, G + 9], 16)
    a(f"v_mul_f32 v{G+8}, {f32bits(1/128):#x}, v{S1}")
    a(f"v_fma_f32 v{S2}, -v{G+8}, v{S1}, v{S2}")
    a(f"v_add_f32 v{S1}, s14, v{G+8}")
    setexec(1, 0)
    a(f"ds_write_b64 v15, v[{S1}:{S2}] offset:{STL}")
    a("s_waitcnt lgkmcnt(0)")
    a(f"ds_add_u32 v{VZ}, v{VONE} offset:{F_X1}")
    fullexec()
    lds_wait(F_X1, 4, VZ, TA, 14, sleep=0)
    a(f"ds_read_b128 v[{G}:{G+3}], v{VZ} offset:{STL}")
    a(f"ds_read_b128 v[{G+4}:{G+7}], v{VZ} offset:{STL+16}")
    a("s_waitcnt lgkmcnt(0)")
    a(f"v_add_f32 v{MEAN}, v{G}, v{G+2}"); a(f"v_add_f32 v{TA}, v{G+4}, v{G+6}")
    a(f"v_add_f32 v{RDEN}, v{G+1}, v{G+3}"); a(f"v_add_f32 v{TB}, v{G+5}, v{G+7}")
    a(f"v_add_f32 v{MEAN}, v{MEAN}, v{TA}"); a(f"v_add_f32 v{RDEN}, v{RDEN}, v{TB}")
    a(f"v_mul_f32 v{MEAN}, {f32bits(0.25):#x}, v{MEAN}")
    for w in range(4): a(f"v_sub_f32 v{G+2*w}, v{G+2*w}, v{MEAN}")
    a(f"v_mul_f32 v{TA}, v{G}, v{G}"); a(f"v_mul_f32 v{TB}, v{G+2}, v{G+2}")
    a(f"v_fmac_f32 v{TA}, v{G+4}, v{G+4}"); a(f"v_fmac_f32 v{TB}, v{G+6}, v{G+6}")
    a(f"v_add_f32 v{TA}, v{TA}, v{TB}")
    a(f"v_mul_f32 v{RDEN}, {f32bits(1/512):#x}, v{RDEN}")
    a(f"v_fmac_f32 v{RDEN}, {f32bits(0.25):#x}, v{TA}")
    ln_finish(MEAN, RDEN, TA)
    for i in range(4): a(f"v_sub_f32 v{XV+i}, v{XV+i}, v{MEAN}")
    bf16rn(XV, 4, G)
    for i in range(4): a(f"v_mul_f32 v{XV+i}, v{XV+i}, v{RDEN}")
    bf16rn(XV, 4, G)
    for i in range(4): a(f"v_mul_f32 v{XV+i}, v{XV+i}, v{CB1+i}")
    bf16rn(XV, 4, G)
    for i in range(4): a(f"v_add_f32 v{XV+i}, v{XV+i}, v{SBV+i}")
    a(f"v_cvt_pk_bf16_f32 v{G}, v{XV}, v{XV+1}"); a(f"v_cvt_pk_bf16_f32 v{G+1}, v{XV+2}, v{XV+3}")
    setexec(-1, 0)
    a(f"ds_write_b64 v14, v[{G}:{G+1}] offset:{H2L}")
    fullexec()
    for ks in range(4): a(f"ds_read_b128 v[{G+16+4*ks}:{G+19+4*ks}], v6 offset:{H2L + 64*ks}")
    for ks in range(4):
        a(f"s_waitcnt lgkmcnt({3-ks})")
        for ct in range(2):
            acc = G + 4 + 4 * ct
            c = "0" if ks == 0 else f"v[{acc}:{acc+3}]"
            f = W1F + 4 * (2 * ks + ct)
            a(f"v_mfma_f32_16x16x32_bf16 v[{acc}:{acc+3}], v[{f}:{f+3}], v[{G+16+4*ks}:{G+19+4*ks}], {c}")
    setexec("0x00010001", "0x00010001")
    a(f"ds_write_b128 v16, v[{G+4}:{G+7}] offset:{A1L}")
    a(f"ds_write_b128 v16, v[{G+8}:{G+11}] offset:{A1L+64}")
    lds_signal(F_A1, VZ, VONE)
    lds_wait(F_A1, 4, VZ, TA, 14, sleep=0)
    for w in range(4):
        a(f"ds_read_b128 v[{G+8*w}:{G+8*w+3}], v4 offset:{A1L + 128*w}")
        a(f"ds_read_b128 v[{G+8*w+4}:{G+8*w+7}], v4 offset:{A1L + 128*w + 16}")
    a("s_waitcnt lgkmcnt(4)")
    for i in range(0, 8, 2): a(f"v_pk_add_f32 v[{G+i}:{G+i+1}], v[{G+i}:{G+i+1}], v[{G+8+i}:{G+9+i}]")
    a("s_waitcnt lgkmcnt(0)")
    for i in range(0, 8, 2): a(f"v_pk_add_f32 v[{G+16+i}:{G+17+i}], v[{G+16+i}:{G+17+i}], v[{G+24+i}:{G+25+i}]")
    for i in range(0, 8, 2): a(f"v_pk_add_f32 v[{G+i}:{G+i+1}], v[{G+i}:{G+i+1}], v[{G+16+i}:{G+17+i}]")
    bf16rn(G, 8, G + 8)
    silu_f32(G, 8, G + 8)
    for i in range(4): a(f"v_cvt_pk_bf16_f32 v{G+16+i}, v{G+2*i}, v{G+2*i+1}")
    ZD = G + 20
    for u in range(8):
        a(f"v_mfma_f32_16x16x32_bf16 v[{ZD+4*u}:{ZD+4*u+3}], v[{W2F+4*u}:{W2F+4*u+3}], v[{G+16}:{G+19}], 0")
    if cfg.get("zfull", True):
        for u in range(1, 8):
            m = f"{(1 << u) | (1 << (16 + u)):#x}"
            setexec(m, m)
            for k in (0, 2): a(f"v_pk_mov_b32 v[{ZD+k}:{ZD+k+1}], v[{ZD+4*u+k}:{ZD+4*u+k+1}], v[{ZD+4*u+k}:{ZD+4*u+k+1}] op_sel:[0,1]")
        setexec("0x00ff00ff", "0x00ff00ff")
        a(f"buffer_store_dwordx4 v[{ZD}:{ZD+3}], v12, s[60:63], s88 offen sc1")
        fullexec()
    else:
        setexec("0x00010001", "0x00010001")
        for u in range(8):
            a(f"buffer_store_dwordx4 v[{ZD+4*u}:{ZD+4*u+3}], v17, s[60:63], s88 offen offset:{64*u} sc1")
        fullexec()
    stamp_to(10)
    a("s_cmp_ge_u32 s5, 8"); a("s_cbranch_scc1 L_end")
    a("v_lshrrev_b32 v8, 2, v0"); a("v_lshlrev_b32 v18, 11, v8")
    a("v_and_b32 v9, 3, v0"); a("v_lshl_add_u32 v18, v9, 4, v18")
    a("v_and_b32 v8, 7, v8"); a("v_lshlrev_b32 v10, 11, v8"); a("v_lshl_add_u32 v10, v9, 4, v10")
    a("s_lshl_b32 s12, s4, 7"); a("s_lshl_b32 s13, s3, 5"); a("s_add_u32 s14, s12, s13")
    a("v_lshlrev_b32 v9, 3, v9"); a("v_add_u32 v9, s14, v9")
    a(f"ds_read_b64 v[{XQ+2}:{XQ+3}], v9 offset:{X1L}")
    srd(44, 90, 1024)
    items = []
    for i in range(4):
        def ld(i=i):
            a(f"s_add_u32 s12, s57, {32768*i}")
            a(f"buffer_load_dwordx4 v[{G+4*i}:{G+4*i+3}], v{18 if i < 3 else 10}, s[60:63], s12 offen sc1")
        items.append((ld, "sent", [G + 4 * i + k for k in range(4)]))
    sel_gather(items, "Z", 0, chk=TA)
    setexec(0, -1)
    for k in range(4): a(f"v_mov_b32 v{G+12+k}, 0")
    fullexec()
    pk_sum_quads(G, 4)
    four = [G, G + 1, G + 2, G + 3]; four_t = [G + 4, G + 5, G + 6, G + 7]
    rowreduce("v_add_f32", four, [4, 8])
    bfly("v_add_f32", four, four_t, 16); bfly("v_add_f32", four, four_t, 32)
    a("s_waitcnt lgkmcnt(0)")
    unpack(XQ, XQ + 1, XQ + 2); unpack(XQ + 2, XQ + 3, XQ + 3)
    bf16rn(G, 4, G + 4)
    for k in range(4): a(f"v_mul_f32 v{G+k}, v{G+k}, v{GB+k}")
    bf16rn(G, 4, G + 4)
    for k in range(4): a(f"v_add_f32 v{G+k}, v{G+k}, v{XQ+k}")
    a(f"v_cvt_pk_bf16_f32 v{G+4}, v{G}, v{G+1}"); a(f"v_cvt_pk_bf16_f32 v{G+5}, v{G+2}, v{G+3}")
    setexec("0xf", 0)
    a(f"buffer_store_dwordx2 v[{G+4}:{G+5}], v9, s[44:47], 0 offen {cfg.get('outflags', '')}")
    a("s_or_b32 s12, s5, s3"); a("s_cmp_lg_u32 s12, 0"); a("s_cbranch_scc1 L_noep")
    setexec(1, 0)
    a(f"buffer_store_dword v{TAG}, v{VZ}, s[60:63], 0 offen offset:{EPOCH} sc1")
    a.label("L_noep")
    fullexec()
    stamp_to(11)
    a.label("L_end")
    if stamp:
        fullexec()
        stamp_to(15)
        for i in range(16): a(f"v_writelane_b32 v2, s{16+i}, {i}")
        a("v_mbcnt_lo_u32_b32 v3, -1, 0"); a("v_lshlrev_b32 v3, 2, v3")
        setexec("0xffff", 0)
        a("buffer_store_dword v2, v3, s[60:63], s94 offen")
    a.label("L_exit")
    a("s_endpgm")
    a.raw('.section .rodata,"a"')
    a.raw(".p2align 6")
    a.raw(f".amdhsa_kernel {NAME}_kernel")
    a.raw("  .amdhsa_next_free_vgpr 256")
    a.raw("  .amdhsa_next_free_sgpr 100")
    a.raw("  .amdhsa_accum_offset 256")
    a.raw("  .amdhsa_group_segment_fixed_size 0")
    a.raw("  .amdhsa_kernarg_size 104")
    a.raw("  .amdhsa_user_sgpr_count 2")
    a.raw("  .amdhsa_user_sgpr_kernarg_segment_ptr 1")
    a.raw("  .amdhsa_system_sgpr_workgroup_id_x 1")
    a.raw(".end_amdhsa_kernel")
    assert a.maxv <= 256 and a.maxs <= 100, (a.maxv, a.maxs)
    return a.text()

if __name__ == "__main__":
    import json
    out = sys.argv[1]
    cfg = json.loads(sys.argv[2]) if len(sys.argv) > 2 else {}
    open(out, "w").write(gen(cfg))
```
